```python
import torch

def _softmax(x, axis=-1):
    return torch.softmax(x, dim=axis)

def _gelu(x):
    return torch.nn.functional.gelu(x, approximate='tanh')

def _silu(x):
    return torch.nn.functional.silu(x)

def _sigmoid(x):
    return torch.sigmoid(x)

def _layernorm(x, axis=-1, eps=1e-05):
    m = x.mean(dim=axis, keepdim=True)
    v = x.var(dim=axis, keepdim=True, unbiased=False)
    return (x - m) / torch.sqrt(v + eps)

def _scatter_add(tgt, idx, src, axis=0):
    return tgt.clone().index_add_(axis, idx, src)

def _segment_sum(src, seg, n):
    out = torch.zeros((n,) + src.shape[1:], dtype=src.dtype)
    return out.index_add_(0, seg, src)

def _pad(x, pw):
    flat = tuple((v for pair in reversed(pw) for v in pair))
    return torch.nn.functional.pad(x, flat)
kernel_name = 'adaLN_cond__sliding_block_cached__dense_activation_relu__decode'

def setup_inputs():

    _w = lambda a: (lambda t: t.to(torch.bfloat16) if t.is_floating_point() else t)(torch.as_tensor(a))

    def _A_setup():
        B, Sq, D = (2, 1, 1024)
        Hq, Hkv, Sk, Dh = (32, 4, 32768, 128)
        assert Hq % Hkv == 0, (Hq, Hkv)
        return {'x': _w((lambda *s: torch.randn(*s, dtype=torch.bfloat16) * 0.05)(B, Sq, D)), 'k_cache': _w((lambda *s: torch.randn(*s, dtype=torch.bfloat16) * 0.4)(B, Hkv, Sk, Dh)), 'v_cache': _w((lambda *s: torch.randn(*s, dtype=torch.bfloat16) * 0.8)(B, Hkv, Sk, Dh)), 'wq': _w((lambda *s: torch.randn(*s, dtype=torch.bfloat16) * 0.4)(D, Hq * Dh) * D ** (-0.5)), 'wo': _w((lambda *s: torch.randn(*s, dtype=torch.bfloat16) * 0.8)(Hq * Dh, D) * (Hq * Dh) ** (-0.5))}
    _A_in = _A_setup()

    def _B_setup():
        B, S, D, Dff = (2, 1, 1024, 3584)
        return {'x': _w((lambda *s: torch.randn(*s, dtype=torch.bfloat16) * 0.05)(B, S, D)), 'w1': _w((lambda *s: torch.randn(*s, dtype=torch.bfloat16) * 0.05)(D, Dff)), 'w2': _w((lambda *s: torch.randn(*s, dtype=torch.bfloat16) * 0.05)(Dff, D))}
    _B_in = _B_setup()
    return {'A_x': _A_in['x'], 'A_k_cache': _A_in['k_cache'], 'A_v_cache': _A_in['v_cache'], 'A_wq': _A_in['wq'], 'A_wo': _A_in['wo'], 'B_x': _B_in['x'], 'B_w1': _B_in['w1'], 'B_w2': _B_in['w2'], 'c': _w((lambda *s: torch.randn(*s, dtype=torch.bfloat16) * 0.4)(2, 1024) * 8.0), 'w_mod': _w((lambda *s: torch.randn(*s, dtype=torch.bfloat16) * 0.4)(1024, 6 * 1024) * 1024 ** (-0.5) * 8.0)}

def reference(A_x, A_k_cache, A_v_cache, A_wq, A_wo, B_x, B_w1, B_w2, c, w_mod):

    def _A_ref(x, k_cache, v_cache, wq, wo):
        B, Sq, D = x.shape
        Hq, Dh = (32, 128)
        Hkv, Sk = (k_cache.shape[1], k_cache.shape[2])
        W = min(4096, max(256, Sk // 4))
        rep = Hq // Hkv
        q = (lambda x, *d: x.permute(*d))((x @ wq).reshape(B, Sq, Hq, Dh), 0, 2, 1, 3)
        k = (lambda x, n, axis: torch.repeat_interleave(x, n, dim=axis))(k_cache[:, :, Sk - W:, :], rep, axis=1)
        v = (lambda x, n, axis: torch.repeat_interleave(x, n, dim=axis))(v_cache[:, :, Sk - W:, :], rep, axis=1)
        scores = torch.einsum('bhqd,bhkd->bhqk', q, k) * Dh ** (-0.5)
        p = _softmax(scores, axis=-1)
        o = torch.einsum('bhqk,bhkd->bhqd', p, v)
        return (lambda x, *d: x.permute(*d))(o, 0, 2, 1, 3).reshape(B, Sq, Hq * Dh) @ wo

    def _B_ref(x, w1, w2):
        h = torch.einsum('bsd,df->bsf', x, w1)
        zero = torch.zeros_like(h)
        h = torch.maximum(h, zero)
        return torch.einsum('bsf,fd->bsd', h, w2)
    x = A_x
    mod = (_silu(c) @ w_mod).reshape(c.shape[0], 6, 1, -1)
    sa, ca, ga, sb, cb, gb = (mod[:, 0].clone(), mod[:, 1].clone(), mod[:, 2].clone(), mod[:, 3].clone(), mod[:, 4].clone(), mod[:, 5].clone())
    h = _layernorm(x, axis=-1) * (1 + ca) + sa
    x = x + ga * _A_ref(h, A_k_cache, A_v_cache, A_wq, A_wo)
    h = _layernorm(x, axis=-1) * (1 + cb) + sb
    x = x + gb * _B_ref(h, B_w1, B_w2)
    return x
```

```python
NAME = "adaLN_cond__sliding_block_cached__dense_activation_relu__decode"
HEADER = """; Kernarg layout (104 bytes, ptrs only, base s[0:1]):
"""
class Asm:
    def __init__(self):
        self.l = []
        self.nlab = 0
    def __call__(self, s=""):
        for line in s.split("\n"):
            self.l.append(line)
    def lab(self, base="L"):
        self.nlab += 1
        return "%s_%d" % (base, self.nlab)
    def label(self, name):
        self.l.append(name + ":")
    def text(self):
        out = []
        for x in self.l:
            x = x.strip()
            if not x: continue
            if x.endswith(":") or x.startswith(".") or x.startswith(";"):
                out.append(x)
            else:
                out.append("    " + x)
        return "\n".join(out) + "\n"

def wrap(body, grid, block, lds, vgpr, sgpr=102, accum=None, extra_hdr=""):
    if accum is None: accum = (vgpr + 3) // 4 * 4
    s = HEADER + extra_hdr
    s += "; @launch grid=(%d,1,1) block=(%d,1,1) lds=%d\n" % (grid, block, lds)
    s += '.amdgcn_target "amdgcn-amd-amdhsa--gfx950"\n.text\n.globl %s_kernel\n.p2align 8\n.type %s_kernel,@function\n%s_kernel:\n' % (NAME, NAME, NAME)
    s += body
    s += """.section .rodata,"a"
.p2align 6
.amdhsa_kernel %s_kernel
  .amdhsa_next_free_vgpr %d
  .amdhsa_next_free_sgpr %d
  .amdhsa_accum_offset %d
  .amdhsa_group_segment_fixed_size 0
  .amdhsa_kernarg_size 104
  .amdhsa_user_sgpr_count 2
  .amdhsa_user_sgpr_kernarg_segment_ptr 1
  .amdhsa_system_sgpr_workgroup_id_x 1
  .amdhsa_float_denorm_mode_32 3
.end_amdhsa_kernel
""" % (NAME, vgpr, sgpr, accum)
    return s
```

```python
import re
TRANS = ("v_exp_f32", "v_log_f32", "v_rcp_f32", "v_rsq_f32", "v_sqrt_f32", "v_sin_f32", "v_cos_f32")
def regs(op):
    op = op.strip()
    op = op.replace("-", "").replace("abs(", "").replace("|", "").replace(")", "")
    m = re.fullmatch(r"([vsa])\[(\d+):(\d+)\]", op)
    if m: return {(m.group(1), i) for i in range(int(m.group(2)), int(m.group(3)) + 1)}
    m = re.fullmatch(r"([vsa])(\d+)", op)
    if m: return {(m.group(1), int(m.group(2)))}
    if op == "vcc": return {("s", 106), ("s", 107)}
    if op == "vcc_lo": return {("s", 106)}
    if op == "vcc_hi": return {("s", 107)}
    if op == "exec": return {("s", 126), ("s", 127)}
    if op == "exec_lo": return {("s", 126)}
    if op == "exec_hi": return {("s", 127)}
    if op == "m0": return {("s", 124)}
    return set()
class I: pass
def parse(line):
    s = line.split(";")[0].strip()
    if not s or s.endswith(":") or s.startswith("."): return None
    p = s.split(None, 1)
    i = I(); i.op = p[0]; i.text = s
    rest = p[1] if len(p) > 1 else ""
    ops = [x.strip() for x in rest.split(",")]
    clean = []
    depth_ops = re.findall(r"(?:[^,\[]|\[[^\]]*\])+", rest)
    for x in depth_ops:
        x = x.strip()
        clean.append(x.split()[0] if x else x)
    i.ops = clean
    op = i.op
    i.valu = op.startswith("v_") and not op.startswith("v_mfma")
    i.mfma = op.startswith("v_mfma")
    i.vmem = op.startswith(("global_", "buffer_", "flat_"))
    i.ds = op.startswith("ds_")
    i.salu = op.startswith("s_")
    i.dpp = "_dpp" in op or "quad_perm" in s or "row_" in s
    i.trans = op.replace("_e32", "").replace("_e64", "") in TRANS
    i.dot = op.startswith("v_dot")
    i.perml = op.startswith("v_permlane")
    i.w = set(); i.r = set()
    if i.valu or i.mfma:
        if op.startswith("v_cmp"):
            i.w = regs(clean[0]);
            for x in clean[1:]: i.r |= regs(x)
            if op.startswith("v_cmpx"): i.w |= regs("exec")
        elif i.perml:
            i.w = regs(clean[0]) | regs(clean[1]); i.r = set(i.w)
        else:
            i.w = regs(clean[0])
            k = 1
            if re.match(r"v_(add|sub|subrev|addc|subb)_co_", op) or op.startswith("v_div_scale"):
                i.w |= regs(clean[1]); k = 2
            for x in clean[k:]: i.r |= regs(x)
            if op.startswith(("v_fmac", "v_dot2c", "v_writelane")) or i.dpp: i.r |= regs(clean[0])
            if op.startswith("v_cndmask") and len(clean) == 3: i.r |= regs("vcc")
        if i.mfma:
            i.srcc = regs(clean[3]); i.srcab = regs(clean[1]) | regs(clean[2])
            i.passes = 8 if "32x32" in op else (2 if "4x4x4" in op else 4)
    elif i.vmem:
        st = "store" in op or ("atomic" in op)
        lds = "_lds_" in op or " lds" in s
        if st or lds:
            for x in clean: i.r |= regs(x)
            if lds: i.r |= regs("m0")
            i.wide_store = st and ("x3" in op or "x4" in op)
            if i.wide_store:
                i.sdata = regs(clean[1]) if op.startswith("global_") else regs(clean[0])
        else:
            i.w = regs(clean[0])
            for x in clean[1:]: i.r |= regs(x)
    elif i.ds:
        if op.startswith(("ds_read", "ds_bpermute", "ds_permute", "ds_swizzle")) or "_rtn" in op:
            i.w = regs(clean[0])
            for x in clean[1:]: i.r |= regs(x)
        else:
            for x in clean: i.r |= regs(x)
    elif i.salu:
        if op.startswith(("s_cmp", "s_cbranch", "s_branch", "s_waitcnt", "s_nop", "s_barrier", "s_sleep", "s_endpgm", "s_setprio", "s_bitcmp")):
            for x in clean: i.r |= regs(x)
        else:
            i.w = regs(clean[0])
            for x in clean[1:]: i.r |= regs(x)
            if "saveexec" in op: i.w |= regs("exec")
    return i
def need(p, c):
    n = 0
    vw = {r for r in p.w if r[0] in "va"}; sw = {r for r in p.w if r[0] == "s"}
    if p.valu:
        if c.valu and c.dpp and (vw & c.r): n = max(n, 2)
        if c.perml and (vw & c.r): n = max(n, 2)
        if c.mfma and (vw & c.r): n = max(n, 2)
        if p.trans and (c.valu or c.mfma) and (vw & c.r): n = max(n, 1)
        if c.op.startswith(("v_readfirstlane", "v_readlane")) and (vw & c.r): n = max(n, 1)
        if sw:
            if c.vmem and (sw & c.r): n = max(n, 5)
            if c.valu and (sw & c.r): n = max(n, 4 if c.op.startswith(("v_readlane", "v_writelane")) else 2)
            if c.salu and (sw & c.r): n = max(n, 1)
            if (sw & regs("exec")):
                if c.valu and c.dpp: n = max(n, 5)
                if c.mfma or c.perml or c.op.startswith(("v_readlane", "v_readfirstlane", "v_writelane")): n = max(n, 4)
        if p.dot and (vw & (c.r | c.w)):
            if not (c.op == p.op and c.dot and not (vw & (regs(c.ops[1]) | regs(c.ops[2])))): n = max(n, 3)
    if p.mfma:
        t = {2: 0, 4: 1, 8: 2}[p.passes]
        if c.mfma:
            if vw & c.srcab: n = max(n, (5, 8, 12)[t])
            if vw & c.srcc:
                if vw == c.srcc and c.passes == p.passes: n = max(n, (2, 0, 0)[t])
                else: n = max(n, (4, 6, 10)[t])
            elif vw & c.w: n = max(n, (5, 8, 12)[t])
        elif (c.valu or c.vmem or c.ds) and (vw & (c.r | c.w)): n = max(n, (5, 8, 12)[t])
        if c.valu and (p.srcc & c.w): n = max(n, (1, 3, 7)[t])
    if p.salu and (sw & regs("m0")) and c.vmem and (regs("m0") & c.r): n = max(n, 1)
    if p.vmem and getattr(p, "wide_store", False) and (p.sdata & c.w): n = max(n, 2)
    return n
def fix(lines):
    out = []; hist = []
    for line in lines:
        c = parse(line)
        if c is None:
            out.append(line); continue
        req = 0; dist = 0
        for p, st in reversed(hist):
            k = need(p, c) - dist
            if k > req: req = k
            dist += st
            if dist > 20: break
        if req > 0:
            nop = "s_nop %d" % (req - 1)
            out.append(nop); hist.append((parse(nop), req))
        out.append(line)
        st = 1
        if c.op == "s_nop": st = int(c.ops[0]) + 1
        hist.append((c, st))
        hist = hist[-24:]
    return out
```

```python
import sys
from asmlib import *
import hazard
STAMPS = "stamps" in sys.argv
NT = "" if "nont" in sys.argv else " nt"
OUT = [x for x in sys.argv[1:] if x.endswith(".s")][0]
NST = 16
O_S1 = 0x1000
O_S2 = O_S1 + 0x40000
O_S4 = O_S2 + 0x40000
O_SM = O_S4 + 0x40000
O_S5U = O_SM + 0x40000
O_S5V = O_S5U + 0x38000
O_S5T = O_S5V + 0x38000
O_S6 = O_S5T + 0x38000
O_S5S = O_S6 + 0x38000
O_S3L = O_S5S + 0x2000
O_S3 = O_S3L + 0x4000
RSTR = 1088
RSZ = 8 * RSTR
L_V = 0
L_RED = 32768
def red(i): return L_RED + i * RSZ
L_Q = L_RED + 9 * RSZ
L_P = L_Q + 8 * 288
L_MISC = L_P + 8 * 288
LDS = L_MISC + 128
LDS = max(LDS, 84 * 1024)
sWG, sJ = 2, 3
sX, sK, sV, sWQ, sWO, sW1, sW2, sC, sWM, sOUT, sDBG, sWS = 4, 6, 8, 10, 12, 16, 18, 20, 22, 24, 26, 28
sx, sy, sT, sFF, sTO, sTW = 30, 31, 32, 33, 34, 35
sP8 = 36
sB = 38
sB2 = 40
st0, st1, st2, st3 = 42, 43, 44, 45
sST = 46
sSTB = 48
sEP = 50
vL, vG, vC = 1, 2, 3
vM = 4
vT = 8
vG32, vG8, vRW, vRR, vPUB = 9, 10, 11, 12, 13
vTW = 14
vA = 16
W1A, WQ, WK, WO, W1B, WW1, WW2 = 32, 40, 56, 72, 88, 104, 120
GD = 136
GL = 152
ACC = 160
TMP = 172
vC1, vC2, vXS, vXR, vXG = 200, 202, 204, 206, 208
vGA, vSB, vCB, vGB, vX1 = 212, 216, 220, 224, 228
VF = 232
NV = 248
a = Asm()
def stamp(i):
    if not STAMPS: return
    l = a.lab("St")
    a("s_cmp_lg_u32 s%d, 0" % sJ); a("s_cbranch_scc1 %s" % l)
    a("s_memrealtime s[%d:%d]" % (sST, sST + 1)); a("s_waitcnt lgkmcnt(0)")
    a("v_mov_b32 v%d, s%d" % (NV, sST)); a("v_mov_b32 v%d, s%d" % (NV + 1, sST + 1)); a("v_mov_b32 v%d, 0" % (NV + 2))
    a("s_mov_b64 exec, 1")
    a("global_store_dwordx2 v%d, v[%d:%d], s[%d:%d] offset:%d" % (NV + 2, NV, NV + 1, sSTB, sSTB + 1, i * 8))
    a("s_mov_b64 exec, -1")
    a.label(l)
def base(dst, src, off_sgpr=None, imm=0):
    if off_sgpr is not None:
        a("s_add_u32 s%d, s%d, s%d" % (dst, src, off_sgpr)); a("s_addc_u32 s%d, s%d, 0" % (dst + 1, src + 1))
        if imm:
            a("s_add_u32 s%d, s%d, %d" % (dst, dst, imm)); a("s_addc_u32 s%d, s%d, 0" % (dst + 1, dst + 1))
    else:
        a("s_add_u32 s%d, s%d, %d" % (dst, src, imm)); a("s_addc_u32 s%d, s%d, 0" % (dst + 1, src + 1))
def wload(dst, ptr, stride, n=4):
    base(sB, ptr, st0)
    a("s_mov_b32 s%d, %d" % (st1, 4 * stride))
    a("v_mul_lo_u32 v%d, v%d, s%d" % (TMP, vG, st1)); a("v_lshl_add_u32 v%d, v%d, 4, v%d" % (TMP, vC, TMP))
    for s in range(n):
        a("global_load_dwordx4 v[%d:%d], v%d, s[%d:%d]%s" % (dst + 4 * s, dst + 4 * s + 3, TMP, sB, sB + 1, NT))
        if s != n - 1:
            a("s_add_u32 s%d, s%d, %d" % (sB, sB, stride)); a("s_addc_u32 s%d, s%d, 0" % (sB + 1, sB + 1))
def allred8(rs, op="v_add_f32"):
    for ctl in ("quad_perm:[1,0,3,2]", "quad_perm:[2,3,0,1]", "row_half_mirror"):
        for r in rs:
            a("%s_dpp v%d, v%d, v%d %s row_mask:0xf bank_mask:0xf" % (op, r, r, r, ctl))
def poll(loads, byte_regs, word_regs=()):
    l0, l1 = a.lab("Poll"), a.lab("Ok")
    a.label(l0)
    for x in loads: a(x)
    a("s_waitcnt vmcnt(0)")
    t = TMP
    a("v_xor_b32 v%d, v%d, v%d" % (t, byte_regs[0], vT))
    for r in byte_regs[1:]:
        a("v_bitop3_b32 v%d, v%d, v%d, v%d bitop3:0xbe" % (t, r, vT, t))
    a("v_and_b32 v%d, 0xff, v%d" % (t, t))
    for r in word_regs:
        a("v_bitop3_b32 v%d, v%d, v%d, v%d bitop3:0xbe" % (t, r, vTW, t))
    a("v_cmp_ne_u32 vcc, 0, v%d" % t)
    a("s_cbranch_vccz %s" % l1)
    a("s_sub_u32 s%d, s%d, 1" % (sTO, sTO))
    a("s_cbranch_scc1 %s_to" % l1)
    a("s_sleep 1")
    a("s_branch %s" % l0)
    a.label(l1 + "_to")
    a("s_mov_b32 s%d, 0" % sTO)
    a.label(l1)
def gemv(vals, W, acc):
    for s, r in enumerate(vals):
        a("v_cvt_pk_bf16_f32 v%d, v%d, v%d" % (TMP + s, r, r))
    for s in range(len(vals)):
        for i in range(4):
            a("v_and_b32 v%d, v%d, v%d" % (vA + 4 * s + i, TMP + s, vM + i))
    for s in range(len(vals)):
        a("v_mfma_f32_16x16x32_bf16 v[%d:%d], v[%d:%d], v[%d:%d], %s" % (acc, acc + 3, vA + 4 * s, vA + 4 * s + 3, W + 4 * s, W + 4 * s + 3, "0" if s == 0 else "v[%d:%d]" % (acc, acc + 3)))
def redwrite(acc, buf):
    a("ds_write_b128 v%d, v[%d:%d] offset:%d" % (vRW, acc, acc + 3, 0) if False else "v_add_u32 v%d, %d, v%d" % (TMP + 8, red(buf), vRW))
    a("ds_write_b128 v%d, v[%d:%d]" % (TMP + 8, acc, acc + 3))
def redread(dst, buf):
    a("v_add_u32 v%d, %d, v%d" % (TMP + 9, red(buf), vRR))
    a("ds_read_b128 v[%d:%d], v%d" % (dst, dst + 3, TMP + 9))
def tag(rs):
    for r in rs: a("v_bfi_b32 v%d, s%d, v%d, v%d" % (r, sFF, vT, r))
def publish(r, sb, voff=None):
    a("s_mov_b64 exec, s[%d:%d]" % (sP8, sP8 + 1))
    a("global_store_dwordx4 v%d, v[%d:%d], s[%d:%d] sc1" % (vPUB if voff is None else voff, r, r + 3, sb, sb + 1))
    a("s_mov_b64 exec, -1")
def bar():
    a("s_waitcnt lgkmcnt(0)"); a("s_barrier")
def R(r, n=4): return list(range(r, r + n))
def unpack4(dst, src):
    a("v_lshlrev_b32 v%d, 16, v%d" % (dst, src)); a("v_and_b32 v%d, 0xffff0000, v%d" % (dst + 1, src))
    a("v_lshlrev_b32 v%d, 16, v%d" % (dst + 2, src + 1)); a("v_and_b32 v%d, 0xffff0000, v%d" % (dst + 3, src + 1))
def silu(r, t):
    a("v_mul_f32 v%d, 0xbfb8aa3b, v%d" % (t, r)); a("v_exp_f32 v%d, v%d" % (t, t)); a("v_add_f32 v%d, 1.0, v%d" % (t, t))
    a("v_rcp_f32 v%d, v%d" % (t, t)); a("v_mul_f32 v%d, v%d, v%d" % (r, r, t))
def sum4(d):
    for h in (0, 2):
        a("v_pk_add_f32 v[%d:%d], v[%d:%d], v[%d:%d]" % (d + h, d + h + 1, d + h, d + h + 1, d + 4 + h, d + 5 + h))
        a("v_pk_add_f32 v[%d:%d], v[%d:%d], v[%d:%d]" % (d + 8 + h, d + 9 + h, d + 8 + h, d + 9 + h, d + 12 + h, d + 13 + h))
    for h in (0, 2):
        a("v_pk_add_f32 v[%d:%d], v[%d:%d], v[%d:%d]" % (d + h, d + h + 1, d + h, d + h + 1, d + 8 + h, d + 9 + h))

a("s_cmp_ge_u32 s2, 256"); a("s_cbranch_scc1 L_end")
a("s_load_dwordx16 s[4:19], s[0:1], 0")
a("s_load_dwordx8 s[20:27], s[0:1], 64")
a("s_load_dwordx2 s[28:29], s[0:1], 96")
a("v_lshrrev_b32 v2, 6, v0"); a("v_and_b32 v1, 63, v0"); a("v_readfirstlane_b32 s%d, v2" % sJ)
a("v_lshrrev_b32 v%d, 4, v%d" % (vG, vL)); a("v_and_b32 v%d, 15, v%d" % (vC, vL))
a("s_and_b32 s%d, s2, 7" % sx); a("s_lshr_b32 s%d, s2, 3" % sy)
a("s_mov_b32 s%d, 0xff" % sFF); a("s_mov_b32 s%d, 200000" % sTO)
a("s_mov_b32 s%d, 0x01010101" % sP8); a("s_mov_b32 s%d, 0x01010101" % (sP8 + 1))
vb, vjm = TMP + 20, TMP + 21
a("v_bfe_u32 v%d, v%d, 3, 1" % (vb, vL)); a("v_and_b32 v%d, 7, v%d" % (vjm, vL))
a("s_waitcnt lgkmcnt(0)")
a("s_load_dword s%d, s[%d:%d], 0" % (sEP, sWS, sWS + 1))
if STAMPS:
    a("s_mul_i32 s%d, s2, %d" % (st0, NST * 8)); base(sSTB, sWS, st0, 128 << 20)
stamp(0)
a("s_lshl_b32 s%d, s%d, 6" % (st0, sy)); a("s_lshl_b32 s%d, s%d, 3" % (st1, sJ)); a("s_add_u32 s%d, s%d, s%d" % (st0, st0, st1))
a("v_lshlrev_b32 v%d, 11, v%d" % (TMP, vb)); a("v_lshl_add_u32 v%d, v%d, 1, v%d" % (TMP + 1, vG, TMP)); a("v_add_u32 v%d, s%d, v%d" % (TMP + 1, st0, TMP + 1))
a("global_load_ushort v%d, v%d, s[%d:%d]" % (vC1, TMP + 1, sC, sC + 1))
a("v_lshrrev_b32 v%d, 5, v%d" % (TMP + 2, vL)); a("v_lshlrev_b32 v%d, 11, v%d" % (TMP + 2, TMP + 2)); a("v_and_b32 v%d, 31, v%d" % (TMP + 3, vL))
a("v_lshl_add_u32 v%d, v%d, 3, v%d" % (TMP + 2, TMP + 3, TMP + 2)); a("s_lshl_b32 s%d, s%d, 8" % (st0, sJ)); a("v_add_u32 v%d, s%d, v%d" % (TMP + 2, st0, TMP + 2))
a("global_load_dwordx2 v[%d:%d], v%d, s[%d:%d]" % (vXS, vXS + 1, TMP + 2, sX, sX + 1))
a("s_lshr_b32 s%d, s%d, 2" % (st0, sJ)); a("s_lshl_b32 s%d, s%d, 11" % (st0, st0)); a("s_and_b32 s%d, s%d, 3" % (st1, sJ)); a("s_lshl_b32 s%d, s%d, 6" % (st1, st1))
a("s_add_u32 s%d, s%d, s%d" % (st0, st0, st1)); a("s_lshl_b32 s%d, s%d, 8" % (st1, sx)); a("s_add_u32 s%d, s%d, s%d" % (st0, st0, st1))
a("v_and_b32 v%d, 0x38, v%d" % (TMP + 3, vL)); a("v_add_u32 v%d, s%d, v%d" % (TMP + 3, st0, TMP + 3))
a("global_load_dwordx2 v[%d:%d], v%d, s[%d:%d]" % (vXR, vXR + 1, TMP + 3, sX, sX + 1))
a("s_lshl_b32 s%d, s%d, 3" % (st0, sy)); a("s_add_u32 s%d, s%d, s%d" % (st0, st0, sJ)); a("s_mul_i32 s%d, s%d, %d" % (st0, st0, 4 * 12288))
a("s_lshl_b32 s%d, s%d, 8" % (st1, sx)); a("s_add_u32 s%d, s%d, s%d" % (st0, st0, st1))
base(sB, sWM, st0)
a("v_mul_u32_u24 v%d, 12288, v%d" % (TMP + 4, vG)); a("v_lshl_add_u32 v%d, v%d, 4, v%d" % (TMP + 4, vC, TMP + 4))
a("global_load_dwordx4 v[%d:%d], v%d, s[%d:%d]%s" % (W1A, W1A + 3, TMP + 4, sB, sB + 1, NT))
a("global_load_dwordx4 v[%d:%d], v%d, s[%d:%d] offset:2048%s" % (W1A + 4, W1A + 7, TMP + 4, sB, sB + 1, NT))
a("v_lshl_add_u32 v%d, v%d, 3, v%d" % (TMP + 1, vG, TMP))
a("s_lshl_b32 s%d, s%d, 5" % (st1, sJ)); a("v_add_u32 v%d, s%d, v%d" % (TMP + 1, st1, TMP + 1))
a("s_lshr_b32 s%d, s2, 5" % st0); a("s_lshl_b32 s%d, s%d, 8" % (st0, st0)); a("v_add_u32 v%d, s%d, v%d" % (TMP + 2, st0, TMP + 1))
a("global_load_dwordx2 v[%d:%d], v%d, s[%d:%d]" % (vC2, vC2 + 1, TMP + 2, sC, sC + 1))
a("s_lshl_b32 s%d, s%d, 8" % (st0, sx)); a("v_add_u32 v%d, s%d, v%d" % (TMP + 2, st0, TMP + 1))
a("global_load_dwordx2 v[%d:%d], v%d, s[%d:%d]" % (vXG, vXG + 1, TMP + 2, sX, sX + 1))
NL_EARLY = 7
a("s_lshl_b32 s%d, s%d, 3" % (st0, sx)); a("s_add_u32 s%d, s%d, s%d" % (st0, st0, sJ)); a("s_lshl_b32 s%d, s%d, 17" % (st0, st0))
a("s_lshl_b32 s%d, s%d, 8" % (st1, sy)); a("s_add_u32 s%d, s%d, s%d" % (st0, st0, st1))
wload(WQ, sWQ, 8192)
a("s_lshl_b32 s%d, s%d, 23" % (st0, sx)); a("s_lshl_b32 s%d, s%d, 15" % (st1, sy)); a("s_add_u32 s%d, s%d, s%d" % (st0, st0, st1))
a("s_lshl_b32 s%d, s%d, 12" % (st1, sJ)); a("s_add_u32 s%d, s%d, s%d" % (st0, st0, st1)); a("s_add_u32 s%d, s%d, %d" % (st0, st0, 28672 * 256))
base(sB, sK, st0); base(sB2, sV, st0)
a("v_lshlrev_b32 v%d, 8, v%d" % (TMP, vC)); a("v_lshl_add_u32 v%d, v%d, 4, v%d" % (TMP, vG, TMP))
for s in range(4):
    a("global_load_dwordx4 v[%d:%d], v%d, s[%d:%d] offset:%d%s" % (WK + 4 * s, WK + 4 * s + 3, TMP, sB, sB + 1, s * 64, NT))
a("v_lshlrev_b32 v%d, 1, v%d" % (TMP, vG)); a("v_xor_b32 v%d, v%d, v%d" % (TMP, vC, TMP)); a("v_lshlrev_b32 v%d, 4, v%d" % (TMP, TMP))
a("v_lshl_add_u32 v%d, v%d, 8, v%d" % (TMP, vG, TMP)); a("v_xor_b32 v%d, 0x80, v%d" % (TMP + 1, TMP))
a("s_lshl_b32 s%d, s%d, 12" % (st1, sJ)); a("s_add_u32 m0, s%d, %d" % (st1, L_V))
for i in range(4):
    a("global_load_lds_dwordx4 v%d, s[%d:%d] offset:%d%s" % (TMP + (i >> 1), sB2, sB2 + 1, i * 1024, NT))
sHH, sCB4 = 52, 53
a("s_and_b32 s%d, s%d, 3" % (st0, sy)); a("s_lshl_b32 s%d, s%d, 2" % (sHH, sx)); a("s_add_u32 s%d, s%d, s%d" % (sHH, sHH, st0)); a("s_lshr_b32 s%d, s2, 5" % sCB4)
a("s_lshl_b32 s%d, s%d, 3" % (st0, sHH)); a("s_add_u32 s%d, s%d, s%d" % (st0, st0, sJ)); a("s_lshl_b32 s%d, s%d, 15" % (st0, st0))
a("s_lshl_b32 s%d, s%d, 8" % (st1, sCB4)); a("s_add_u32 s%d, s%d, s%d" % (st0, st0, st1))
wload(WO, sWO, 2048)
a("s_lshl_b32 s%d, s%d, 3" % (st0, sCB4)); a("s_add_u32 s%d, s%d, s%d" % (st0, st0, sJ)); a("s_mul_i32 s%d, s%d, %d" % (st0, st0, 16 * 12288))
a("s_and_b32 s%d, s%d, 3" % (st1, sy)); a("s_lshl_b32 s%d, s%d, 11" % (st1, st1)); a("s_add_u32 s%d, s%d, s%d" % (st0, st0, st1))
a("s_lshl_b32 s%d, s%d, 8" % (st1, sx)); a("s_add_u32 s%d, s%d, s%d" % (st0, st0, st1)); a("s_add_u32 s%d, s%d, 4096" % (st0, st0))
wload(W1B, sWM, 12288)
a("s_cmp_ge_u32 s%d, 28" % sy); a("s_cbranch_scc1 L_noffn")
a("s_lshl_b32 s%d, s%d, 3" % (st0, sx)); a("s_add_u32 s%d, s%d, s%d" % (st0, st0, sJ)); a("s_mul_i32 s%d, s%d, %d" % (st0, st0, 16 * 7168))
a("s_lshl_b32 s%d, s%d, 8" % (st1, sy)); a("s_add_u32 s%d, s%d, s%d" % (st0, st0, st1))
wload(WW1, sW1, 7168)
a("s_lshl_b32 s%d, s%d, 3" % (st0, sy)); a("s_add_u32 s%d, s%d, s%d" % (st0, st0, sJ)); a("s_lshl_b32 s%d, s%d, 15" % (st0, st0))
a("s_lshl_b32 s%d, s%d, 8" % (st1, sx)); a("s_add_u32 s%d, s%d, s%d" % (st0, st0, st1))
wload(WW2, sW2, 2048)
a.label("L_noffn")
a("v_and_b32 v%d, 1, v%d" % (TMP, vjm)); a("v_lshlrev_b32 v%d, 4, v%d" % (TMP, TMP)); a("v_mov_b32 v%d, 0xffff" % (TMP + 1)); a("v_lshlrev_b32 v%d, v%d, v%d" % (TMP + 1, TMP, TMP + 1))
a("v_lshrrev_b32 v%d, 1, v%d" % (TMP, vjm))
for i in range(4):
    a("v_cmp_eq_u32 vcc, %d, v%d" % (i, TMP)); a("v_cndmask_b32 v%d, 0, v%d, vcc" % (vM + i, TMP + 1))
a("v_lshlrev_b32 v%d, 9, v%d" % (TMP, vb)); a("v_lshl_add_u32 v%d, v%d, 4, v%d" % (TMP, vG, TMP)); a("s_lshl_b32 s%d, s%d, 6" % (st0, sJ)); a("v_add_u32 v%d, s%d, v%d" % (TMP, st0, TMP))
a("v_lshl_add_u32 v%d, v%d, 10, v%d" % (vG8, vjm, TMP)); a("v_lshl_add_u32 v%d, v%d, 12, v%d" % (vG32, vjm, TMP))
a("v_lshrrev_b32 v%d, 5, v%d" % (TMP, vL)); a("v_lshlrev_b32 v%d, 9, v%d" % (TMP, TMP)); a("v_lshl_add_u32 v%d, v%d, 5, v%d" % (TMP, vC, TMP))
a("v_and_b32 v%d, 16, v%d" % (TMP + 1, vL)); a("s_mul_i32 s%d, s%d, %d" % (st0, sJ, RSTR)); a("v_add3_u32 v%d, v%d, v%d, s%d" % (vRW, TMP, TMP + 1, st0))
a("v_lshrrev_b32 v%d, 3, v%d" % (TMP, vL)); a("s_lshl_b32 s%d, s%d, 7" % (st0, sJ)); a("v_lshlrev_b32 v%d, 4, v%d" % (TMP, TMP)); a("v_add_u32 v%d, s%d, v%d" % (vPUB, st0, TMP))
a("v_mul_u32_u24 v%d, %d, v%d" % (TMP, RSTR, vjm)); a("v_add_u32 v%d, v%d, v%d" % (vRR, TMP, vPUB))
vB, vJM = 15, 0
a("v_mov_b32 v%d, v%d" % (vB, vb)); a("v_mov_b32 v%d, v%d" % (vJM, vjm))
a("v_mov_b32 v%d, 0xff800000" % (TMP + 1)); a("v_cmp_gt_u32 vcc, 8, v%d" % vL); a("v_cndmask_b32 v%d, 0, v%d, vcc" % (TMP + 1, TMP + 1))
a("v_and_b32 v%d, 31, v%d" % (TMP, vL)); a("v_lshlrev_b32 v%d, 2, v%d" % (TMP, TMP)); a("v_add_u32 v%d, %d, v%d" % (TMP, L_MISC, TMP))
a("s_mov_b32 exec_hi, 0")
a("ds_write_b32 v%d, v%d" % (TMP, TMP + 1))
a("s_mov_b64 exec, -1")
a("s_waitcnt lgkmcnt(0)")
a("s_add_u32 s%d, s%d, 1" % (sT, sEP)); a("s_and_b32 s%d, s%d, 0xff" % (sT, sT)); a("s_mul_i32 s%d, s%d, 0x01010101" % (sTW, sT))
a("v_mov_b32 v%d, s%d" % (vT, sT)); a("v_mov_b32 v%d, s%d" % (vTW, sTW))
a("s_barrier")
a("s_waitcnt vmcnt(0)")
stamp(1)
a("s_mov_b32 s%d, 0x3f803f80" % st0)
a("v_dot2_f32_bf16 v%d, v%d, s%d, 0" % (TMP + 10, vXS, st0)); a("v_dot2_f32_bf16 v%d, v%d, v%d, 0" % (TMP + 11, vXS, vXS))
a("v_dot2_f32_bf16 v%d, v%d, s%d, v%d" % (TMP + 10, vXS + 1, st0, TMP + 10)); a("v_dot2_f32_bf16 v%d, v%d, v%d, v%d" % (TMP + 11, vXS + 1, vXS + 1, TMP + 11))
allred8([TMP + 10, TMP + 11])
for r in (TMP + 10, TMP + 11): a("v_add_f32_dpp v%d, v%d, v%d row_mirror row_mask:0xf bank_mask:0xf" % (r, r, r))
a("v_lshrrev_b32 v%d, 5, v%d" % (TMP + 12, vL)); a("v_lshlrev_b32 v%d, 3, v%d" % (TMP + 12, TMP + 12)); a("v_add_u32 v%d, %d, v%d" % (TMP + 12, L_MISC + 64, TMP + 12))
a("s_mov_b32 exec_lo, 0x00010001"); a("s_mov_b32 exec_hi, 0x00010001")
a("ds_add_f32 v%d, v%d" % (TMP + 12, TMP + 10)); a("ds_add_f32 v%d, v%d offset:4" % (TMP + 12, TMP + 11))
a("s_mov_b64 exec, -1")
a("v_lshlrev_b32 v%d, 16, v%d" % (vC1, vC1)); silu(vC1, TMP + 13)
a("v_cvt_pk_bf16_f32 v%d, v%d, v%d" % (TMP, vC1, vC1))
for i in range(4): a("v_and_b32 v%d, v%d, v%d" % (vA + i, TMP, vM + i))
a("v_mfma_f32_16x16x32_bf16 v[%d:%d], v[%d:%d], v[%d:%d], 0" % (ACC, ACC + 3, vA, vA + 3, W1A, W1A + 3))
a("v_mfma_f32_16x16x32_bf16 v[%d:%d], v[%d:%d], v[%d:%d], 0" % (ACC + 4, ACC + 7, vA, vA + 3, W1A + 4, W1A + 7))
redwrite(ACC, 0); redwrite(ACC + 4, 1)
bar()
redread(GD, 0); redread(GD + 4, 1)
a("s_lshr_b32 s%d, s%d, 2" % (st0, sJ)); a("s_lshl_b32 s%d, s%d, 3" % (st0, st0)); a("s_add_u32 s%d, s%d, %d" % (st0, st0, L_MISC + 64)); a("v_mov_b32 v%d, s%d" % (TMP, st0))
a("ds_read_b64 v[%d:%d], v%d" % (TMP + 2, TMP + 3, TMP))
unpack4(GD + 8, vXR)
a("s_waitcnt lgkmcnt(0)")
def lnstats(s, q, t):
    a("v_mul_f32 v%d, 0x3a800000, v%d" % (s, s)); a("v_mul_f32 v%d, v%d, v%d" % (t, s, s))
    a("v_mov_b32 v%d, 0x3a800000" % (t + 1)); a("v_fma_f32 v%d, v%d, v%d, -v%d" % (q, q, t + 1, t))
    a("v_max_f32 v%d, 0, v%d" % (q, q))
    a("v_add_f32 v%d, 0x3727c5ac, v%d" % (q, q)); a("v_rsq_f32 v%d, v%d" % (q, q))
lnstats(TMP + 2, TMP + 3, TMP + 4)
for i in range(4):
    a("v_sub_f32 v%d, v%d, v%d" % (GD + 8 + i, GD + 8 + i, TMP + 2)); a("v_mul_f32 v%d, v%d, v%d" % (GD + 8 + i, GD + 8 + i, TMP + 3))
for i in range(4): a("v_fma_f32 v%d, v%d, v%d, v%d" % (GD + i, GD + 8 + i, GD + 4 + i, GD + i))
allred8(R(GD))
a("s_cmp_eq_u32 s%d, 0" % sy); a("s_cselect_b32 s%d, 1.0, 0" % st0)
for i in range(4): a("v_fma_f32 v%d, v%d, s%d, v%d" % (GD + i, GD + 8 + i, st0, GD + i))
tag(R(GD))
a("s_lshl_b32 s%d, s%d, 15" % (st0, sx)); a("s_lshl_b32 s%d, s%d, 10" % (st1, sy)); a("s_add_u32 s%d, s%d, s%d" % (st1, st0, st1))
base(sB, sWS, st1, O_S1); publish(GD, sB)
stamp(2)
unpack4(GD + 4, vC2)
for i in range(4): silu(GD + 4 + i, TMP + 13 + i)
gemv(R(GD + 4), W1B, ACC)
redwrite(ACC, 2); bar(); redread(GD, 2); a("s_waitcnt lgkmcnt(0)")
allred8(R(GD)); tag(R(GD))
a("s_and_b32 s%d, s%d, 3" % (st1, sy)); a("s_lshl_b32 s%d, s%d, 3" % (st1, st1)); a("s_add_u32 s%d, s%d, s%d" % (st1, st1, sx)); a("s_lshl_b32 s%d, s%d, 3" % (st1, st1))
a("s_add_u32 s%d, s%d, s%d" % (st1, st1, sCB4)); a("s_lshl_b32 s%d, s%d, 10" % (st1, st1))
base(sB, sWS, st1, O_SM); publish(GD, sB)
a("s_lshl_b32 s%d, s%d, 15" % (st0, sx)); base(sB, sWS, st0, O_S1)
poll(["global_load_dwordx4 v[%d:%d], v%d, s[%d:%d] offset:%d sc1" % (GD + 4 * i, GD + 4 * i + 3, vG32, sB, sB + 1, i * 1024) for i in range(4)], R(GD, 16))
stamp(3)
sum4(GD); allred8(R(GD))
gemv(R(GD), WQ, ACC)
redwrite(ACC, 3); bar(); redread(GD, 3); a("s_waitcnt lgkmcnt(0)")
allred8(R(GD)); tag(R(GD))
a("s_lshr_b32 s%d, s%d, 2" % (st0, sJ)); a("s_mul_i32 s%d, s%d, %d" % (st0, st0, 131072 - 512)); a("s_lshl_b32 s%d, s%d, 12" % (st1, sy)); a("s_add_u32 s%d, s%d, s%d" % (st0, st0, st1))
a("s_lshl_b32 s%d, s%d, 9" % (st1, sx)); a("s_add_u32 s%d, s%d, s%d" % (st0, st0, st1))
base(sB, sWS, st0, O_S2); publish(GD, sB)
stamp(4)
a("s_lshl_b32 s%d, s%d, 3" % (st0, sx)); a("s_add_u32 s%d, s%d, s%d" % (st0, st0, sJ)); a("s_lshl_b32 s%d, s%d, 12" % (st0, st0))
base(sB, sWS, st0, O_S2)
a("v_lshlrev_b32 v%d, 4, v%d" % (TMP + 10, vL))
poll(["global_load_dwordx4 v[%d:%d], v%d, s[%d:%d] offset:%d sc1" % (GD + 4 * i, GD + 4 * i + 3, TMP + 10, sB, sB + 1, i * 1024) for i in range(4)], R(GD, 16))
stamp(5)
sum4(GD)
a("v_permlane32_swap_b32 v%d, v%d" % (GD, GD + 2)); a("v_permlane32_swap_b32 v%d, v%d" % (GD + 1, GD + 3))
a("v_add_f32 v%d, v%d, v%d" % (GD, GD, GD + 2)); a("v_add_f32 v%d, v%d, v%d" % (GD + 1, GD + 1, GD + 3))
a("v_cvt_pk_bf16_f32 v%d, v%d, v%d" % (GD, GD, GD + 1))
a("v_and_b32 v%d, 31, v%d" % (TMP, vL)); a("v_lshlrev_b32 v%d, 3, v%d" % (TMP, TMP)); a("v_lshrrev_b32 v%d, 5, v%d" % (TMP + 1, vL)); a("v_lshl_add_u32 v%d, v%d, 2, v%d" % (TMP, TMP + 1, TMP))
a("s_mul_i32 s%d, s%d, 288" % (st0, sJ)); a("s_add_u32 s%d, s%d, %d" % (st0, st0, L_Q)); a("v_add_u32 v%d, s%d, v%d" % (TMP, st0, TMP))
a("ds_write_b32 v%d, v%d" % (TMP, GD))
bar()
vQA = TMP + 12
a("v_mul_u32_u24 v%d, 288, v%d" % (vQA, vJM)); a("v_lshl_add_u32 v%d, v%d, 4, v%d" % (vQA, vG, vQA)); a("v_add_u32 v%d, %d, v%d" % (vQA, L_Q, vQA))
for s in range(4): a("ds_read_b128 v[%d:%d], v%d offset:%d" % (vA + 4 * s, vA + 4 * s + 3, vQA, s * 64))
a("v_bfe_u32 v%d, v%d, 2, 2" % (TMP, vL))
a("v_and_b32 v%d, 1, v%d" % (TMP + 1, vG)); a("v_lshl_add_u32 v%d, v%d, 2, v%d" % (TMP + 1, TMP + 1, TMP))
a("v_xor_b32 v%d, s%d, v%d" % (TMP + 1, sJ, TMP + 1)); a("v_lshlrev_b32 v%d, 5, v%d" % (TMP + 1, TMP + 1))
a("v_lshl_add_u32 v%d, v%d, 3, v%d" % (TMP, vG, TMP)); a("v_lshl_add_u32 v%d, v%d, 8, v%d" % (TMP + 1, TMP, TMP + 1))
a("v_and_b32 v%d, 3, v%d" % (TMP, vL)); a("v_lshl_add_u32 v%d, v%d, 3, v%d" % (TMP + 1, TMP, TMP + 1))
for s in range(4):
    for hh in range(2):
        a("ds_read_b64_tr_b16 v[%d:%d], v%d offset:%d" % (VF + 4 * s + 2 * hh, VF + 4 * s + 2 * hh + 1, TMP + 1, L_V + s * 8192 + hh * 1024))
a("s_waitcnt lgkmcnt(8)")
for s in range(4):
    a("v_mfma_f32_16x16x32_bf16 v[%d:%d], v[%d:%d], v[%d:%d], %s" % (ACC, ACC + 3, WK + 4 * s, WK + 4 * s + 3, vA + 4 * s, vA + 4 * s + 3, "0" if s == 0 else "v[%d:%d]" % (ACC, ACC + 3)))
import math, struct
SC = struct.unpack("<I", struct.pack("<f", 128 ** -0.5 * math.log2(math.e)))[0]
for i in range(4): a("v_mul_f32 v%d, 0x%08x, v%d" % (ACC + i, SC, ACC + i))
a("v_max3_f32 v%d, v%d, v%d, v%d" % (TMP, ACC, ACC + 1, ACC + 2)); a("v_max_f32 v%d, v%d, v%d" % (TMP, TMP, ACC + 3))
vHA = TMP + 13
a("v_lshlrev_b32 v%d, 2, v%d" % (vHA, vJM)); a("v_add_u32 v%d, %d, v%d" % (vHA, L_MISC, vHA))
a("s_mov_b32 exec_lo, 0x00ff00ff"); a("s_mov_b32 exec_hi, 0x00ff00ff")
a("ds_max_f32 v%d, v%d" % (vHA, TMP))
a("s_mov_b64 exec, -1")
bar()
vMX = TMP + 14
a("ds_read_b32 v%d, v%d" % (vMX, vHA)); a("s_waitcnt lgkmcnt(0)")
for i in range(4): a("v_sub_f32 v%d, v%d, v%d" % (ACC + i, ACC + i, vMX))
for i in range(4): a("v_exp_f32 v%d, v%d" % (ACC + i, ACC + i))
a("v_cvt_pk_bf16_f32 v%d, v%d, v%d" % (TMP + 2, ACC, ACC + 1)); a("v_cvt_pk_bf16_f32 v%d, v%d, v%d" % (TMP + 3, ACC + 2, ACC + 3))
a("v_add_f32 v%d, v%d, v%d" % (TMP, ACC, ACC + 1)); a("v_add_f32 v%d, v%d, v%d" % (TMP + 1, ACC + 2, ACC + 3)); a("v_add_f32 v%d, v%d, v%d" % (TMP, TMP, TMP + 1))
a("v_mul_u32_u24 v%d, 288, v%d" % (TMP + 4, vJM)); a("v_lshl_add_u32 v%d, v%d, 3, v%d" % (TMP + 4, vG, TMP + 4)); a("s_lshl_b32 s%d, s%d, 5" % (st0, sJ)); a("s_add_u32 s%d, s%d, %d" % (st0, st0, L_P))
a("v_add_u32 v%d, s%d, v%d" % (TMP + 4, st0, TMP + 4))
a("s_mov_b32 exec_lo, 0x00ff00ff"); a("s_mov_b32 exec_hi, 0x00ff00ff")
a("ds_write_b64 v%d, v[%d:%d]" % (TMP + 4, TMP + 2, TMP + 3)); a("ds_add_f32 v%d, v%d offset:32" % (vHA, TMP))
a("s_mov_b64 exec, -1")
bar()
for s in range(4): a("ds_read_b128 v[%d:%d], v%d offset:%d" % (vA + 4 * s, vA + 4 * s + 3, vQA, L_P - L_Q + s * 64))
a("ds_read_b32 v%d, v%d offset:32" % (TMP, vHA))
a("s_waitcnt lgkmcnt(0)")
for s in range(4):
    a("v_mfma_f32_16x16x32_bf16 v[%d:%d], v[%d:%d], v[%d:%d], %s" % (ACC, ACC + 3, VF + 4 * s, VF + 4 * s + 3, vA + 4 * s, vA + 4 * s + 3, "0" if s == 0 else "v[%d:%d]" % (ACC, ACC + 3)))
a("v_rcp_f32 v%d, v%d" % (TMP + 1, TMP)); a("v_log_f32 v%d, v%d" % (TMP + 2, TMP)); a("v_add_f32 v%d, v%d, v%d" % (TMP + 2, TMP + 2, vMX)); a("v_mov_b32 v%d, v%d" % (TMP + 3, vTW))
for i in range(4): a("v_mul_f32 v%d, v%d, v%d" % (ACC + i, ACC + i, TMP + 1))
tag(R(ACC))
a("s_lshl_b32 s%d, s%d, 17" % (st0, sx)); a("s_lshl_b32 s%d, s%d, 11" % (st1, sJ)); a("s_add_u32 s%d, s%d, s%d" % (st0, st0, st1)); a("s_lshl_b32 s%d, s%d, 6" % (st1, sy)); a("s_add_u32 s%d, s%d, s%d" % (st0, st0, st1))
base(sB, sWS, st0, O_S3)
a("v_lshlrev_b32 v%d, 14, v%d" % (TMP + 4, vJM)); a("v_lshl_add_u32 v%d, v%d, 4, v%d" % (TMP + 4, vG, TMP + 4))
a("s_lshl_b32 s%d, s%d, 11" % (st0, sx)); a("s_lshl_b32 s%d, s%d, 3" % (st1, sy)); a("s_add_u32 s%d, s%d, s%d" % (st0, st0, st1))
base(sB2, sWS, st0, O_S3L)
a("v_lshlrev_b32 v%d, 8, v%d" % (TMP + 5, vJM))
a("s_mov_b32 exec_lo, 0x00ff00ff"); a("s_mov_b32 exec_hi, 0x00ff00ff")
a("global_store_dwordx4 v%d, v[%d:%d], s[%d:%d] sc1" % (TMP + 4, ACC, ACC + 3, sB, sB + 1))
a("s_lshl_b64 exec, 1, s%d" % sJ)
a("global_store_dwordx2 v%d, v[%d:%d], s[%d:%d] sc1" % (TMP + 5, TMP + 2, TMP + 3, sB2, sB2 + 1))
a("s_mov_b64 exec, -1")
stamp(6)
a("s_lshl_b32 s%d, s%d, 13" % (st0, sx)); base(sB, sWS, st0, O_SM)
a("v_add_u32 v%d, 0x10000, v%d" % (TMP + 10, vG8)); a("v_add_u32 v%d, 0x20000, v%d" % (TMP + 11, vG8)); a("v_add_u32 v%d, 0x30000, v%d" % (TMP + 12, vG8))
poll(["global_load_dwordx4 v[%d:%d], v%d, s[%d:%d] sc1" % (vGA + 4 * m, vGA + 4 * m + 3, [vG8, TMP + 10, TMP + 11, TMP + 12][m], sB, sB + 1) for m in range(4)], R(vGA, 16))
allred8(R(vGA, 16))
for i in range(4): a("v_add_f32 v%d, 1.0, v%d" % (vCB + i, vCB + i))
a("s_cmp_ge_u32 s%d, 28" % sy); a("s_cbranch_scc1 L_novt")
gemv(R(vCB), WW1, ACC + 4); gemv(R(vSB), WW1, ACC + 8)
redwrite(ACC + 4, 4); redwrite(ACC + 8, 5); bar(); redread(GD, 4); redread(GD + 4, 5); a("s_waitcnt lgkmcnt(0)")
allred8(R(GD, 8)); tag(R(GD, 8))
a("s_lshl_b32 s%d, s2, 10" % st0)
base(sB, sWS, st0, O_S5V); publish(GD, sB); base(sB, sWS, st0, O_S5T); publish(GD + 4, sB)
a.label("L_novt")
a("s_lshl_b32 s%d, s%d, 3" % (st0, sHH)); a("s_add_u32 s%d, s%d, s%d" % (st0, st0, sJ)); a("s_lshl_b32 s%d, s%d, 11" % (st0, st0)); base(sB, sWS, st0, O_S3)
a("s_lshl_b32 s%d, s%d, 8" % (st0, sHH)); base(sB2, sWS, st0, O_S3L)
a("v_lshlrev_b32 v%d, 19, v%d" % (TMP + 10, vB)); a("v_lshl_add_u32 v%d, v%d, 8, v%d" % (TMP + 10, vJM, TMP + 10)); a("v_lshl_add_u32 v%d, v%d, 4, v%d" % (TMP + 10, vG, TMP + 10))
a("v_lshlrev_b32 v%d, 13, v%d" % (TMP + 11, vB)); a("v_lshl_add_u32 v%d, v%d, 5, v%d" % (TMP + 11, vJM, TMP + 11))
poll(["global_load_dwordx4 v[%d:%d], v%d, s[%d:%d] offset:%d sc1" % (GL + 4 * i, GL + 4 * i + 3, TMP + 11, sB2, sB2 + 1, i * 16) for i in range(2)] +
     ["global_load_dwordx4 v[%d:%d], v%d, s[%d:%d] offset:%d sc1" % (GD + 4 * i, GD + 4 * i + 3, TMP + 10, sB, sB + 1, i * 64) for i in range(4)],
     R(GD, 16), [GL + 1, GL + 3, GL + 5, GL + 7])
stamp(7)
a("v_max3_f32 v%d, v%d, v%d, v%d" % (TMP, GL, GL + 2, GL + 4)); a("v_max_f32 v%d, v%d, v%d" % (TMP, TMP, GL + 6))
allred8([TMP], "v_max_f32")
for i in range(4): a("v_sub_f32 v%d, v%d, v%d" % (GL + 2 * i, GL + 2 * i, TMP))
for i in range(4): a("v_exp_f32 v%d, v%d" % (GL + 2 * i, GL + 2 * i))
a("v_add_f32 v%d, v%d, v%d" % (TMP + 4, GL, GL + 2)); a("v_add_f32 v%d, v%d, v%d" % (TMP + 5, GL + 4, GL + 6)); a("v_add_f32 v%d, v%d, v%d" % (TMP + 4, TMP + 4, TMP + 5))
for s in range(4): a("v_mul_f32 v%d, v%d, v%d" % (GD + s, GD + s, GL))
for i in range(1, 4):
    for s in range(4): a("v_fmac_f32 v%d, v%d, v%d" % (GD + s, GD + 4 * i + s, GL + 2 * i))
allred8(R(GD) + [TMP + 4])
a("v_rcp_f32 v%d, v%d" % (TMP + 4, TMP + 4))
for s in range(4): a("v_mul_f32 v%d, v%d, v%d" % (GD + s, GD + s, TMP + 4))
gemv(R(GD), WO, ACC)
redwrite(ACC, 6); bar(); redread(GD, 6); a("s_waitcnt lgkmcnt(0)")
allred8(R(GD)); tag(R(GD))
a("s_lshl_b32 s%d, s%d, 15" % (st0, sCB4)); a("s_lshl_b32 s%d, s%d, 10" % (st1, sHH)); a("s_add_u32 s%d, s%d, s%d" % (st0, st0, st1))
base(sB, sWS, st0, O_S4); publish(GD, sB)
stamp(8)
a("s_lshl_b32 s%d, s%d, 15" % (st0, sx)); base(sB, sWS, st0, O_S4)
poll(["global_load_dwordx4 v[%d:%d], v%d, s[%d:%d] offset:%d sc1" % (GD + 4 * i, GD + 4 * i + 3, vG32, sB, sB + 1, i * 1024) for i in range(4)], R(GD, 16))
stamp(9)
sum4(GD); allred8(R(GD))
unpack4(vX1, vXG)
for i in range(4): a("v_fmac_f32 v%d, v%d, v%d" % (vX1 + i, vGA + i, GD + i))
a("s_cmp_ge_u32 s%d, 28" % sy); a("s_cbranch_scc1 L_final")
for i in range(4): a("v_mul_f32 v%d, v%d, v%d" % (GD + i, vX1 + i, vCB + i))
a("v_add_f32 v%d, v%d, v%d" % (TMP + 10, vX1, vX1 + 1)); a("v_add_f32 v%d, v%d, v%d" % (TMP + 11, vX1 + 2, vX1 + 3)); a("v_add_f32 v%d, v%d, v%d" % (TMP + 10, TMP + 10, TMP + 11))
a("v_mul_f32 v%d, v%d, v%d" % (TMP + 11, vX1, vX1))
for i in range(1, 4): a("v_fmac_f32 v%d, v%d, v%d" % (TMP + 11, vX1 + i, vX1 + i))
a("v_lshlrev_b32 v%d, 3, v%d" % (TMP + 12, vB)); a("v_add_u32 v%d, %d, v%d" % (TMP + 12, L_MISC + 80, TMP + 12))
a("s_mov_b64 exec, s[%d:%d]" % (sP8, sP8 + 1))
a("ds_add_f32 v%d, v%d" % (TMP + 12, TMP + 10)); a("ds_add_f32 v%d, v%d offset:4" % (TMP + 12, TMP + 11))
a("s_mov_b64 exec, -1")
gemv(R(GD), WW1, ACC)
redwrite(ACC, 7); bar(); redread(GD, 7)
a("ds_read_b64 v[%d:%d], v%d" % (GD + 4, GD + 5, TMP + 12))
a("s_waitcnt lgkmcnt(0)")
allred8(R(GD)); tag(R(GD))
a("s_lshl_b32 s%d, s2, 10" % st0); base(sB, sWS, st0, O_S5U); publish(GD, sB)
a("s_cmp_lg_u32 s%d, 0" % sJ); a("s_cbranch_scc1 L_nost")
a("v_mov_b32 v%d, v%d" % (GD + 6, GD + 5)); a("v_mov_b32 v%d, v%d" % (GD + 5, vTW)); a("v_mov_b32 v%d, v%d" % (GD + 7, vTW))
a("s_lshl_b32 s%d, s2, 5" % st0); base(sB, sWS, st0, O_S5S)
a("v_lshlrev_b32 v%d, 4, v%d" % (TMP, vB))
a("s_mov_b64 exec, 0x101")
a("global_store_dwordx4 v%d, v[%d:%d], s[%d:%d] sc1" % (TMP, GD + 4, GD + 7, sB, sB + 1))
a("s_mov_b64 exec, -1")
a("s_nop 1")
a.label("L_nost")
stamp(10)
a("s_lshl_b32 s%d, s%d, 13" % (st0, sy)); base(sB, sWS, st0, O_S5U)
a("s_lshl_b32 s%d, s%d, 8" % (st0, sy)); base(sB2, sWS, st0, O_S5S)
a("v_add_u32 v%d, %d, v%d" % (TMP + 10, O_S5V - O_S5U, vG8)); a("v_add_u32 v%d, %d, v%d" % (TMP + 11, O_S5T - O_S5U, vG8))
a("v_lshlrev_b32 v%d, 4, v%d" % (TMP + 12, vB)); a("v_lshl_add_u32 v%d, v%d, 5, v%d" % (TMP + 12, vJM, TMP + 12))
poll(["global_load_dwordx4 v[%d:%d], v%d, s[%d:%d] sc1" % (GD + 4 * m, GD + 4 * m + 3, [vG8, TMP + 10, TMP + 11][m], sB, sB + 1) for m in range(3)] +
     ["global_load_dwordx4 v[%d:%d], v%d, s[%d:%d] sc1" % (GL, GL + 3, TMP + 12, sB2, sB2 + 1)], R(GD, 12), [GL + 1, GL + 3])
stamp(11)
allred8([GL, GL + 2])
lnstats(GL, GL + 2, TMP + 4)
for i in range(4): a("v_fma_f32 v%d, -v%d, v%d, v%d" % (GD + i, GL, GD + 4 + i, GD + i))
for i in range(4): a("v_fma_f32 v%d, v%d, v%d, v%d" % (GD + i, GD + i, GL + 2, GD + 8 + i))
allred8(R(GD))
for i in range(4): a("v_max_f32 v%d, 0, v%d" % (GD + i, GD + i))
gemv(R(GD), WW2, ACC)
redwrite(ACC, 8); bar(); redread(GD, 8); a("s_waitcnt lgkmcnt(0)")
allred8(R(GD)); tag(R(GD))
a("s_mul_i32 s%d, s%d, %d" % (st0, sx, 28 * 1024)); a("s_lshl_b32 s%d, s%d, 10" % (st1, sy)); a("s_add_u32 s%d, s%d, s%d" % (st0, st0, st1))
base(sB, sWS, st0, O_S6); publish(GD, sB)
stamp(12)
a.label("L_final")
a("s_lshr_b32 s%d, s%d, 2" % (st0, sy)); a("s_cmp_lg_u32 s%d, s%d" % (st0, sJ)); a("s_cbranch_scc1 L_end")
a("s_mul_i32 s%d, s%d, %d" % (st0, sx, 28 * 1024)); a("s_lshl_b32 s%d, s%d, 4" % (st1, sy)); a("s_add_u32 s%d, s%d, s%d" % (st0, st0, st1))
base(sB, sWS, st0, O_S6)
a("v_lshl_add_u32 v%d, v%d, 3, v%d" % (TMP + 10, vG, vJM)); a("v_cmp_gt_u32 s[%d:%d], 28, v%d" % (sB2, sB2 + 1, TMP + 10)); a("v_min_u32 v%d, 27, v%d" % (TMP + 10, TMP + 10))
a("v_lshlrev_b32 v%d, 10, v%d" % (TMP + 10, TMP + 10)); a("v_lshl_add_u32 v%d, v%d, 9, v%d" % (TMP + 10, vB, TMP + 10))
poll(["global_load_dwordx4 v[%d:%d], v%d, s[%d:%d] sc1" % (GD, GD + 3, TMP + 10, sB, sB + 1)], R(GD))
for i in range(4): a("v_cndmask_b32 v%d, 0, v%d, s[%d:%d]" % (GD + i, GD + i, sB2, sB2 + 1))
allred8(R(GD))
for i in range(4): a("v_mov_b32 v%d, v%d" % (GD + 4 + i, GD + i))
for i in range(4): a("v_permlane16_swap_b32 v%d, v%d" % (GD + i, GD + 4 + i))
for i in range(4): a("v_add_f32 v%d, v%d, v%d" % (GD + i, GD + i, GD + 4 + i))
for i in range(4): a("v_mov_b32 v%d, v%d" % (GD + 4 + i, GD + i))
for i in range(4): a("v_permlane32_swap_b32 v%d, v%d" % (GD + i, GD + 4 + i))
for i in range(4): a("v_add_f32 v%d, v%d, v%d" % (GD + i, GD + i, GD + 4 + i))
for i in range(4): a("v_fma_f32 v%d, v%d, v%d, v%d" % (GD + i, vGB + i, GD + i, vX1 + i))
a("v_cvt_pk_bf16_f32 v%d, v%d, v%d" % (GD, GD, GD + 1)); a("v_cvt_pk_bf16_f32 v%d, v%d, v%d" % (GD + 1, GD + 2, GD + 3))
a("s_lshl_b32 s%d, s%d, 8" % (st0, sx)); a("s_lshl_b32 s%d, s%d, 3" % (st1, sy)); a("s_add_u32 s%d, s%d, s%d" % (st0, st0, st1)); base(sB, sOUT, st0)
a("v_lshlrev_b32 v%d, 11, v%d" % (TMP, vB))
a("s_and_b32 s%d, s%d, 3" % (st0, sy)); a("s_lshl_b32 s%d, s%d, 4" % (st0, st0)); a("s_lshl_b64 exec, 0x101, s%d" % st0)
a("global_store_dwordx2 v%d, v[%d:%d], s[%d:%d]" % (TMP, GD, GD + 1, sB, sB + 1))
a("s_mov_b64 exec, -1")
if STAMPS:
    a("s_mov_b32 s%d, 0" % sJ); stamp(13)
a("s_cmp_lg_u32 s2, 0"); a("s_cbranch_scc1 L_end")
a("v_mov_b32 v%d, 0" % TMP); a("s_mov_b64 exec, 1")
a("global_store_dword v%d, v%d, s[%d:%d] sc1" % (TMP, vT, sWS, sWS + 1))
a.label("L_end")
a("s_endpgm")
a.l = hazard.fix(a.l)
open(OUT, "w").write(wrap(a.text(), 256, 512, LDS, 256))
print("LDS", LDS, "lines", len(a.l))
```

```python
import sys, math, struct
from asmlib import *
import hazard
args = sys.argv[1:]
OUT = [x for x in args if x.endswith(".s")][0]
P = dict(stamps=0, nt=1, g1at=16, g2at=32, g3at=16, gmat=8, g4at=16, g5at=16, pf=1, d6=0, prio=1, lsleep=1, w1=7, wv=9, wm=9, wo=9, wf=9, rsleep=0, mpre=7)
for x in args:
    if "=" in x:
        k, v = x.split("="); assert k in P, k; P[k] = int(v)
STAMPS = P["stamps"]; NT = " nt" if P["nt"] else ""
NST = 16; TAGM = 0xfff
O_S1 = 0x1000; O_S2 = O_S1 + 0x40000; O_S3 = O_S2 + 0x40000; O_S4 = O_S3 + 0x80000; O_SM = O_S4 + 0x20000
O_S5U = O_SM + 0x40000; O_S5V = O_S5U + 0x38000; O_S5T = O_S5V + 0x38000; O_S6 = O_S5T + 0x38000; O_S5S = O_S6 + 0x38000
SL0, SL1, SLA = 0, 65536, 131072
LS = 147456
F_LAND = 0
F_BAR = 16
B_P1A, B_QF, B_P2, B_MF, B_P4, B_P6, B_Q, B_MX, B_P, B_P5 = range(10)
A_ST1 = 128
A_ST2 = A_ST1 + 256
A_MX = A_ST2 + 512
A_LS = A_MX + 256
ASTR = 576
A_C1 = A_LS + 2048
A_C2 = A_C1 + 2 * ASTR
A_X = A_C2 + 2 * ASTR
A_Y = A_X + 2 * ASTR
A_Z = A_X + 4 * ASTR
A_Q = A_X + 6 * ASTR
A_P = A_Q + 8 * 288
LDS = LS + A_P + 8 * 544
assert LDS <= 163840, LDS
sJ = 3
sX, sK, sV, sWQ, sWO, sW1, sW2, sC, sWM, sOUT, sDBG, sWS = 4, 6, 8, 10, 12, 16, 18, 20, 22, 24, 26, 28
sx, sy, sz, sT, sTM, sTO, sTW = 30, 31, 14, 32, 33, 34, 35
sONES = 36; sHI = 54
sB, sB2, sB3, sB4 = 38, 40, 56, 58
st0, st1, st2, st3 = 42, 43, 44, 45
sHP, sCB, sRB, sCQ = 46, 47, 51, 15
sMOD, sMCB, sMRB = 94, 95, 96
sSTB = 48; sEP = 50; sMSK = 52; sSTMP = 60; sGRP = 92; sLD = 93
vL, vG, vC, vT, vTW, vJQ, vPUB, vZ, vONE, vFL, vTR5, vTR2, vAF, vX, vXD = range(1, 16)
vA = 16; WA = 48; WB = 80; GD = 112; GL = 128; ACC = 136; TMP = 144
vGA, vCB, vXS = 164, 165, 166
NV = 168
a = Asm()
def stamp(i):
    if STAMPS: a("s_memrealtime s[%d:%d]" % (sSTMP + 2 * i, sSTMP + 2 * i + 1))
def base(dst, src, off=None, imm=0):
    if off is not None:
        if imm: a("s_add_u32 s%d, s%d, %d" % (off, off, imm))
        a("s_add_u32 s%d, s%d, s%d" % (dst, src, off)); a("s_addc_u32 s%d, s%d, 0" % (dst + 1, src + 1))
    else:
        a("s_add_u32 s%d, s%d, %d" % (dst, src, imm)); a("s_addc_u32 s%d, s%d, 0" % (dst + 1, src + 1))
def lin(dst, terms, imm=0):
    first = True
    for coef, r in terms:
        t = dst if first else st3
        if coef & (coef - 1) == 0: a("s_lshl_b32 s%d, s%d, %d" % (t, r, coef.bit_length() - 1))
        else: a("s_mul_i32 s%d, s%d, %d" % (t, r, coef))
        if not first: a("s_add_u32 s%d, s%d, s%d" % (dst, dst, t))
        first = False
    if imm: a("s_add_u32 s%d, s%d, %d" % (dst, dst, imm))
def R(r, n=4): return list(range(r, r + n))
def dpp(op, d, s0, s1, ctl, extra="row_mask:0xf bank_mask:0xf"):
    a("%s_dpp v%d, v%d, v%d %s %s" % (op, d, s0, s1, ctl, extra))
def allred(rs, steps, op="v_add_f32"):
    for ctl in ("quad_perm:[1,0,3,2]", "quad_perm:[2,3,0,1]", "row_half_mirror", "row_mirror")[:steps]:
        for r in rs: dpp(op, r, r, r, ctl)
def swapred(ds, ror=True):
    for d in ds:
        a("v_permlane32_swap_b32 v%d, v%d" % (d, d + 2)); a("v_permlane32_swap_b32 v%d, v%d" % (d + 1, d + 3))
    for d in ds:
        a("v_add_f32 v%d, v%d, v%d" % (d, d, d + 2)); a("v_add_f32 v%d, v%d, v%d" % (d + 1, d + 1, d + 3))
    for d in ds: a("v_permlane16_swap_b32 v%d, v%d" % (d, d + 1))
    for d in ds: a("v_add_f32 v%d, v%d, v%d" % (d, d, d + 1))
    if ror:
        for d in ds: dpp("v_add_f32", d, d, d, "row_ror:8")
def rowred(r, t, op):
    a("v_mov_b32 v%d, v%d" % (t, r)); a("v_permlane16_swap_b32 v%d, v%d" % (r, t)); a("%s v%d, v%d, v%d" % (op, r, r, t))
    a("v_mov_b32 v%d, v%d" % (t, r)); a("v_permlane32_swap_b32 v%d, v%d" % (r, t)); a("%s v%d, v%d, v%d" % (op, r, r, t))
def add4(d, s):
    for h in (0, 2): a("v_pk_add_f32 v[%d:%d], v[%d:%d], v[%d:%d]" % (d + h, d + h + 1, d + h, d + h + 1, s + h, s + h + 1))
def check(tag_regs, word_regs=(), grp=False):
    t = TMP
    a("v_xor_b32 v%d, v%d, v%d" % (t, tag_regs[0], vT))
    for r in tag_regs[1:]: a("v_bitop3_b32 v%d, v%d, v%d, v%d bitop3:0xbe" % (t, r, vT, t))
    a("v_and_b32 v%d, s%d, v%d" % (t, sTM, t))
    for r in word_regs: a("v_bitop3_b32 v%d, v%d, v%d, v%d bitop3:0xbe" % (t, r, vTW, t))
    if grp: allred([t], 3, "v_or_b32")
    a("v_cmp_ne_u32 vcc, 0, v%d" % t)
def gissue(loads):
    for x in loads: a(x)
def gfinish(loads, tag_regs, word_regs=(), cnt=None, grp=False, nyoung=0):
    ok, lp = a.lab("Ok"), a.lab("Rp")
    a("s_waitcnt vmcnt(%d)" % nyoung)
    check(tag_regs, word_regs)
    a("s_cbranch_vccz %s" % ok)
    if grp: allred([TMP], 3, "v_or_b32"); a("v_cmp_ne_u32 vcc, 0, v%d" % TMP)
    a.label(lp)
    a("s_mov_b64 exec, vcc")
    if P["rsleep"]: a("s_sleep %d" % P["rsleep"])
    if STAMPS and cnt is not None: a("s_add_u32 s%d, s%d, %d" % (sSTMP + 30, sSTMP + 30, cnt))
    for x in loads: a(x)
    a("s_waitcnt vmcnt(0)")
    check(tag_regs, word_regs, grp)
    a("s_sub_u32 s%d, s%d, 1" % (sTO, sTO))
    a("s_cbranch_scc1 %s_to" % ok)
    a("s_cbranch_vccnz %s" % lp)
    a("s_branch %s_dn" % ok)
    a.label(ok + "_to"); a("s_mov_b32 s%d, 0" % sTO)
    a.label(ok + "_dn"); a("s_mov_b64 exec, -1"); a("s_nop 1")
    a.label(ok)
def mfma(acc, A, B, first):
    a("v_mfma_f32_16x16x32_bf16 v[%d:%d], v[%d:%d], v[%d:%d], %s" % (acc, acc + 3, A, A + 3, B, B + 3, "0" if first else "v[%d:%d]" % (acc, acc + 3)))
def pack(r, d=None): a("v_cvt_pk_bf16_f32 v%d, v%d, v%d" % (r if d is None else d, r, r))
def tag(rs):
    for r in rs: a("v_bfi_b32 v%d, s%d, v%d, v%d" % (r, sTM, vT, r))
def silu(r, t):
    a("v_mul_f32 v%d, 0xbfb8aa3b, v%d" % (t, r)); a("v_exp_f32 v%d, v%d" % (t, t)); a("v_add_f32 v%d, 1.0, v%d" % (t, t))
    a("v_rcp_f32 v%d, v%d" % (t, t)); a("v_mul_f32 v%d, v%d, v%d" % (r, r, t))
def lnstats(s, q):
    a("v_mul_f32 v%d, 0x3a800000, v%d" % (s, s)); a("v_mul_f32 v%d, 0x3a800000, v%d" % (q, q))
    a("v_fma_f32 v%d, -v%d, v%d, v%d" % (q, s, s, q)); a("v_max_f32 v%d, 0, v%d" % (q, q))
    a("v_add_f32 v%d, 0x3727c5ac, v%d" % (q, q)); a("v_rsq_f32 v%d, v%d" % (q, q))
def arrive(k):
    a("ds_write_b8 v%d, v%d offset:%d" % (vFL, vONE, F_BAR + 8 * k))
def spin(k, reads=(), sleep=0):
    l, ok = a.lab("Sp"), a.lab("So")
    a.label(l)
    a("ds_read_b64 v[%d:%d], v%d offset:%d" % (TMP + 2, TMP + 3, vZ, F_BAR + 8 * k))
    for x in reads: a(x)
    a("s_waitcnt lgkmcnt(%d)" % min(len(reads), 15))
    a("v_cmp_ne_u64 vcc, s[%d:%d], v[%d:%d]" % (sONES, sONES + 1, TMP + 2, TMP + 3))
    a("s_cbranch_vccz %s" % ok)
    if sleep: a("s_sleep %d" % sleep)
    a("s_sub_u32 s%d, s%d, 1" % (sTO, sTO)); a("s_cbranch_scc0 %s" % l)
    a("s_mov_b32 s%d, 0" % sTO)
    a.label(ok)
def hbar(reads=()):
    a("s_waitcnt lgkmcnt(0)"); a("s_barrier")
    for x in reads: a(x)
THR = {0: set(), 1: set()}
def landed(grp, thr):
    for g in ((0, 1) if grp is None else (grp,)): THR[g].add(thr)
    l, ok = a.lab("La"), a.lab("Lo")
    a.label(l)
    a("ds_read_b128 v[%d:%d], v%d offset:%d" % (TMP + 4, TMP + 7, vZ, F_LAND))
    a("s_waitcnt lgkmcnt(0)")
    a("v_min_u32 v%d, v%d, v%d" % (TMP + 4, TMP + 4, TMP + 5)); a("v_min3_u32 v%d, v%d, v%d, v%d" % (TMP + 4, TMP + 4, TMP + 6, TMP + 7))
    a("v_cmp_gt_u32 vcc, %d, v%d" % (thr, TMP + 4))
    a("s_cbranch_vccz %s" % ok)
    a("s_sleep %d" % P["lsleep"])
    a("s_sub_u32 s%d, s%d, 1" % (sTO, sTO)); a("s_cbranch_scc0 %s" % l)
    a("s_mov_b32 s%d, 0" % sTO)
    a.label(ok)
def trreads(W, va, RS, nst, halves):
    for s in range(nst):
        for h, (r, o) in enumerate(halves):
            for hh in range(2):
                d = W + (s * len(halves) + h) * 4 + 2 * hh
                a("ds_read_b64_tr_b16 v[%d:%d], v%d offset:%d" % (d, d + 1, r, s * 32 * RS + hh * 8 * RS + o))
def afrags(va, off, n, d=vA): return ["ds_read_b128 v[%d:%d], v%d offset:%d" % (d + 4 * s, d + 4 * s + 3, va, off + s * 64) for s in range(n)]
def perm32(d, s, t):
    a("v_lshrrev_b32 v%d, 1, v%d" % (t, s)); a("v_xor_b32 v%d, v%d, v%d" % (t, t, s)); a("v_and_b32 v%d, 4, v%d" % (t, t))
    a("v_mul_u32_u24 v%d, 3, v%d" % (t, t)); a("v_xor_b32 v%d, v%d, v%d" % (d, s, t))

a("s_cmp_ge_u32 s2, 256"); a("s_cbranch_scc1 L_end")
stamp(0)
a("s_load_dwordx8 s[20:27], s[0:1], 64")
a("s_load_dwordx16 s[4:19], s[0:1], 0")
a("s_load_dwordx2 s[28:29], s[0:1], 96")
a("v_lshrrev_b32 v2, 6, v0"); a("v_and_b32 v1, 63, v0"); a("v_readfirstlane_b32 s%d, v2" % sLD)
a("v_lshrrev_b32 v%d, 4, v%d" % (vG, vL)); a("v_and_b32 v%d, 15, v%d" % (vC, vL))
a("s_and_b32 s%d, s2, 7" % sx); a("s_lshr_b32 s%d, s2, 3" % sy)
a("s_mov_b32 s%d, 400000" % sTO); a("v_mov_b32 v%d, %d" % (vZ, LS))
a("s_mov_b32 s%d, 0x01010101" % sONES); a("s_mov_b32 s%d, 0x01010101" % (sONES + 1))
if STAMPS:
    for i in range(1, NST): a("s_mov_b64 s[%d:%d], 0" % (sSTMP + 2 * i, sSTMP + 2 * i + 1))
a("s_cmp_ge_u32 s%d, 4" % sLD); a("s_cbranch_scc1 L_comp")
LOADER_POS = len(a.l)
a.label("L_comp")
a("s_sub_u32 s%d, s%d, 4" % (sJ, sLD))
a("v_lshrrev_b32 v%d, 5, v%d" % (TMP, vL)); a("v_lshlrev_b32 v%d, 11, v%d" % (TMP + 1, TMP)); a("v_and_b32 v%d, 31, v%d" % (TMP + 2, vL))
a("v_lshl_add_u32 v%d, v%d, 1, v%d" % (TMP + 3, TMP + 2, TMP + 1))
a("s_lshl_b32 s%d, s%d, 6" % (st0, sy)); a("v_add_u32 v%d, s%d, v%d" % (TMP + 4, st0, TMP + 3))
a("v_lshl_add_u32 v%d, v%d, 3, v%d" % (TMP + 5, TMP + 2, TMP + 1)); a("s_lshl_b32 s%d, s%d, 8" % (st0, sJ)); a("v_add_u32 v%d, s%d, v%d" % (TMP + 5, st0, TMP + 5))
lin(st1, [(256, sx), (32, sJ)])
a("v_and_b32 v%d, 1, v%d" % (TMP + 6, vG)); a("v_lshlrev_b32 v%d, 11, v%d" % (TMP + 6, TMP + 6)); a("v_lshl_add_u32 v%d, v%d, 1, v%d" % (TMP + 6, vC, TMP + 6)); a("v_add_u32 v%d, s%d, v%d" % (TMP + 6, st1, TMP + 6))
a("v_mov_b32 v%d, 0" % (TMP + 8)); a("v_lshl_add_u32 v%d, v%d, 2, v%d" % (TMP + 9, TMP + 2, vZ))
a("ds_write_b32 v%d, v%d" % (TMP + 9, TMP + 8))
a("s_waitcnt lgkmcnt(0)")
a("global_load_ushort v%d, v%d, s[%d:%d]" % (GL, TMP + 4, sC, sC + 1))
a("global_load_dwordx2 v[%d:%d], v%d, s[%d:%d]" % (vXS, vXS + 1, TMP + 5, sX, sX + 1))
a("global_load_ushort v%d, v%d, s[%d:%d]" % (vXD, TMP + 6, sX, sX + 1))
a("s_load_dword s%d, s[%d:%d], 0" % (sEP, sWS, sWS + 1))
a("s_and_b32 s%d, s%d, 15" % (sz, sy))
if P["pf"]:
    a("s_cmp_lg_u32 s%d, 15" % sy); a("s_cbranch_scc1 L_nopf")
    a("s_getpc_b64 s[%d:%d]" % (sB, sB + 1)); a("s_lshl_b32 s%d, s%d, 10" % (st0, sJ)); a("v_lshl_add_u32 v%d, v%d, 4, s%d" % (TMP + 6, vL, st0))
    a("global_load_dwordx4 v[%d:%d], v%d, s[%d:%d]" % (GD + 8, GD + 11, TMP + 6, sB, sB + 1))
    a.label("L_nopf")
a("s_barrier")
a("s_mov_b32 s%d, 0x%x" % (sTM, TAGM)); a("s_mov_b32 s%d, 0" % sHI); a("s_mov_b32 s%d, -1" % (sHI + 1))
a("v_mov_b32 v%d, 1" % vONE); a("v_add_u32 v%d, s%d, v%d" % (vFL, sJ, vZ))
a("s_lshl_b32 s%d, s%d, 7" % (st0, sJ)); a("v_and_b32 v%d, 7, v%d" % (TMP + 4, vL)); a("v_lshl_add_u32 v%d, v%d, 4, s%d" % (vJQ, TMP + 4, st0))
a("v_lshl_add_u32 v%d, v%d, 2, s%d" % (vPUB, TMP + 2, st0))
vKEY, vROW = TMP + 16, TMP + 17
a("v_bfe_u32 v%d, v%d, 2, 3" % (vKEY, vL)); a("v_lshl_add_u32 v%d, v%d, 4, v%d" % (vROW, TMP, vKEY))
a("v_xor_b32 v%d, s%d, v%d" % (TMP + 4, sJ, vKEY)); a("v_lshlrev_b32 v%d, 5, v%d" % (TMP + 4, TMP + 4)); a("v_and_b32 v%d, 3, v%d" % (TMP + 5, vL)); a("v_lshl_add_u32 v%d, v%d, 3, v%d" % (TMP + 4, TMP + 5, TMP + 4))
a("v_lshl_add_u32 v%d, v%d, 9, v%d" % (vTR5, vROW, TMP + 4)); a("v_lshl_add_u32 v%d, v%d, 8, v%d" % (vTR2, vROW, TMP + 4))
a("v_bfe_u32 v%d, v%d, 2, 1" % (TMP + 4, vL)); a("v_mul_u32_u24 v%d, %d, v%d" % (TMP + 4, ASTR, TMP + 4)); a("v_lshl_add_u32 v%d, v%d, 4, v%d" % (TMP + 4, vG, TMP + 4)); a("v_add_u32 v%d, v%d, v%d" % (vAF, TMP + 4, vZ))
vW32 = TMP + 18
perm32(TMP + 4, TMP + 2, TMP + 5); a("v_mul_u32_u24 v%d, %d, v%d" % (TMP + 5, ASTR, TMP)); a("v_lshl_add_u32 v%d, v%d, 1, v%d" % (TMP + 4, TMP + 4, TMP + 5)); a("v_add_u32 v%d, v%d, v%d" % (vW32, TMP + 4, vZ))
vWV = TMP + 19
a("v_and_b32 v%d, 3, v%d" % (TMP + 4, vL)); a("v_lshl_add_u32 v%d, v%d, 2, v%d" % (TMP + 4, TMP + 4, vG)); a("s_lshl_b32 s%d, s%d, 4" % (st0, sJ)); a("v_add_u32 v%d, s%d, v%d" % (TMP + 4, st0, TMP + 4))
perm32(TMP + 4, TMP + 4, TMP + 5); a("v_bfe_u32 v%d, v%d, 2, 1" % (TMP + 5, vL)); a("v_mul_u32_u24 v%d, %d, v%d" % (TMP + 5, ASTR, TMP + 5))
a("v_lshl_add_u32 v%d, v%d, 1, v%d" % (TMP + 4, TMP + 4, TMP + 5)); a("v_add_u32 v%d, v%d, v%d" % (vWV, TMP + 4, vZ))
a("v_and_b32 v%d, 1, v%d" % (TMP + 4, vG)); a("v_lshlrev_b32 v%d, 7, v%d" % (TMP + 10, TMP)); a("v_lshl_add_u32 v%d, v%d, 3, v%d" % (TMP + 10, TMP + 4, TMP + 10)); a("v_add3_u32 v%d, v%d, v%d, s%d" % (TMP + 10, TMP + 10, vZ, st0))
a("v_lshlrev_b32 v%d, 7, v%d" % (TMP + 11, TMP + 4)); a("v_lshl_add_u32 v%d, v%d, 3, v%d" % (TMP + 11, vC, TMP + 11)); a("v_add_u32 v%d, v%d, v%d" % (TMP + 11, TMP + 11, vZ))
a("v_add_u32 v%d, %d, v%d" % (TMP + 12, SLA, vTR5))
lin(st1, [(32768, sx), (1024, sy)]); base(sB, sWS, st1, O_S1)
if STAMPS: lin(st0, [(NST * 8 * 12, 2), (NST * 8, sLD)]); base(sSTB, sWS, st0, 128 << 20)
a("s_mov_b32 s%d, 0x3f803f80" % st0)
a("s_cmp_eq_u32 s%d, 0" % sy); a("s_cselect_b32 s%d, 1.0, 0" % st2)
a("s_waitcnt vmcnt(0)")
a("v_dot2_f32_bf16 v%d, v%d, s%d, 0" % (GD, vXS, st0)); a("v_dot2_f32_bf16 v%d, v%d, v%d, 0" % (GD + 1, vXS, vXS))
a("v_dot2_f32_bf16 v%d, v%d, s%d, v%d" % (GD, vXS + 1, st0, GD)); a("v_dot2_f32_bf16 v%d, v%d, v%d, v%d" % (GD + 1, vXS + 1, vXS + 1, GD + 1))
a("v_lshlrev_b32 v%d, 16, v%d" % (GL, GL))
a("v_mul_f32 v%d, 0xbfb8aa3b, v%d" % (GL + 2, GL)); a("v_exp_f32 v%d, v%d" % (GL + 2, GL + 2))
allred([GD, GD + 1], 2)
a("v_add_f32 v%d, 1.0, v%d" % (GL + 2, GL + 2)); a("v_rcp_f32 v%d, v%d" % (GL + 2, GL + 2))
for r in (GD, GD + 1): dpp("v_add_f32", r, r, r, "row_half_mirror")
a("v_mul_f32 v%d, v%d, v%d" % (GL, GL, GL + 2)); pack(GL)
for r in (GD, GD + 1): dpp("v_add_f32", r, r, r, "row_mirror")
a("ds_write_b16 v%d, v%d offset:%d" % (vW32, GL, A_C1))
a("ds_write_b64 v%d, v[%d:%d] offset:%d" % (TMP + 10, GD, GD + 1, A_ST1))
arrive(B_P1A)
a("v_lshlrev_b32 v%d, 16, v%d" % (vXD, vXD))
a("s_waitcnt lgkmcnt(0)")
a("s_add_u32 s%d, s%d, 0x9e5" % (sT, sEP)); a("s_and_b32 s%d, s%d, s%d" % (sT, sT, sTM)); a("v_mov_b32 v%d, s%d" % (vT, sT))
a("s_mul_i32 s%d, s%d, 0x00100101" % (sTW, sT)); a("s_xor_b32 s%d, s%d, 0x5a5a0000" % (sTW, sTW)); a("v_mov_b32 v%d, s%d" % (vTW, sTW))
spin(B_P1A)
for x in ["ds_read_b64 v[%d:%d], v%d offset:%d" % (GD, GD + 1, TMP + 11, A_ST1)] + afrags(vAF, A_C1, 1): a(x)
a("s_waitcnt lgkmcnt(0)")
allred([GD, GD + 1], 4); lnstats(GD, GD + 1)
a("v_sub_f32 v%d, v%d, v%d" % (vXD, vXD, GD)); a("v_mul_f32 v%d, v%d, v%d" % (vXD, vXD, GD + 1))
landed(None, 4)
stamp(1)
trreads(WA, TMP + 12, 512, 1, [(TMP + 12, 0), (TMP + 12, 256)])
a("s_waitcnt lgkmcnt(0)")
mfma(ACC + 4, vA, WA + 4, True); mfma(ACC, vA, WA, True)
a("v_add_f32 v%d, s%d, v%d" % (ACC + 4, st2, ACC + 4)); a("v_fmac_f32 v%d, v%d, v%d" % (ACC, vXD, ACC + 4)); tag([ACC])
a("s_mov_b32 exec_hi, 0")
a("global_store_dword v%d, v%d, s[%d:%d] sc1" % (vPUB, ACC, sB, sB + 1))
a("s_mov_b64 exec, -1")
stamp(2)
def mtile(grp):
    if grp == 0:
        a("s_and_b32 s%d, s%d, 7" % (sMCB, sz)); a("s_and_b32 s%d, s%d, 3" % (sMOD, sx))
        a("s_lshr_b32 s%d, s%d, 2" % (sMRB, sx)); a("s_lshr_b32 s%d, s%d, 3" % (st0, sz)); a("s_lshl_b32 s%d, s%d, 1" % (st0, st0)); a("s_add_u32 s%d, s%d, s%d" % (sMRB, sMRB, st0)); a("s_add_u32 s%d, s%d, 4" % (sMRB, sMRB))
    else:
        a("s_lshr_b32 s%d, s%d, 1" % (sMCB, sz)); a("s_xor_b32 s%d, s%d, 1" % (sMCB, sMCB)); a("s_and_b32 s%d, s%d, 3" % (sMOD, sx))
        a("s_lshr_b32 s%d, s%d, 2" % (sMRB, sx)); a("s_and_b32 s%d, s%d, 1" % (st0, sz)); a("s_lshl_b32 s%d, s%d, 1" % (st0, st0)); a("s_add_u32 s%d, s%d, s%d" % (sMRB, sMRB, st0))
def late_loads(grp):
    mtile(grp)
    a("v_and_b32 v%d, 4, v%d" % (TMP + 5, vL)); a("v_lshlrev_b32 v%d, 9, v%d" % (TMP + 5, TMP + 5)); a("v_and_b32 v%d, 3, v%d" % (TMP + 6, vL))
    a("v_lshl_add_u32 v%d, v%d, 3, v%d" % (TMP + 5, TMP + 6, TMP + 5)); a("v_lshl_add_u32 v%d, v%d, 1, v%d" % (TMP + 5, vG, TMP + 5))
    lin(st0, [(256, sMRB), (32, sJ)]); a("v_add_u32 v%d, s%d, v%d" % (TMP + 6, st0, TMP + 5))
    a("global_load_ushort v%d, v%d, s[%d:%d]" % (vGA, TMP + 6, sC, sC + 1))
    if grp == 0:
        lin(st0, [(256, sx), (32, sJ)]); a("v_add_u32 v%d, s%d, v%d" % (TMP + 6, st0, TMP + 5))
        a("global_load_ushort v%d, v%d, s[%d:%d]" % (vX, TMP + 6, sX, sX + 1))
def late_use(grp):
    a("s_waitcnt vmcnt(0)")
    a("v_lshlrev_b32 v%d, 16, v%d" % (vGA, vGA)); silu(vGA, vCB); pack(vGA)
    a("ds_write_b16 v%d, v%d offset:%d" % (vWV, vGA, A_C2))
    if grp == 0: a("v_lshlrev_b32 v%d, 16, v%d" % (vX, vX))
def p1b(grp, va, thr):
    for x in afrags(vAF, A_C2, 4): a(x)
    lin(st0, [(32768, sMCB), (8192, sMOD), (1024, sMRB)]); base(sB3, sWS, st0, O_SM)
    landed(grp, thr)
    trreads(WA, va, 256, 4, [(va, 0)])
    for s in range(4):
        a("s_waitcnt lgkmcnt(%d)" % (6 - 2 * s)); mfma(ACC, vA + 4 * s, WA + 4 * s, s == 0)
    tag([ACC])
    a("s_mov_b32 exec_hi, 0")
    a("global_store_dword v%d, v%d, s[%d:%d] sc1" % (vPUB, ACC, sB3, sB3 + 1))
    a("s_mov_b64 exec, -1")
a("s_cmp_ge_u32 s2, 128"); a("s_cbranch_scc1 L_B")
late_loads(0)
vL16, vQW, vQA, vMW, vPW, vPA, vVA, vVB, vS3, vH2, vSH, vMR = TMP + 8, TMP + 9, TMP + 10, TMP + 11, TMP + 12, TMP + 13, TMP + 14, TMP + 15, vXS, vXS + 1, vXD, TMP + 18
lin(st0, [(32768, sx), (4096, sJ)]); base(sB, sWS, st0, O_S2)
a("v_lshlrev_b32 v%d, 4, v%d" % (vL16, vL))
a("v_and_b32 v%d, 31, v%d" % (vQW, vL)); a("v_lshlrev_b32 v%d, 3, v%d" % (vQW, vQW)); a("v_lshrrev_b32 v%d, 5, v%d" % (TMP + 4, vL)); a("v_lshl_add_u32 v%d, v%d, 2, v%d" % (vQW, TMP + 4, vQW))
a("s_mul_i32 s%d, s%d, 288" % (st0, sJ)); a("v_add3_u32 v%d, v%d, v%d, s%d" % (vQW, vQW, vZ, st0))
a("v_and_b32 v%d, 7, v%d" % (TMP + 4, vL))
a("v_mul_u32_u24 v%d, 288, v%d" % (vQA, TMP + 4)); a("v_lshl_add_u32 v%d, v%d, 4, v%d" % (vQA, vG, vQA)); a("v_add_u32 v%d, v%d, v%d" % (vQA, vQA, vZ))
a("v_lshl_add_u32 v%d, v%d, 5, v%d" % (vMR, TMP + 4, vZ)); a("s_lshl_b32 s%d, s%d, 2" % (st0, sJ)); a("v_add_u32 v%d, s%d, v%d" % (vMW, st0, vMR))
a("v_mul_u32_u24 v%d, 544, v%d" % (vPA, TMP + 4)); a("v_add_u32 v%d, v%d, v%d" % (vPA, vPA, vZ))
a("v_and_b32 v%d, 1, v%d" % (TMP + 4, vG)); a("v_lshlrev_b32 v%d, 4, v%d" % (vPW, TMP + 4)); a("v_and_b32 v%d, 2, v%d" % (TMP + 5, vG)); a("v_lshl_add_u32 v%d, v%d, 2, v%d" % (vPW, TMP + 5, vPW))
a("s_lshl_b32 s%d, s%d, 6" % (st0, sJ)); a("v_add3_u32 v%d, v%d, v%d, s%d" % (vPW, vPW, vPA, st0))
a("v_and_b32 v%d, 8, v%d" % (TMP + 6, vL)); a("v_lshl_add_u32 v%d, v%d, 2, v%d" % (vPW, TMP + 6, vPW))
vLW, vLR = TMP + 16, TMP + 17
a("v_and_b32 v%d, 7, v%d" % (vLW, vL)); a("v_lshlrev_b32 v%d, 8, v%d" % (vLW, vLW)); a("v_lshrrev_b32 v%d, 3, v%d" % (TMP + 6, vL)); a("v_lshl_add_u32 v%d, v%d, 2, v%d" % (vLW, TMP + 6, vLW))
a("s_lshl_b32 s%d, s%d, 5" % (st0, sJ)); a("v_add3_u32 v%d, v%d, v%d, s%d" % (vLW, vLW, vZ, st0))
a("s_mov_b32 s%d, 0xff00ff00" % sMSK); a("s_mov_b32 s%d, 0xff00ff00" % (sMSK + 1))
a("v_lshl_add_u32 v%d, v%d, 4, v%d" % (vPA, vG, vPA))
a("v_lshl_add_u32 v%d, v%d, 2, v%d" % (TMP + 4, TMP + 4, TMP + 5))
a("v_lshlrev_b32 v%d, 14, v%d" % (vS3, TMP + 4)); a("v_lshl_add_u32 v%d, v%d, 3, v%d" % (vS3, vC, vS3))
a("v_lshlrev_b32 v%d, 5, v%d" % (vH2, TMP + 4)); a("v_lshl_add_u32 v%d, v%d, 2, v%d" % (vH2, vC, vH2)); a("v_lshl_add_u32 v%d, v%d, 3, v%d" % (vLR, vH2, vZ)); a("v_add_u32 v%d, v%d, v%d" % (vH2, vH2, vZ))
a("v_and_b32 v%d, 1, v%d" % (vSH, vL)); a("v_mul_u32_u24 v%d, 12, v%d" % (vSH, vSH)); a("v_sub_u32 v%d, 20, v%d" % (vSH, vSH))
a("s_lshl_b32 s%d, s%d, 1" % (st0, sJ)); a("s_and_b32 s%d, s%d, 7" % (st0, st0)); a("s_xor_b32 s%d, s%d, s%d" % (st0, st0, sJ)); a("s_lshl_b32 s%d, s%d, 5" % (st0, st0))
a("v_xor_b32 v%d, s%d, v%d" % (vVA, st0, vTR2)); a("v_add_u32 v%d, %d, v%d" % (vVA, SL1, vVA)); a("v_xor_b32 v%d, 32, v%d" % (vVB, vVA))
a("s_and_b32 s%d, s%d, 3" % (st1, sx)); a("s_lshr_b32 s%d, s%d, 2" % (st2, sx))
lin(st0, [(8 * 16384, st1), (4096, sJ), (256, sz), (128, st2)]); base(sB2, sWS, st0, O_S3); base(sB3, sB2, None, 16384)
SC = struct.unpack("<I", struct.pack("<f", 128 ** -0.5 * math.log2(math.e)))[0]
a("s_mov_b32 s%d, 0x%08x" % (st1, SC))
a("v_xor_b32 v%d, v%d, v%d" % (GL, vC, vG)); a("v_lshlrev_b32 v%d, 4, v%d" % (GL, GL)); a("v_lshl_add_u32 v%d, v%d, 8, v%d" % (GL, vC, GL))
a("s_lshl_b32 s%d, s%d, 13" % (st0, sJ)); a("v_add_u32 v%d, s%d, v%d" % (GL, st0, GL))
for s in range(1, 4): a("v_xor_b32 v%d, %d, v%d" % (GL + s, s << 6, GL))
late_use(0)
landed(0, 20)
for s in range(4):
    for t in range(2): a("ds_read_b128 v[%d:%d], v%d offset:%d" % (WA + 16 * t + 4 * s, WA + 16 * t + 4 * s + 3, GL + s, SL0 + t * 4096))
landed(0, 4 + P["g2at"])
stamp(3)
g2 = ["global_load_dwordx4 v[%d:%d], v%d, s[%d:%d] offset:%d sc1" % (GD + 4 * i, GD + 4 * i + 3, vL16, sB, sB + 1, i * 1024) for i in range(4)]
gissue(g2)
a("s_cmp_ge_u32 s%d, 4" % sJ); a("s_cbranch_scc1 L_nv1")
landed(0, 36)
trreads(WB, vVA, 256, 8, [(vVA, 0)]); trreads(vA, vVB, 256, 8, [(vVB, 0)])
a.label("L_nv1")
gfinish(g2, R(GD, 16), cnt=1)
stamp(4)
add4(GD, GD + 4); add4(GD + 8, GD + 12); add4(GD, GD + 8)
a("v_permlane32_swap_b32 v%d, v%d" % (GD, GD + 2)); a("v_permlane32_swap_b32 v%d, v%d" % (GD + 1, GD + 3))
a("v_add_f32 v%d, v%d, v%d" % (GD, GD, GD + 2)); a("v_add_f32 v%d, v%d, v%d" % (GD + 1, GD + 1, GD + 3))
a("v_cvt_pk_bf16_f32 v%d, v%d, v%d" % (GD, GD, GD + 1))
a("ds_write_b32 v%d, v%d offset:%d" % (vQW, GD, A_Q))
hbar(afrags(vQA, A_Q, 4, GD)); stamp(12)
for s in range(4):
    a("s_waitcnt lgkmcnt(%d)" % (3 - s))
    for t in range(2): mfma(ACC + 4 * t, WA + 16 * t + 4 * s, GD + 4 * s, s == 0)
for i in range(4): a("v_cndmask_b32 v%d, v%d, v%d, s[%d:%d]" % (ACC + i, ACC + i, ACC + 4 + i, sMSK, sMSK + 1))
a("v_max_f32 v%d, v%d, v%d" % (GL, ACC, ACC + 1)); a("v_max3_f32 v%d, v%d, v%d, v%d" % (GL, GL, ACC + 2, ACC + 3))
dpp("v_max_f32", GL, GL, GL, "row_ror:8")
rowred(GL, GL + 1, "v_max_f32")
a("ds_write_b32 v%d, v%d offset:%d" % (vMW, GL, A_MX))
hbar(["ds_read_b128 v[%d:%d], v%d offset:%d" % (GL + 4 * i, GL + 4 * i + 3, vMR, A_MX + 16 * i) for i in range(2)]); stamp(13)
a("s_waitcnt lgkmcnt(0)")
a("v_max3_f32 v%d, v%d, v%d, v%d" % (GL, GL, GL + 1, GL + 2)); a("v_max3_f32 v%d, v%d, v%d, v%d" % (GL + 4, GL + 4, GL + 5, GL + 6))
a("v_max3_f32 v%d, v%d, v%d, v%d" % (GL, GL, GL + 3, GL + 7)); a("v_max_f32 v%d, v%d, v%d" % (GL, GL, GL + 4))
a("v_mul_f32 v%d, s%d, v%d" % (GL, st1, GL))
for i in range(4): a("v_fma_f32 v%d, v%d, s%d, -v%d" % (ACC + i, ACC + i, st1, GL))
for i in range(4): a("v_exp_f32 v%d, v%d" % (ACC + i, ACC + i))
for i in range(2): a("v_cvt_pk_bf16_f32 v%d, v%d, v%d" % (GL + 2 + i, ACC + 2 * i, ACC + 2 * i + 1))
a("ds_write_b64 v%d, v[%d:%d] offset:%d" % (vPW, GL + 2, GL + 3, A_P))
a("v_add_f32 v%d, v%d, v%d" % (ACC, ACC, ACC + 1)); a("v_add_f32 v%d, v%d, v%d" % (ACC + 2, ACC + 2, ACC + 3)); a("v_add_f32 v%d, v%d, v%d" % (ACC, ACC, ACC + 2))
a("ds_write_b32 v%d, v%d offset:%d" % (vLW, ACC, A_LS))
hbar(); stamp(14)
a("s_cmp_ge_u32 s%d, 4" % sJ); a("s_cbranch_scc1 L_nopv")
pf_ = afrags(vPA, A_P, 8, WA)
for x in pf_[:2] + ["ds_read_b128 v[%d:%d], v%d offset:%d" % (GD + 8 + 4 * i, GD + 11 + 4 * i, vLR, A_LS + 16 * i) for i in range(2)] + ["ds_read_b32 v%d, v%d offset:%d" % (GL + 1, vH2, A_MX)] + pf_[2:]: a(x)
for s in range(8):
    a("s_waitcnt lgkmcnt(%d)" % (10 - s if s < 2 else 7 - s))
    for t in range(2): mfma(ACC + 4 * t, WA + 4 * s, (WB, vA)[t] + 4 * s, s == 0)
    if s == 2:
        add4(GD + 8, GD + 12); a("v_add_f32 v%d, v%d, v%d" % (GD + 8, GD + 8, GD + 9)); a("v_add_f32 v%d, v%d, v%d" % (GD + 10, GD + 10, GD + 11))
    if s == 3:
        a("v_add_f32 v%d, v%d, v%d" % (GL, GD + 8, GD + 10))
    if 3 <= s < 6:
        ctl = ("quad_perm:[1,0,3,2]", "quad_perm:[2,3,0,1]", "row_half_mirror")[s - 3]
        dpp("v_max_f32", GL + 1, GL + 1, GL + 1, ctl); dpp("v_add_f32", GL, GL, GL, ctl)
    if s == 6: a("v_log_f32 v%d, v%d" % (GL + 2, GL)); a("v_rcp_f32 v%d, v%d" % (GL, GL))
    if s == 7:
        a("v_fmac_f32 v%d, s%d, v%d" % (GL + 2, st1, GL + 1)); a("v_mov_b32 v%d, v%d" % (GL + 1, GL))
        a("v_lshrrev_b32 v%d, v%d, v%d" % (GL + 2, vSH, GL + 2))
        a("v_mov_b32_dpp v%d, v%d row_ror:8 row_mask:0xf bank_mask:0x3" % (GL + 1, GL)); a("v_mov_b32 v%d, v%d" % (GL + 3, GL + 2))
        a("v_mov_b32_dpp v%d, v%d row_ror:8 row_mask:0xf bank_mask:0xc" % (GL, GL))
        a("v_mov_b32_dpp v%d, v%d row_ror:8 row_mask:0xf bank_mask:0x3" % (GL + 3, GL + 2)); a("v_mov_b32_dpp v%d, v%d row_ror:8 row_mask:0xf bank_mask:0xc" % (GL + 2, GL + 2))
for k in range(2):
    for t in range(2): a("v_cndmask_b32 v%d, v%d, v%d, s[%d:%d]" % (GD + 2 * k + t, ACC + 4 * t + k, ACC + 4 * t + 2 + k, sHI, sHI + 1))
    for t in range(2): a("v_mul_f32 v%d, v%d, v%d" % (GD + 2 * k + t, GD + 2 * k + t, GL + k))
    a("v_bfi_b32 v%d, s%d, v%d, v%d" % (GD + 2 * k, sTM, vT, GD + 2 * k)); a("v_bfi_b32 v%d, s%d, v%d, v%d" % (GD + 2 * k + 1, sTM, GL + 2 + k, GD + 2 * k + 1))
    a("global_store_dwordx2 v%d, v[%d:%d], s[%d:%d] sc1" % (vS3, GD + 2 * k, GD + 2 * k + 1, (sB2, sB3)[k], (sB2, sB3)[k] + 1))
a.label("L_nopv")
stamp(5)
a("s_barrier")
p1b(0, vTR2, 44)
stamp(11)
a("s_cmp_ge_u32 s%d, 14" % sz); a("s_cbranch_scc1 L_fin")
vGM, vG4, vP5, vA5, vS2W, vF1 = TMP + 8, TMP + 9, TMP + 10, TMP + 11, TMP + 12, TMP + 13
a("s_lshl_b32 s%d, s%d, 15" % (st0, sx)); base(sB, sWS, st0, O_SM); base(sB2, sB, None, 8192); base(sB3, sB, None, 16384)
a("s_lshl_b32 s%d, s%d, 14" % (st0, sx)); base(sB4, sWS, st0, O_S4)
a("v_lshrrev_b32 v%d, 3, v%d" % (vGM, vL)); a("v_lshl_add_u32 v%d, v%d, 10, v%d" % (vGM, vGM, vJQ))
a("v_add_u32 v%d, %d, v%d" % (vF1, SL1, vTR5))
a("v_lshrrev_b32 v%d, 3, v%d" % (vG4, vL)); a("v_lshl_add_u32 v%d, v%d, 11, v%d" % (vG4, vG4, vJQ))
a("v_lshrrev_b32 v%d, 5, v%d" % (vP5, vL)); a("v_lshl_add_u32 v%d, v%d, 13, v%d" % (vP5, vP5, vPUB))
a("v_and_b32 v%d, 3, v%d" % (vA5, vL)); a("v_min_u32 v%d, 2, v%d" % (vA5, vA5)); a("v_mul_u32_u24 v%d, %d, v%d" % (vA5, 2 * ASTR, vA5)); a("v_add_u32 v%d, v%d, v%d" % (vA5, vA5, vAF))
a("v_and_b32 v%d, 4, v%d" % (vS2W, vL)); a("v_lshlrev_b32 v%d, 6, v%d" % (vS2W, vS2W)); a("v_lshl_add_u32 v%d, v%d, 3, v%d" % (vS2W, vG, vS2W)); a("s_lshl_b32 s%d, s%d, 5" % (st0, sJ)); a("v_add3_u32 v%d, v%d, v%d, s%d" % (vS2W, vS2W, vZ, st0))
landed(0, 44 + P["gmat"])
gm = ["global_load_dwordx4 v[%d:%d], v%d, s[%d:%d] sc1" % (GD + 4 * i, GD + 4 * i + 3, vGM, (sB, sB2, sB3)[i], (sB, sB2, sB3)[i] + 1) for i in range(3)]
gissue(gm); gfinish(gm, R(GD, 12), cnt=0x100)
stamp(6)
swapred([GD, GD + 4, GD + 8])
a("v_mov_b32 v%d, v%d" % (vGA, GD)); a("v_add_f32 v%d, 1.0, v%d" % (vCB, GD + 8)); pack(GD + 4); pack(vCB, GD + 2)
a("ds_write_b16 v%d, v%d offset:%d" % (vWV, GD + 2, A_X + 2 * ASTR)); a("ds_write_b16 v%d, v%d offset:%d" % (vWV, GD + 4, A_X + 4 * ASTR))
lin(st0, [(16384, sz), (1024, sx)]); base(sB3, sWS, st0, O_S5U); base(sB, sB3, None, O_S5V - O_S5U); base(sB2, sB3, None, O_S5T - O_S5U)
landed(0, 44 + P["g4at"])
g4 = ["global_load_dwordx4 v[%d:%d], v%d, s[%d:%d] offset:%d sc1" % (GD + 4 * i, GD + 4 * i + 3, vG4, sB4, sB4 + 1, i * 1024) for i in range(2)]
gissue(g4)
if P["g4at"] < 16: landed(0, 60)
trreads(WA, vF1, 512, 4, [(vF1, 0), (vF1, 256)])
stamp(7)
gfinish(g4, R(GD, 8), cnt=0x10000)
stamp(8)
add4(GD, GD + 4); swapred([GD])
a("v_fmac_f32 v%d, v%d, v%d" % (vX, vGA, GD))
a("v_mul_f32 v%d, v%d, v%d" % (GD, vX, vCB)); a("v_mul_f32 v%d, v%d, v%d" % (GD + 3, vX, vX)); pack(GD)
dpp("v_add_f32", GD + 2, vX, vX, "quad_perm:[1,0,3,2]"); dpp("v_add_f32", GD + 3, GD + 3, GD + 3, "quad_perm:[1,0,3,2]")
a("ds_write_b16 v%d, v%d offset:%d" % (vWV, GD, A_X))
dpp("v_add_f32", GD + 2, GD + 2, GD + 2, "quad_perm:[2,3,0,1]"); dpp("v_add_f32", GD + 3, GD + 3, GD + 3, "quad_perm:[2,3,0,1]")
a("ds_write_b64 v%d, v[%d:%d] offset:%d" % (vS2W, GD + 2, GD + 3, A_ST2))
hbar(afrags(vA5, A_X, 4))
for s in range(4):
    a("s_waitcnt lgkmcnt(%d)" % (3 - s))
    for h in range(2): mfma(ACC + 4 * h, vA + 4 * s, WA + 8 * s + 4 * h, s == 0)
for r in range(3):
    a("v_cndmask_b32 v%d, v%d, v%d, s[%d:%d]" % (GD + r, ACC + r, ACC + 4 + r, sHI, sHI + 1)); tag([GD + r])
    sb = (sB3, sB, sB2)[r]
    a("global_store_dword v%d, v%d, s[%d:%d] sc1" % (vP5, GD + r, sb, sb + 1))
stamp(9)
a("s_cmp_lg_u32 s%d, s%d" % (sz, sJ)); a("s_cbranch_scc1 L_fin")
a("s_mul_i32 s%d, s%d, %d" % (st0, sx, 28 * 1024)); base(sB, sWS, st0, O_S6)
a("v_lshrrev_b32 v%d, 3, v%d" % (TMP + 10, vL)); a("v_cmp_gt_u32 s[%d:%d], 7, v%d" % (sMSK, sMSK + 1, TMP + 10)); a("v_min_u32 v%d, 6, v%d" % (TMP + 10, TMP + 10))
a("v_lshl_add_u32 v%d, v%d, 12, v%d" % (TMP + 10, TMP + 10, vJQ))
lin(st0, [(256, sx), (32, sJ)]); base(sB2, sOUT, st0)
a("v_and_b32 v%d, 4, v%d" % (TMP + 11, vL)); a("v_lshlrev_b32 v%d, 9, v%d" % (TMP + 11, TMP + 11)); a("v_and_b32 v%d, 3, v%d" % (TMP + 12, vL))
a("v_lshl_add_u32 v%d, v%d, 3, v%d" % (TMP + 11, TMP + 12, TMP + 11)); a("v_lshl_add_u32 v%d, v%d, 1, v%d" % (TMP + 11, vG, TMP + 11))
a("s_lshl_b32 s%d, s%d, 15" % (st0, sx)); base(sB3, sWS, st0, O_SM + 3 * 8192)
gg = ["global_load_dwordx4 v[%d:%d], v%d, s[%d:%d] sc1" % (GL, GL + 3, vGM, sB3, sB3 + 1)]
gissue(gg); gfinish(gg, R(GL)); swapred([GL]); vGB = GL
if P["d6"]: a("s_sleep %d" % P["d6"])
g6 = ["global_load_dwordx4 v[%d:%d], v%d, s[%d:%d] offset:%d sc1" % (GD + 4 * i, GD + 4 * i + 3, TMP + 10, sB, sB + 1, i * 1024) for i in range(4)]
gissue(g6); gfinish(g6, R(GD, 16), cnt=0x1000000)
add4(GD, GD + 4); add4(GD + 8, GD + 12); add4(GD, GD + 8)
for i in range(4): a("v_cndmask_b32 v%d, 0, v%d, s[%d:%d]" % (GD + i, GD + i, sMSK, sMSK + 1))
swapred([GD])
a("v_fmac_f32 v%d, v%d, v%d" % (vX, vGB, GD)); pack(vX)
a("s_mov_b32 exec_lo, 0x00ff00ff"); a("s_mov_b32 exec_hi, 0x00ff00ff")
a("global_store_short v%d, v%d, s[%d:%d]" % (TMP + 11, vX, sB2, sB2 + 1))
a("s_mov_b64 exec, -1")
stamp(10)
a("s_cmp_lg_u32 s2, 0"); a("s_cbranch_scc1 L_fin")
a("v_mov_b32 v%d, 0" % TMP); a("s_mov_b64 exec, 1")
a("global_store_dword v%d, v%d, s[%d:%d] sc1" % (TMP, vT, sWS, sWS + 1))
a("s_mov_b64 exec, -1")
a("s_branch L_fin")
a.label("L_B")
late_loads(1)
vG1, vQ0, vQ1, vA2, vP2, vM1, vL16, vW4 = TMP + 8, TMP + 9, TMP + 10, TMP + 11, TMP + 12, TMP + 13, TMP + 14, TMP + 15
a("s_lshl_b32 s%d, s%d, 15" % (st0, sx)); base(sB, sWS, st0, O_S1)
a("v_lshrrev_b32 v%d, 3, v%d" % (vG1, vL)); a("v_lshl_add_u32 v%d, v%d, 12, v%d" % (vG1, vG1, vJQ))
a("s_lshl_b32 s%d, s%d, 1" % (st0, sJ)); a("s_and_b32 s%d, s%d, 7" % (st0, st0)); a("s_xor_b32 s%d, s%d, s%d" % (st0, st0, sJ)); a("s_lshl_b32 s%d, s%d, 5" % (st0, st0))
a("s_lshr_b32 s%d, s%d, 2" % (st1, sJ)); a("s_lshl_b32 s%d, s%d, 8" % (st2, st1))
a("v_xor_b32 v%d, s%d, v%d" % (vQ0, st0, vTR5)); a("v_add_u32 v%d, s%d, v%d" % (vQ0, st2, vQ0)); a("v_xor_b32 v%d, 32, v%d" % (vQ1, vQ0))
a("v_bfe_u32 v%d, v%d, 3, 1" % (vA2, vL)); a("v_mul_u32_u24 v%d, %d, v%d" % (vA2, ASTR, vA2)); a("v_lshl_add_u32 v%d, v%d, 4, v%d" % (vA2, vG, vA2)); a("v_add_u32 v%d, v%d, v%d" % (vA2, vA2, vZ))
a("v_lshrrev_b32 v%d, 5, v%d" % (vP2, vL)); a("v_lshl_add_u32 v%d, v%d, 17, v%d" % (vP2, vP2, vPUB))
lin(st0, [(4096 - 512, st1), (8192, sz), (512, sx)]); base(sB2, sWS, st0, O_S2)
a("s_mov_b32 s%d, 0xffff0000" % sMSK); a("s_mov_b32 s%d, 0xffff0000" % (sMSK + 1))
a("s_and_b32 s%d, s%d, 1" % (st0, sz)); a("s_lshl_b32 s%d, s%d, 1" % (sHP, sx)); a("s_add_u32 s%d, s%d, s%d" % (sHP, sHP, st0)); a("s_lshr_b32 s%d, s%d, 1" % (sCB, sz))
a("s_lshr_b32 s%d, s%d, 2" % (st2, sx)); a("s_lshl_b32 s%d, s%d, 1" % (sRB, sz)); a("s_add_u32 s%d, s%d, s%d" % (sRB, sRB, st2)); a("s_and_b32 s%d, s%d, 3" % (sCQ, sx))
a("v_add_u32 v%d, %d, v%d" % (vM1, SL1, vTR2)); a("v_lshlrev_b32 v%d, 4, v%d" % (vL16, vL))
a("v_and_b32 v%d, 1, v%d" % (TMP + 4, vG)); a("v_lshlrev_b32 v%d, 4, v%d" % (TMP + 4, TMP + 4)); a("v_and_b32 v%d, 7, v%d" % (TMP + 5, vL)); a("v_lshl_add_u32 v%d, v%d, 1, v%d" % (TMP + 4, TMP + 5, TMP + 4))
a("v_lshrrev_b32 v%d, 5, v%d" % (TMP + 5, vL)); a("v_add_u32 v%d, v%d, v%d" % (TMP + 4, TMP + 4, TMP + 5))
perm32(TMP + 4, TMP + 4, TMP + 5); a("v_bfe_u32 v%d, v%d, 3, 1" % (TMP + 5, vL)); a("v_mul_u32_u24 v%d, %d, v%d" % (TMP + 5, ASTR, TMP + 5))
a("v_lshl_add_u32 v%d, v%d, 1, v%d" % (TMP + 4, TMP + 4, TMP + 5)); a("s_lshl_b32 s%d, s%d, 6" % (st0, sJ)); a("v_add3_u32 v%d, v%d, v%d, s%d" % (vW4, TMP + 4, vZ, st0))
late_use(1)
landed(1, 4 + P["g1at"])
stamp(3)
g1 = ["global_load_dwordx4 v[%d:%d], v%d, s[%d:%d] offset:%d sc1" % (GD + 4 * i, GD + 4 * i + 3, vG1, sB, sB + 1, i * 1024) for i in range(4)]
gissue(g1)
if P["g1at"] < 16: landed(1, 20)
trreads(WA, vQ0, 512, 4, [(vQ0, 0), (vQ1, 0)])
gfinish(g1, R(GD, 16), cnt=1)
stamp(4)
add4(GD, GD + 4); add4(GD + 8, GD + 12); add4(GD, GD + 8); swapred([GD]); pack(GD)
a("ds_write_b16 v%d, v%d offset:%d" % (vWV, GD, A_X))
hbar(afrags(vA2, A_X, 4))
for s in range(4):
    a("s_waitcnt lgkmcnt(%d)" % (3 - s))
    for h in range(2): mfma(ACC + 4 * h, vA + 4 * s, WA + 8 * s + 4 * h, s == 0)
a("v_cndmask_b32 v%d, v%d, v%d, s[%d:%d]" % (GD, ACC, ACC + 4, sMSK, sMSK + 1)); tag([GD])
a("global_store_dword v%d, v%d, s[%d:%d] sc1" % (vP2, GD, sB2, sB2 + 1))
stamp(5)
a("s_barrier")
lin(st0, [(32768, sHP), (4096, sJ)]); base(sB, sWS, st0, O_S3)
lin(st0, [(16384, sCB), (1024, sHP)]); base(sB2, sWS, st0, O_S4)
p1b(1, vM1, 28)
stamp(6)
a("s_mov_b32 s%d, 0x000fff00" % st2)
landed(1, 28 + P["g3at"])
stamp(7)
g3 = ["global_load_dwordx4 v[%d:%d], v%d, s[%d:%d] offset:%d sc1" % (GD + 4 * k, GD + 4 * k + 3, vL16, sB, sB + 1, k * 1024) for k in range(4)]
gissue(g3)
if P["g3at"] < 16: landed(1, 44)
trreads(WA, vTR2, 256, 8, [(vTR2, 0)])
gfinish(g3, [GD + 2 * k for k in range(8)], cnt=0x100, grp=True)
stamp(8)
for i in range(4): a("v_lshlrev_b32 v%d, 20, v%d" % (GL + i, GD + 4 * i + 1)); a("v_lshlrev_b32 v%d, 8, v%d" % (GL + 4 + i, GD + 4 * i + 3))
for i in range(4): a("v_bfi_b32 v%d, s%d, v%d, v%d" % (GL + i, st2, GL + 4 + i, GL + i))
a("v_max_f32 v%d, v%d, v%d" % (GL + 4, GL, GL + 1)); a("v_max3_f32 v%d, v%d, v%d, v%d" % (GL + 4, GL + 4, GL + 2, GL + 3))
rowred(GL + 4, GL + 5, "v_max_f32")
for i in range(4): a("v_sub_f32 v%d, v%d, v%d" % (GL + i, GL + i, GL + 4))
for i in range(4): a("v_exp_f32 v%d, v%d" % (GL + i, GL + i))
for e in range(4): a("v_mul_f32 v%d, v%d, v%d" % (GD + e, GD + e, GL))
a("v_add_f32 v%d, v%d, v%d" % (GL + 4, GL, GL + 1)); a("v_add_f32 v%d, v%d, v%d" % (GL + 5, GL + 2, GL + 3)); a("v_add_f32 v%d, v%d, v%d" % (GL + 4, GL + 4, GL + 5))
for i in range(1, 4):
    for e in range(4): a("v_fmac_f32 v%d, v%d, v%d" % (GD + e, GD + 4 * i + e, GL + i))
rowred(GL + 4, GL + 5, "v_add_f32")
swapred([GD], ror=False)
a("v_rcp_f32 v%d, v%d" % (GL + 4, GL + 4))
a("v_mul_f32 v%d, v%d, v%d" % (GD, GD, GL + 4)); pack(GD)
a("ds_write_b16 v%d, v%d offset:%d" % (vW4, GD, A_Y))
hbar(afrags(vAF, A_Y, 8))
for s in range(8):
    a("s_waitcnt lgkmcnt(%d)" % (7 - s)); mfma(ACC, vA + 4 * s, WA + 4 * s, s == 0)
tag([ACC])
a("s_mov_b32 exec_hi, 0")
a("global_store_dword v%d, v%d, s[%d:%d] sc1" % (vPUB, ACC, sB2, sB2 + 1))
a("s_mov_b64 exec, -1")
stamp(9)
a("s_barrier")
a("s_cmp_ge_u32 s%d, 14" % sz); a("s_cbranch_scc1 L_fin")
vG5, vGS, vP6, vF2 = TMP + 8, TMP + 9, TMP + 10, TMP + 11
a("s_lshl_b32 s%d, s%d, 13" % (st0, sRB)); base(sB, sWS, st0, O_S5U); base(sB2, sB, None, O_S5V - O_S5U); base(sB3, sB, None, O_S5T - O_S5U)
a("s_lshl_b32 s%d, s%d, 10" % (st0, sz)); base(sB4, sWS, st0, O_S5S)
a("v_lshrrev_b32 v%d, 3, v%d" % (vG5, vL)); a("v_lshl_add_u32 v%d, v%d, 10, v%d" % (vG5, vG5, vJQ))
a("v_and_b32 v%d, 0x38, v%d" % (vGS, vL)); a("v_lshlrev_b32 v%d, 4, v%d" % (vGS, vGS)); a("v_and_b32 v%d, 4, v%d" % (TMP + 4, vL)); a("v_lshl_add_u32 v%d, v%d, 2, v%d" % (vGS, TMP + 4, vGS))
a("v_lshrrev_b32 v%d, 5, v%d" % (vP6, vL)); a("v_mul_u32_u24 v%d, %d, v%d" % (vP6, 28 * 1024, vP6)); lin(st0, [(56 * 1024, sCQ), (1024, sRB)], O_S6); a("v_add3_u32 v%d, v%d, v%d, s%d" % (vP6, vP6, vPUB, st0))
a("v_add_u32 v%d, %d, v%d" % (vF2, SL1, vTR5))
landed(1, 44 + P["g5at"])
stamp(10)
g5 = ["global_load_dwordx4 v[%d:%d], v%d, s[%d:%d] sc1" % (GD + 4 * k, GD + 4 * k + 3, vG5, (sB2, sB3, sB)[k], (sB2, sB3, sB)[k] + 1) for k in range(3)] + \
     ["global_load_dwordx4 v[%d:%d], v%d, s[%d:%d] sc1" % (GL, GL + 3, vGS, sB4, sB4 + 1)]
gissue(g5)
if P["g5at"] < 16: landed(1, 60)
trreads(WA, vF2, 512, 4, [(vF2, 0), (vF2, 256)])
gfinish(g5, R(GD, 12), [GL + 1, GL + 3], cnt=0x10000)
stamp(11)
a("v_permlane32_swap_b32 v%d, v%d" % (GL, GL + 2)); a("v_add_f32 v%d, v%d, v%d" % (GL, GL, GL + 2))
dpp("v_add_f32", GL, GL, GL, "row_ror:8")
a("v_mov_b32 v%d, v%d" % (GL + 1, GL)); a("v_permlane16_swap_b32 v%d, v%d" % (GL, GL + 1)); a("v_add_f32 v%d, v%d, v%d" % (GL, GL, GL + 1))
a("v_mov_b32 v%d, v%d" % (GL + 2, GL)); a("v_permlane32_swap_b32 v%d, v%d" % (GL, GL + 2))
lnstats(GL, GL + 2)
for e in range(4): a("v_fma_f32 v%d, -v%d, v%d, v%d" % (GD + e, GL, GD + e, GD + 8 + e))
for e in range(4): a("v_fma_f32 v%d, v%d, v%d, v%d" % (GD + e, GD + e, GL + 2, GD + 4 + e))
swapred([GD])
a("v_max_f32 v%d, 0, v%d" % (GD, GD)); pack(GD)
a("ds_write_b16 v%d, v%d offset:%d" % (vWV, GD, A_Z))
hbar(afrags(vAF, A_Z, 4))
for s in range(4):
    a("s_waitcnt lgkmcnt(%d)" % (3 - s))
    for h in range(2): mfma(ACC + 4 * h, vA + 4 * s, WA + 8 * s + 4 * h, s == 0)
a("v_cndmask_b32 v%d, v%d, v%d, s[%d:%d]" % (GD, ACC, ACC + 4, sHI, sHI + 1)); tag([GD])
a("global_store_dword v%d, v%d, s[%d:%d] sc1" % (vP6, GD, sWS, sWS + 1))
stamp(12)
a.label("L_fin")
if STAMPS:
    for i in range(4): a("s_sleep 127")
    a("s_waitcnt lgkmcnt(0)")
    a("v_mov_b32 v%d, 0" % TMP); a("s_mov_b64 exec, 1")
    for i in range(NST):
        a("v_mov_b32 v%d, s%d" % (TMP + 2, sSTMP + 2 * i)); a("v_mov_b32 v%d, s%d" % (TMP + 3, sSTMP + 2 * i + 1))
        a("global_store_dwordx2 v%d, v[%d:%d], s[%d:%d] offset:%d" % (TMP, TMP + 2, TMP + 3, sSTB, sSTB + 1, i * 8))
a.label("L_end")
a("s_endpgm")
if P["pf"]: a(".fill 2048, 4, 0xbf810000")
main = a.l; a.l = []
vS5, vS2, vO, vCN, vLA = 16, 17, 18, 19, 20
if P["prio"]: a("s_setprio 2")
a("v_lshrrev_b32 v%d, 5, v%d" % (TMP, vL)); a("s_lshl_b32 s%d, s%d, 2" % (st0, sLD)); a("v_lshl_add_u32 v%d, v%d, 1, s%d" % (TMP + 1, TMP, st0)); a("v_xor_b32 v%d, v%d, v%d" % (vS5, vC, TMP + 1)); a("v_lshlrev_b32 v%d, 4, v%d" % (vS5, vS5))
a("v_and_b32 v%d, 1, v%d" % (TMP + 8, vG))
a("v_mul_u32_u24 v%d, 12288, v%d" % (vO, TMP)); a("v_lshl_add_u32 v%d, v%d, 11, v%d" % (vO, TMP + 8, vO)); a("v_add_u32 v%d, v%d, v%d" % (vO, vO, vS5))
lin(st2, [(32 * 12288, sy), (2 * 12288, sLD), (256, sx)])
a("s_lshl_b32 s%d, s%d, 10" % (sJ, sLD))
a("s_waitcnt lgkmcnt(0)")
class Ld:
    def __init__(self, grp, issued=0): self.grp = grp; self.iss = issued; self.pub = 0; self.known = 0
    def publish(self):
        t = [x for x in THR[self.grp] if self.pub < x <= self.known]
        if t:
            self.pub = self.known
            a("v_mov_b32 v%d, %d" % (vCN, self.known)); a("ds_write_b32 v%d, v%d offset:%d" % (vLA, vCN, F_LAND))
    def item(self, n, slot, step, W=9, i0=0, last=True):
        for i in range(i0, n):
            a("s_add_u32 m0, s%d, %d" % (sJ, slot + i * 4096))
            if self.iss - self.known >= W:
                a("s_waitcnt vmcnt(%d)" % (W - 1)); self.known = self.iss - (W - 1)
            a("global_load_lds_dwordx4 v%d, s[%d:%d]%s" % (vO, sB, sB + 1, NT)); self.iss += 1
            if i != n - 1 or not last: a("s_add_u32 s%d, s%d, %d" % (sB, sB, step)); a("s_addc_u32 s%d, s%d, 0" % (sB + 1, sB + 1))
            self.publish()
    def drain(self):
        for t in sorted(set(x for x in THR[self.grp] if self.known < x <= self.iss) | {self.iss}):
            a("s_waitcnt vmcnt(%d)" % (self.iss - t)); self.known = t; self.publish()
base(sB, sWM, st2)
stamp(8)
l0 = Ld(0); l0.item(4, SLA, 8 * 12288)
stamp(9)
a("s_and_b32 s%d, s%d, 15" % (sz, sy))
a("v_lshl_add_u32 v%d, v%d, 8, v%d" % (vS5, TMP + 8, vS5))
a("s_and_b32 s%d, s%d, 1" % (st0, sLD)); a("s_lshl_b32 s%d, s%d, 3" % (st0, st0)); a("v_lshl_add_u32 v%d, v%d, 1, s%d" % (TMP + 1, vG, st0)); a("v_xor_b32 v%d, v%d, v%d" % (vS2, vC, TMP + 1)); a("v_lshlrev_b32 v%d, 4, v%d" % (vS2, vS2))
a("s_lshl_b32 s%d, s%d, 2" % (st0, sLD)); a("v_add_u32 v%d, s%d, v%d" % (vLA, st0, vZ))
if STAMPS: lin(st0, [(NST * 8 * 12, 2), (NST * 8, sLD)]); base(sSTB, sWS, st0, 128 << 20)
def off5(stride): a("v_mul_u32_u24 v%d, %d, v%d" % (vO, stride, TMP)); a("v_add_u32 v%d, v%d, v%d" % (vO, vO, vS5))
def off2(stride): a("v_mul_u32_u24 v%d, %d, v%d" % (vO, stride, vG)); a("v_add_u32 v%d, v%d, v%d" % (vO, vO, vS2))
a("s_cmp_ge_u32 s2, 128"); a("s_cbranch_scc1 L_ldB")
L = Ld(0, 4)
a("s_lshl_b32 s%d, s%d, 2" % (st0, sLD)); a("v_add_u32 v%d, s%d, v%d" % (TMP + 1, st0, vG)); a("v_xor_b32 v%d, v%d, v%d" % (vO, vC, TMP + 1)); a("v_lshlrev_b32 v%d, 4, v%d" % (vO, vO)); a("v_lshl_add_u32 v%d, v%d, 8, v%d" % (vO, vG, vO))
lin(st0, [(1 << 23, sx), (1 << 16, sz), (1024, sLD)], 28672 * 256); base(sB, sK, st0); base(sB2, sV, st0)
stamp(10)
a("s_barrier")
stamp(11)
L.item(16, SL0, 4096, P["w1"]); stamp(1)
off2(256); a("s_mov_b64 s[%d:%d], s[%d:%d]" % (sB, sB + 1, sB2, sB2 + 1))
L.item(16, SL1, 4096, P["wv"]); stamp(2)
L.drain(); stamp(3)
def mbase(): off2(12288); lin(st0, [(128 * 12288, sMRB), (4 * 12288, sLD), (2048, sMOD), (256, sMCB)], 4096); base(sB, sWM, st0)
mtile(0); mbase()
a("s_barrier")
L.item(P["mpre"], SL0, 16 * 12288, 9, last=False)
for i in range(3): a("s_barrier")
stamp(4)
L.item(8, SL0, 16 * 12288, P["wm"], i0=P["mpre"])
a("s_cmp_ge_u32 s%d, 14" % sz); a("s_cbranch_scc0 L_f1")
import copy
L2 = copy.copy(L); L2.drain(); a("s_branch L_fin")
a.label("L_f1")
off5(7168); lin(st0, [(128 * 7168, sx), (2 * 7168, sLD), (512, sz)]); base(sB, sW1, st0)
L.item(16, SL1, 8 * 7168, P["wf"]); L.drain(); stamp(5)
a("s_cmp_lg_u32 s%d, 0" % sLD); a("s_cbranch_scc1 L_bar1")
a("s_load_dword s%d, s[%d:%d], 0" % (sEP, sWS, sWS + 1))
lin(st0, [(1024, sz), (128, sx)]); base(sB, sWS, st0, O_S5S)
a("v_lshl_add_u32 v%d, v%d, 3, v%d" % (vO, vL, vZ)); a("v_lshlrev_b32 v%d, 4, v%d" % (vCN, TMP))
a("s_waitcnt lgkmcnt(0)")
a("s_add_u32 s%d, s%d, 0x9e5" % (sT, sEP)); a("s_and_b32 s%d, s%d, 0x%x" % (sT, sT, TAGM)); a("s_mul_i32 s%d, s%d, 0x00100101" % (sTW, sT)); a("s_xor_b32 s%d, s%d, 0x5a5a0000" % (sTW, sTW))
a("v_mov_b32 v%d, s%d" % (GD + 5, sTW)); a("v_mov_b32 v%d, s%d" % (GD + 7, sTW))
hbar(["ds_read_b64 v[%d:%d], v%d offset:%d" % (GD, GD + 1, vO, A_ST2)])
a("s_waitcnt lgkmcnt(0)")
allred([GD, GD + 1], 4)
a("v_mov_b32 v%d, v%d" % (GD + 2, GD)); a("v_mov_b32 v%d, v%d" % (GD + 3, GD + 1))
a("v_permlane16_swap_b32 v%d, v%d" % (GD, GD + 2)); a("v_permlane16_swap_b32 v%d, v%d" % (GD + 1, GD + 3))
a("v_add_f32 v%d, v%d, v%d" % (GD + 4, GD, GD + 2)); a("v_add_f32 v%d, v%d, v%d" % (GD + 6, GD + 1, GD + 3))
a("s_mov_b32 exec_lo, 1"); a("s_mov_b32 exec_hi, 1")
a("global_store_dwordx4 v%d, v[%d:%d], s[%d:%d] sc1" % (vCN, GD + 4, GD + 7, sB, sB + 1))
a("s_mov_b64 exec, -1")
stamp(6)
a("s_branch L_fin")
a.label("L_ldB")
L = Ld(1, 4)
off5(8192); lin(st0, [(128 * 8192, sx), (2 * 8192, sLD), (512, sz)]); base(sB, sWQ, st0)
a("s_barrier")
L.item(16, SL0, 8 * 8192, P["w1"]); stamp(1)
mtile(1); mbase()
L.drain(); stamp(7); a("s_barrier"); a("s_barrier")
L.item(8, SL1, 16 * 12288, P["wm"]); stamp(2)
off2(2048); a("s_and_b32 s%d, s%d, 1" % (st1, sz)); a("s_lshr_b32 s%d, s%d, 1" % (st2, sz))
lin(st0, [(512 * 2048, sx), (256 * 2048, st1), (4 * 2048, sLD), (256, st2)]); base(sB, sWO, st0)
L.item(16, SL0, 16 * 2048, P["wo"]); stamp(3)
L.drain(); stamp(4)
a("s_cmp_ge_u32 s%d, 14" % sz); a("s_cbranch_scc1 L_bar2")
off5(2048); a("s_lshr_b32 s%d, s%d, 2" % (st1, sx)); a("s_and_b32 s%d, s%d, 3" % (st2, sx))
lin(st0, [(256 * 2048, sz), (128 * 2048, st1), (2 * 2048, sLD), (512, st2)]); base(sB, sW2, st0)
a("s_barrier"); a("s_barrier"); stamp(5)
L.item(16, SL1, 8 * 2048, P["wf"]); L.drain(); stamp(6)
a("s_branch L_bar1")
a.label("L_bar2"); a("s_barrier")
a.label("L_bar1"); a("s_barrier"); a("s_branch L_fin")
a.l = main[:LOADER_POS] + a.l + main[LOADER_POS:]
a.l = hazard.fix(a.l)
open(OUT, "w").write(wrap(a.text(), 256, 768, LDS, NV))
print(OUT, "LDS", LDS, "lines", len(a.l))
```

```python
import sys, math, struct
from asmlib import *
import hazard
args = sys.argv[1:]
OUT = [x for x in args if x.endswith(".s")][0]
P = dict(stamps=0, nt=1, g1at=16, g2at=32, g3at=16, gmat=8, g4at=16, g5at=16, pf=1, d6=0, prio=1, lsleep=1, w1=7, wv=9, wm=9, wo=9, wf=9, rsleep=0, mpre=7, amp=-1)
for x in args:
    if "=" in x:
        k, v = x.split("="); assert k in P, k; P[k] = int(v)
STAMPS = P["stamps"]; NT = " nt" if P["nt"] else ""
NST = 16; TAGM = 0xfff
AMP = P["amp"]
O_S1 = 0x1000; O_S2 = O_S1 + 0x40000; O_S3 = O_S2 + 0x40000; O_S4 = O_S3 + 0x80000; O_SM = O_S4 + 0x20000
O_S5U = O_SM + 0x40000; O_S5V = O_S5U + 0x38000; O_S5T = O_S5V + 0x38000; O_S6 = O_S5T + 0x38000; O_S5S = O_S6 + 0x38000
SL0, SL1, SLA = 0, 65536, 131072
LS = 147456
F_LAND = 0
F_BAR = 16
B_P1A, B_QF, B_P2, B_MF, B_P4, B_P6, B_Q, B_MX, B_P, B_P5 = range(10)
A_ST1 = 128
A_ST2 = A_ST1 + 256
A_MX = A_ST2 + 512
A_LS = A_MX + 256
ASTR = 576
A_C1 = A_LS + 2048
A_C2 = A_C1 + 2 * ASTR
A_X = A_C2 + 2 * ASTR
A_Y = A_X + 2 * ASTR
A_Z = A_X + 4 * ASTR
A_Q = A_X + 6 * ASTR
A_P = A_Q + 8 * 288
LDS = LS + A_P + 8 * 544
assert LDS <= 163840, LDS
sJ = 3
sX, sK, sV, sWQ, sWO, sW1, sW2, sC, sWM, sOUT, sDBG, sWS = 4, 6, 8, 10, 12, 16, 18, 20, 22, 24, 26, 28
sx, sy, sz, sT, sTM, sTO, sTW = 30, 31, 14, 32, 33, 34, 35
sONES = 36; sHI = 54
sB, sB2, sB3, sB4 = 38, 40, 56, 58
st0, st1, st2, st3 = 42, 43, 44, 45
sHP, sCB, sRB, sCQ = 46, 47, 51, 15
sMOD, sMCB, sMRB = 94, 95, 96
sSTB = 48; sEP = 50; sMSK = 52; sSTMP = 60; sGRP = 92; sLD = 93
vL, vG, vC, vT, vTW, vJQ, vPUB, vZ, vONE, vFL, vTR5, vTR2, vAF, vX, vXD = range(1, 16)
vA = 16; WA = 48; WB = 80; GD = 112; GL = 128; ACC = 136; TMP = 144
vGA, vCB, vXS = 164, 165, 166
NV = 168
a = Asm()
def stamp(i):
    if STAMPS or (AMP >= 0 and i in (0, AMP)): a("s_memrealtime s[%d:%d]" % (sSTMP + 2 * i, sSTMP + 2 * i + 1))
def base(dst, src, off=None, imm=0):
    if off is not None:
        if imm: a("s_add_u32 s%d, s%d, %d" % (off, off, imm))
        a("s_add_u32 s%d, s%d, s%d" % (dst, src, off)); a("s_addc_u32 s%d, s%d, 0" % (dst + 1, src + 1))
    else:
        a("s_add_u32 s%d, s%d, %d" % (dst, src, imm)); a("s_addc_u32 s%d, s%d, 0" % (dst + 1, src + 1))
def lin(dst, terms, imm=0):
    first = True
    for coef, r in terms:
        t = dst if first else st3
        if coef & (coef - 1) == 0: a("s_lshl_b32 s%d, s%d, %d" % (t, r, coef.bit_length() - 1))
        else: a("s_mul_i32 s%d, s%d, %d" % (t, r, coef))
        if not first: a("s_add_u32 s%d, s%d, s%d" % (dst, dst, t))
        first = False
    if imm: a("s_add_u32 s%d, s%d, %d" % (dst, dst, imm))
def R(r, n=4): return list(range(r, r + n))
def dpp(op, d, s0, s1, ctl, extra="row_mask:0xf bank_mask:0xf"):
    a("%s_dpp v%d, v%d, v%d %s %s" % (op, d, s0, s1, ctl, extra))
def allred(rs, steps, op="v_add_f32"):
    for ctl in ("quad_perm:[1,0,3,2]", "quad_perm:[2,3,0,1]", "row_half_mirror", "row_mirror")[:steps]:
        for r in rs: dpp(op, r, r, r, ctl)
def swapred(ds, ror=True):
    for d in ds:
        a("v_permlane32_swap_b32 v%d, v%d" % (d, d + 2)); a("v_permlane32_swap_b32 v%d, v%d" % (d + 1, d + 3))
    for d in ds:
        a("v_add_f32 v%d, v%d, v%d" % (d, d, d + 2)); a("v_add_f32 v%d, v%d, v%d" % (d + 1, d + 1, d + 3))
    for d in ds: a("v_permlane16_swap_b32 v%d, v%d" % (d, d + 1))
    for d in ds: a("v_add_f32 v%d, v%d, v%d" % (d, d, d + 1))
    if ror:
        for d in ds: dpp("v_add_f32", d, d, d, "row_ror:8")
def rowred(r, t, op):
    a("v_mov_b32 v%d, v%d" % (t, r)); a("v_permlane16_swap_b32 v%d, v%d" % (r, t)); a("%s v%d, v%d, v%d" % (op, r, r, t))
    a("v_mov_b32 v%d, v%d" % (t, r)); a("v_permlane32_swap_b32 v%d, v%d" % (r, t)); a("%s v%d, v%d, v%d" % (op, r, r, t))
def add4(d, s):
    for h in (0, 2): a("v_pk_add_f32 v[%d:%d], v[%d:%d], v[%d:%d]" % (d + h, d + h + 1, d + h, d + h + 1, s + h, s + h + 1))
def check(tag_regs, word_regs=(), grp=False):
    t = TMP
    a("v_xor_b32 v%d, v%d, v%d" % (t, tag_regs[0], vT))
    for r in tag_regs[1:]: a("v_bitop3_b32 v%d, v%d, v%d, v%d bitop3:0xbe" % (t, r, vT, t))
    a("v_and_b32 v%d, s%d, v%d" % (t, sTM, t))
    for r in word_regs: a("v_bitop3_b32 v%d, v%d, v%d, v%d bitop3:0xbe" % (t, r, vTW, t))
    if grp: allred([t], 3, "v_or_b32")
    a("v_cmp_ne_u32 vcc, 0, v%d" % t)
def gissue(loads):
    for x in loads: a(x)
def gfinish(loads, tag_regs, word_regs=(), cnt=None, grp=False, nyoung=0):
    ok, lp = a.lab("Ok"), a.lab("Rp")
    a("s_waitcnt vmcnt(%d)" % nyoung)
    check(tag_regs, word_regs)
    a("s_cbranch_vccz %s" % ok)
    if grp: allred([TMP], 3, "v_or_b32"); a("v_cmp_ne_u32 vcc, 0, v%d" % TMP)
    a.label(lp)
    a("s_mov_b64 exec, vcc")
    if P["rsleep"]: a("s_sleep %d" % P["rsleep"])
    if STAMPS and cnt is not None: a("s_add_u32 s%d, s%d, %d" % (sSTMP + 30, sSTMP + 30, cnt))
    for x in loads: a(x)
    a("s_waitcnt vmcnt(0)")
    check(tag_regs, word_regs, grp)
    a("s_sub_u32 s%d, s%d, 1" % (sTO, sTO))
    a("s_cbranch_scc1 %s_to" % ok)
    a("s_cbranch_vccnz %s" % lp)
    a("s_branch %s_dn" % ok)
    a.label(ok + "_to"); a("s_mov_b32 s%d, 0" % sTO)
    a.label(ok + "_dn"); a("s_mov_b64 exec, -1"); a("s_nop 1")
    a.label(ok)
def mfma(acc, A, B, first):
    a("v_mfma_f32_16x16x32_bf16 v[%d:%d], v[%d:%d], v[%d:%d], %s" % (acc, acc + 3, A, A + 3, B, B + 3, "0" if first else "v[%d:%d]" % (acc, acc + 3)))
def pack(r, d=None): a("v_cvt_pk_bf16_f32 v%d, v%d, v%d" % (r if d is None else d, r, r))
def tag(rs):
    for r in rs: a("v_bfi_b32 v%d, s%d, v%d, v%d" % (r, sTM, vT, r))
def silu(r, t):
    a("v_mul_f32 v%d, 0xbfb8aa3b, v%d" % (t, r)); a("v_exp_f32 v%d, v%d" % (t, t)); a("v_add_f32 v%d, 1.0, v%d" % (t, t))
    a("v_rcp_f32 v%d, v%d" % (t, t)); a("v_mul_f32 v%d, v%d, v%d" % (r, r, t))
def lnstats(s, q):
    a("v_mul_f32 v%d, 0x3a800000, v%d" % (s, s)); a("v_mul_f32 v%d, 0x3a800000, v%d" % (q, q))
    a("v_fma_f32 v%d, -v%d, v%d, v%d" % (q, s, s, q)); a("v_max_f32 v%d, 0, v%d" % (q, q))
    a("v_add_f32 v%d, 0x3727c5ac, v%d" % (q, q)); a("v_rsq_f32 v%d, v%d" % (q, q))
def arrive(k):
    a("ds_write_b8 v%d, v%d offset:%d" % (vFL, vONE, F_BAR + 8 * k))
def spin(k, reads=(), sleep=0):
    l, ok = a.lab("Sp"), a.lab("So")
    a.label(l)
    a("ds_read_b64 v[%d:%d], v%d offset:%d" % (TMP + 2, TMP + 3, vZ, F_BAR + 8 * k))
    for x in reads: a(x)
    a("s_waitcnt lgkmcnt(%d)" % min(len(reads), 15))
    a("v_cmp_ne_u64 vcc, s[%d:%d], v[%d:%d]" % (sONES, sONES + 1, TMP + 2, TMP + 3))
    a("s_cbranch_vccz %s" % ok)
    if sleep: a("s_sleep %d" % sleep)
    a("s_sub_u32 s%d, s%d, 1" % (sTO, sTO)); a("s_cbranch_scc0 %s" % l)
    a("s_mov_b32 s%d, 0" % sTO)
    a.label(ok)
def hbar(reads=()):
    a("s_waitcnt lgkmcnt(0)"); a("s_barrier")
    for x in reads: a(x)
THR = {0: set(), 1: set()}
def landed(grp, thr):
    for g in ((0, 1) if grp is None else (grp,)): THR[g].add(thr)
    l, ok = a.lab("La"), a.lab("Lo")
    a.label(l)
    a("ds_read_b128 v[%d:%d], v%d offset:%d" % (TMP + 4, TMP + 7, vZ, F_LAND))
    a("s_waitcnt lgkmcnt(0)")
    a("v_min_u32 v%d, v%d, v%d" % (TMP + 4, TMP + 4, TMP + 5)); a("v_min3_u32 v%d, v%d, v%d, v%d" % (TMP + 4, TMP + 4, TMP + 6, TMP + 7))
    a("v_cmp_gt_u32 vcc, %d, v%d" % (thr, TMP + 4))
    a("s_cbranch_vccz %s" % ok)
    a("s_sleep %d" % P["lsleep"])
    a("s_sub_u32 s%d, s%d, 1" % (sTO, sTO)); a("s_cbranch_scc0 %s" % l)
    a("s_mov_b32 s%d, 0" % sTO)
    a.label(ok)
def trreads(W, va, RS, nst, halves):
    for s in range(nst):
        for h, (r, o) in enumerate(halves):
            for hh in range(2):
                d = W + (s * len(halves) + h) * 4 + 2 * hh
                a("ds_read_b64_tr_b16 v[%d:%d], v%d offset:%d" % (d, d + 1, r, s * 32 * RS + hh * 8 * RS + o))
def afrags(va, off, n, d=vA): return ["ds_read_b128 v[%d:%d], v%d offset:%d" % (d + 4 * s, d + 4 * s + 3, va, off + s * 64) for s in range(n)]
def perm32(d, s, t):
    a("v_lshrrev_b32 v%d, 1, v%d" % (t, s)); a("v_xor_b32 v%d, v%d, v%d" % (t, t, s)); a("v_and_b32 v%d, 4, v%d" % (t, t))
    a("v_mul_u32_u24 v%d, 3, v%d" % (t, t)); a("v_xor_b32 v%d, v%d, v%d" % (d, s, t))

a("s_cmp_ge_u32 s2, 256"); a("s_cbranch_scc1 L_end")
stamp(0)
a("s_load_dwordx8 s[20:27], s[0:1], 64")
a("s_load_dwordx16 s[4:19], s[0:1], 0")
a("s_load_dwordx2 s[28:29], s[0:1], 96")
a("v_lshrrev_b32 v2, 6, v0"); a("v_and_b32 v1, 63, v0"); a("v_readfirstlane_b32 s%d, v2" % sLD)
a("v_lshrrev_b32 v%d, 4, v%d" % (vG, vL)); a("v_and_b32 v%d, 15, v%d" % (vC, vL))
a("s_and_b32 s%d, s2, 7" % sx); a("s_lshr_b32 s%d, s2, 3" % sy)
a("s_mov_b32 s%d, 400000" % sTO); a("v_mov_b32 v%d, %d" % (vZ, LS))
a("s_mov_b32 s%d, 0x01010101" % sONES); a("s_mov_b32 s%d, 0x01010101" % (sONES + 1))
if STAMPS:
    for i in range(1, NST): a("s_mov_b64 s[%d:%d], 0" % (sSTMP + 2 * i, sSTMP + 2 * i + 1))
a("s_cmp_ge_u32 s%d, 4" % sLD); a("s_cbranch_scc1 L_comp")
LOADER_POS = len(a.l)
a.label("L_comp")
a("s_sub_u32 s%d, s%d, 4" % (sJ, sLD))
a("v_lshrrev_b32 v%d, 5, v%d" % (TMP, vL)); a("v_lshlrev_b32 v%d, 11, v%d" % (TMP + 1, TMP)); a("v_and_b32 v%d, 31, v%d" % (TMP + 2, vL))
a("v_lshl_add_u32 v%d, v%d, 1, v%d" % (TMP + 3, TMP + 2, TMP + 1))
a("s_lshl_b32 s%d, s%d, 6" % (st0, sy)); a("v_add_u32 v%d, s%d, v%d" % (TMP + 4, st0, TMP + 3))
a("v_lshl_add_u32 v%d, v%d, 3, v%d" % (TMP + 5, TMP + 2, TMP + 1)); a("s_lshl_b32 s%d, s%d, 8" % (st0, sJ)); a("v_add_u32 v%d, s%d, v%d" % (TMP + 5, st0, TMP + 5))
lin(st1, [(256, sx), (32, sJ)])
a("v_and_b32 v%d, 1, v%d" % (TMP + 6, vG)); a("v_lshlrev_b32 v%d, 11, v%d" % (TMP + 6, TMP + 6)); a("v_lshl_add_u32 v%d, v%d, 1, v%d" % (TMP + 6, vC, TMP + 6)); a("v_add_u32 v%d, s%d, v%d" % (TMP + 6, st1, TMP + 6))
a("v_mov_b32 v%d, 0" % (TMP + 8)); a("v_lshl_add_u32 v%d, v%d, 2, v%d" % (TMP + 9, TMP + 2, vZ))
a("ds_write_b32 v%d, v%d" % (TMP + 9, TMP + 8))
a("s_waitcnt lgkmcnt(0)")
a("global_load_ushort v%d, v%d, s[%d:%d]" % (GL, TMP + 4, sC, sC + 1))
a("global_load_dwordx2 v[%d:%d], v%d, s[%d:%d]" % (vXS, vXS + 1, TMP + 5, sX, sX + 1))
a("global_load_ushort v%d, v%d, s[%d:%d]" % (vXD, TMP + 6, sX, sX + 1))
a("s_load_dword s%d, s[%d:%d], 0" % (sEP, sWS, sWS + 1))
a("s_and_b32 s%d, s%d, 15" % (sz, sy))
if P["pf"]:
    a("s_cmp_lg_u32 s%d, 15" % sy); a("s_cbranch_scc1 L_nopf")
    a("s_getpc_b64 s[%d:%d]" % (sB, sB + 1)); a("s_lshl_b32 s%d, s%d, 10" % (st0, sJ)); a("v_lshl_add_u32 v%d, v%d, 4, s%d" % (TMP + 6, vL, st0))
    a("global_load_dwordx4 v[%d:%d], v%d, s[%d:%d]" % (GD + 8, GD + 11, TMP + 6, sB, sB + 1))
    a.label("L_nopf")
a("s_barrier")
a("s_mov_b32 s%d, 0x%x" % (sTM, TAGM)); a("s_mov_b32 s%d, 0" % sHI); a("s_mov_b32 s%d, -1" % (sHI + 1))
a("v_mov_b32 v%d, 1" % vONE); a("v_add_u32 v%d, s%d, v%d" % (vFL, sJ, vZ))
a("s_lshl_b32 s%d, s%d, 7" % (st0, sJ)); a("v_and_b32 v%d, 7, v%d" % (TMP + 4, vL)); a("v_lshl_add_u32 v%d, v%d, 4, s%d" % (vJQ, TMP + 4, st0))
a("v_lshl_add_u32 v%d, v%d, 2, s%d" % (vPUB, TMP + 2, st0))
vKEY, vROW = TMP + 16, TMP + 17
a("v_bfe_u32 v%d, v%d, 2, 3" % (vKEY, vL)); a("v_lshl_add_u32 v%d, v%d, 4, v%d" % (vROW, TMP, vKEY))
a("v_xor_b32 v%d, s%d, v%d" % (TMP + 4, sJ, vKEY)); a("v_lshlrev_b32 v%d, 5, v%d" % (TMP + 4, TMP + 4)); a("v_and_b32 v%d, 3, v%d" % (TMP + 5, vL)); a("v_lshl_add_u32 v%d, v%d, 3, v%d" % (TMP + 4, TMP + 5, TMP + 4))
a("v_lshl_add_u32 v%d, v%d, 9, v%d" % (vTR5, vROW, TMP + 4)); a("v_lshl_add_u32 v%d, v%d, 8, v%d" % (vTR2, vROW, TMP + 4))
a("v_bfe_u32 v%d, v%d, 2, 1" % (TMP + 4, vL)); a("v_mul_u32_u24 v%d, %d, v%d" % (TMP + 4, ASTR, TMP + 4)); a("v_lshl_add_u32 v%d, v%d, 4, v%d" % (TMP + 4, vG, TMP + 4)); a("v_add_u32 v%d, v%d, v%d" % (vAF, TMP + 4, vZ))
vW32 = TMP + 18
perm32(TMP + 4, TMP + 2, TMP + 5); a("v_mul_u32_u24 v%d, %d, v%d" % (TMP + 5, ASTR, TMP)); a("v_lshl_add_u32 v%d, v%d, 1, v%d" % (TMP + 4, TMP + 4, TMP + 5)); a("v_add_u32 v%d, v%d, v%d" % (vW32, TMP + 4, vZ))
vWV = TMP + 19
a("v_and_b32 v%d, 3, v%d" % (TMP + 4, vL)); a("v_lshl_add_u32 v%d, v%d, 2, v%d" % (TMP + 4, TMP + 4, vG)); a("s_lshl_b32 s%d, s%d, 4" % (st0, sJ)); a("v_add_u32 v%d, s%d, v%d" % (TMP + 4, st0, TMP + 4))
perm32(TMP + 4, TMP + 4, TMP + 5); a("v_bfe_u32 v%d, v%d, 2, 1" % (TMP + 5, vL)); a("v_mul_u32_u24 v%d, %d, v%d" % (TMP + 5, ASTR, TMP + 5))
a("v_lshl_add_u32 v%d, v%d, 1, v%d" % (TMP + 4, TMP + 4, TMP + 5)); a("v_add_u32 v%d, v%d, v%d" % (vWV, TMP + 4, vZ))
a("v_and_b32 v%d, 1, v%d" % (TMP + 4, vG)); a("v_lshlrev_b32 v%d, 7, v%d" % (TMP + 10, TMP)); a("v_lshl_add_u32 v%d, v%d, 3, v%d" % (TMP + 10, TMP + 4, TMP + 10)); a("v_add3_u32 v%d, v%d, v%d, s%d" % (TMP + 10, TMP + 10, vZ, st0))
a("v_lshlrev_b32 v%d, 7, v%d" % (TMP + 11, TMP + 4)); a("v_lshl_add_u32 v%d, v%d, 3, v%d" % (TMP + 11, vC, TMP + 11)); a("v_add_u32 v%d, v%d, v%d" % (TMP + 11, TMP + 11, vZ))
a("v_add_u32 v%d, %d, v%d" % (TMP + 12, SLA, vTR5))
lin(st1, [(32768, sx), (1024, sy)]); base(sB, sWS, st1, O_S1)
if STAMPS: lin(st0, [(NST * 8 * 12, 2), (NST * 8, sLD)]); base(sSTB, sWS, st0, 128 << 20)
a("s_mov_b32 s%d, 0x3f803f80" % st0)
a("s_cmp_eq_u32 s%d, 0" % sy); a("s_cselect_b32 s%d, 1.0, 0" % st2)
a("s_waitcnt vmcnt(0)")
a("v_dot2_f32_bf16 v%d, v%d, s%d, 0" % (GD, vXS, st0)); a("v_dot2_f32_bf16 v%d, v%d, v%d, 0" % (GD + 1, vXS, vXS))
a("v_dot2_f32_bf16 v%d, v%d, s%d, v%d" % (GD, vXS + 1, st0, GD)); a("v_dot2_f32_bf16 v%d, v%d, v%d, v%d" % (GD + 1, vXS + 1, vXS + 1, GD + 1))
a("v_lshlrev_b32 v%d, 16, v%d" % (GL, GL))
a("v_mul_f32 v%d, 0xbfb8aa3b, v%d" % (GL + 2, GL)); a("v_exp_f32 v%d, v%d" % (GL + 2, GL + 2))
allred([GD, GD + 1], 2)
a("v_add_f32 v%d, 1.0, v%d" % (GL + 2, GL + 2)); a("v_rcp_f32 v%d, v%d" % (GL + 2, GL + 2))
for r in (GD, GD + 1): dpp("v_add_f32", r, r, r, "row_half_mirror")
a("v_mul_f32 v%d, v%d, v%d" % (GL, GL, GL + 2)); pack(GL)
for r in (GD, GD + 1): dpp("v_add_f32", r, r, r, "row_mirror")
a("ds_write_b16 v%d, v%d offset:%d" % (vW32, GL, A_C1))
a("ds_write_b64 v%d, v[%d:%d] offset:%d" % (TMP + 10, GD, GD + 1, A_ST1))
arrive(B_P1A)
a("v_lshlrev_b32 v%d, 16, v%d" % (vXD, vXD))
a("s_waitcnt lgkmcnt(0)")
a("s_add_u32 s%d, s%d, 0x9e5" % (sT, sEP)); a("s_and_b32 s%d, s%d, s%d" % (sT, sT, sTM)); a("v_mov_b32 v%d, s%d" % (vT, sT))
a("s_mul_i32 s%d, s%d, 0x00100101" % (sTW, sT)); a("s_xor_b32 s%d, s%d, 0x5a5a0000" % (sTW, sTW)); a("v_mov_b32 v%d, s%d" % (vTW, sTW))
spin(B_P1A)
for x in ["ds_read_b64 v[%d:%d], v%d offset:%d" % (GD, GD + 1, TMP + 11, A_ST1)] + afrags(vAF, A_C1, 1): a(x)
a("s_waitcnt lgkmcnt(0)")
allred([GD, GD + 1], 4); lnstats(GD, GD + 1)
a("v_sub_f32 v%d, v%d, v%d" % (vXD, vXD, GD)); a("v_mul_f32 v%d, v%d, v%d" % (vXD, vXD, GD + 1))
landed(None, 4)
stamp(1)
trreads(WA, TMP + 12, 512, 1, [(TMP + 12, 0), (TMP + 12, 256)])
a("s_waitcnt lgkmcnt(0)")
mfma(ACC + 4, vA, WA + 4, True); mfma(ACC, vA, WA, True)
a("v_add_f32 v%d, s%d, v%d" % (ACC + 4, st2, ACC + 4)); a("v_fmac_f32 v%d, v%d, v%d" % (ACC, vXD, ACC + 4)); tag([ACC])
a("s_mov_b32 exec_hi, 0")
a("global_store_dword v%d, v%d, s[%d:%d] sc1" % (vPUB, ACC, sB, sB + 1))
a("s_mov_b64 exec, -1")
stamp(2)
def mtile(grp):
    if grp == 0:
        a("s_and_b32 s%d, s%d, 7" % (sMCB, sz)); a("s_and_b32 s%d, s%d, 3" % (sMOD, sx))
        a("s_lshr_b32 s%d, s%d, 2" % (sMRB, sx)); a("s_lshr_b32 s%d, s%d, 3" % (st0, sz)); a("s_lshl_b32 s%d, s%d, 1" % (st0, st0)); a("s_add_u32 s%d, s%d, s%d" % (sMRB, sMRB, st0)); a("s_add_u32 s%d, s%d, 4" % (sMRB, sMRB))
    else:
        a("s_lshr_b32 s%d, s%d, 1" % (sMCB, sz)); a("s_xor_b32 s%d, s%d, 1" % (sMCB, sMCB)); a("s_and_b32 s%d, s%d, 3" % (sMOD, sx))
        a("s_lshr_b32 s%d, s%d, 2" % (sMRB, sx)); a("s_and_b32 s%d, s%d, 1" % (st0, sz)); a("s_lshl_b32 s%d, s%d, 1" % (st0, st0)); a("s_add_u32 s%d, s%d, s%d" % (sMRB, sMRB, st0))
def late_loads(grp):
    mtile(grp)
    a("v_and_b32 v%d, 4, v%d" % (TMP + 5, vL)); a("v_lshlrev_b32 v%d, 9, v%d" % (TMP + 5, TMP + 5)); a("v_and_b32 v%d, 3, v%d" % (TMP + 6, vL))
    a("v_lshl_add_u32 v%d, v%d, 3, v%d" % (TMP + 5, TMP + 6, TMP + 5)); a("v_lshl_add_u32 v%d, v%d, 1, v%d" % (TMP + 5, vG, TMP + 5))
    lin(st0, [(256, sMRB), (32, sJ)]); a("v_add_u32 v%d, s%d, v%d" % (TMP + 6, st0, TMP + 5))
    a("global_load_ushort v%d, v%d, s[%d:%d]" % (vGA, TMP + 6, sC, sC + 1))
    if grp == 0:
        lin(st0, [(256, sx), (32, sJ)]); a("v_add_u32 v%d, s%d, v%d" % (TMP + 6, st0, TMP + 5))
        a("global_load_ushort v%d, v%d, s[%d:%d]" % (vX, TMP + 6, sX, sX + 1))
def late_use(grp):
    a("s_waitcnt vmcnt(0)")
    a("v_lshlrev_b32 v%d, 16, v%d" % (vGA, vGA)); silu(vGA, vCB); pack(vGA)
    a("ds_write_b16 v%d, v%d offset:%d" % (vWV, vGA, A_C2))
    if grp == 0: a("v_lshlrev_b32 v%d, 16, v%d" % (vX, vX))
def p1b(grp, va, thr):
    for x in afrags(vAF, A_C2, 4): a(x)
    lin(st0, [(32768, sMCB), (8192, sMOD), (1024, sMRB)]); base(sB3, sWS, st0, O_SM)
    landed(grp, thr)
    trreads(WA, va, 256, 4, [(va, 0)])
    for s in range(4):
        a("s_waitcnt lgkmcnt(%d)" % (6 - 2 * s)); mfma(ACC, vA + 4 * s, WA + 4 * s, s == 0)
    tag([ACC])
    a("s_mov_b32 exec_hi, 0")
    a("global_store_dword v%d, v%d, s[%d:%d] sc1" % (vPUB, ACC, sB3, sB3 + 1))
    a("s_mov_b64 exec, -1")
a("s_cmp_ge_u32 s2, 128"); a("s_cbranch_scc1 L_B")
late_loads(0)
vL16, vQW, vQA, vMW, vPW, vPA, vVA, vVB, vS3, vH2, vSH, vMR = TMP + 8, TMP + 9, TMP + 10, TMP + 11, TMP + 12, TMP + 13, TMP + 14, TMP + 15, vXS, vXS + 1, vXD, TMP + 18
lin(st0, [(32768, sx), (4096, sJ)]); base(sB, sWS, st0, O_S2)
a("v_lshlrev_b32 v%d, 4, v%d" % (vL16, vL))
a("v_and_b32 v%d, 31, v%d" % (vQW, vL)); a("v_lshlrev_b32 v%d, 3, v%d" % (vQW, vQW)); a("v_lshrrev_b32 v%d, 5, v%d" % (TMP + 4, vL)); a("v_lshl_add_u32 v%d, v%d, 2, v%d" % (vQW, TMP + 4, vQW))
a("s_mul_i32 s%d, s%d, 288" % (st0, sJ)); a("v_add3_u32 v%d, v%d, v%d, s%d" % (vQW, vQW, vZ, st0))
a("v_and_b32 v%d, 7, v%d" % (TMP + 4, vL))
a("v_mul_u32_u24 v%d, 288, v%d" % (vQA, TMP + 4)); a("v_lshl_add_u32 v%d, v%d, 4, v%d" % (vQA, vG, vQA)); a("v_add_u32 v%d, v%d, v%d" % (vQA, vQA, vZ))
a("v_lshl_add_u32 v%d, v%d, 5, v%d" % (vMR, TMP + 4, vZ)); a("s_lshl_b32 s%d, s%d, 2" % (st0, sJ)); a("v_add_u32 v%d, s%d, v%d" % (vMW, st0, vMR))
a("v_mul_u32_u24 v%d, 544, v%d" % (vPA, TMP + 4)); a("v_add_u32 v%d, v%d, v%d" % (vPA, vPA, vZ))
a("v_and_b32 v%d, 1, v%d" % (TMP + 4, vG)); a("v_lshlrev_b32 v%d, 4, v%d" % (vPW, TMP + 4)); a("v_and_b32 v%d, 2, v%d" % (TMP + 5, vG)); a("v_lshl_add_u32 v%d, v%d, 2, v%d" % (vPW, TMP + 5, vPW))
a("s_lshl_b32 s%d, s%d, 6" % (st0, sJ)); a("v_add3_u32 v%d, v%d, v%d, s%d" % (vPW, vPW, vPA, st0))
a("v_and_b32 v%d, 8, v%d" % (TMP + 6, vL)); a("v_lshl_add_u32 v%d, v%d, 2, v%d" % (vPW, TMP + 6, vPW))
vLW, vLR = TMP + 16, TMP + 17
a("v_and_b32 v%d, 7, v%d" % (vLW, vL)); a("v_lshlrev_b32 v%d, 8, v%d" % (vLW, vLW)); a("v_lshrrev_b32 v%d, 3, v%d" % (TMP + 6, vL)); a("v_lshl_add_u32 v%d, v%d, 2, v%d" % (vLW, TMP + 6, vLW))
a("s_lshl_b32 s%d, s%d, 5" % (st0, sJ)); a("v_add3_u32 v%d, v%d, v%d, s%d" % (vLW, vLW, vZ, st0))
a("s_mov_b32 s%d, 0xff00ff00" % sMSK); a("s_mov_b32 s%d, 0xff00ff00" % (sMSK + 1))
a("v_lshl_add_u32 v%d, v%d, 4, v%d" % (vPA, vG, vPA))
a("v_lshl_add_u32 v%d, v%d, 2, v%d" % (TMP + 4, TMP + 4, TMP + 5))
a("v_lshlrev_b32 v%d, 14, v%d" % (vS3, TMP + 4)); a("v_lshl_add_u32 v%d, v%d, 3, v%d" % (vS3, vC, vS3))
a("v_lshlrev_b32 v%d, 5, v%d" % (vH2, TMP + 4)); a("v_lshl_add_u32 v%d, v%d, 2, v%d" % (vH2, vC, vH2)); a("v_lshl_add_u32 v%d, v%d, 3, v%d" % (vLR, vH2, vZ)); a("v_add_u32 v%d, v%d, v%d" % (vH2, vH2, vZ))
a("v_and_b32 v%d, 1, v%d" % (vSH, vL)); a("v_mul_u32_u24 v%d, 12, v%d" % (vSH, vSH)); a("v_sub_u32 v%d, 20, v%d" % (vSH, vSH))
a("s_lshl_b32 s%d, s%d, 1" % (st0, sJ)); a("s_and_b32 s%d, s%d, 7" % (st0, st0)); a("s_xor_b32 s%d, s%d, s%d" % (st0, st0, sJ)); a("s_lshl_b32 s%d, s%d, 5" % (st0, st0))
a("v_xor_b32 v%d, s%d, v%d" % (vVA, st0, vTR2)); a("v_add_u32 v%d, %d, v%d" % (vVA, SL1, vVA)); a("v_xor_b32 v%d, 32, v%d" % (vVB, vVA))
a("s_and_b32 s%d, s%d, 3" % (st1, sx)); a("s_lshr_b32 s%d, s%d, 2" % (st2, sx))
lin(st0, [(8 * 16384, st1), (4096, sJ), (256, sz), (128, st2)]); base(sB2, sWS, st0, O_S3); base(sB3, sB2, None, 16384)
SC = struct.unpack("<I", struct.pack("<f", 128 ** -0.5 * math.log2(math.e)))[0]
a("s_mov_b32 s%d, 0x%08x" % (st1, SC))
a("v_xor_b32 v%d, v%d, v%d" % (GL, vC, vG)); a("v_lshlrev_b32 v%d, 4, v%d" % (GL, GL)); a("v_lshl_add_u32 v%d, v%d, 8, v%d" % (GL, vC, GL))
a("s_lshl_b32 s%d, s%d, 13" % (st0, sJ)); a("v_add_u32 v%d, s%d, v%d" % (GL, st0, GL))
for s in range(1, 4): a("v_xor_b32 v%d, %d, v%d" % (GL + s, s << 6, GL))
late_use(0)
landed(0, 20)
for s in range(4):
    for t in range(2): a("ds_read_b128 v[%d:%d], v%d offset:%d" % (WA + 16 * t + 4 * s, WA + 16 * t + 4 * s + 3, GL + s, SL0 + t * 4096))
landed(0, 4 + P["g2at"])
stamp(3)
g2 = ["global_load_dwordx4 v[%d:%d], v%d, s[%d:%d] offset:%d sc1" % (GD + 4 * i, GD + 4 * i + 3, vL16, sB, sB + 1, i * 1024) for i in range(4)]
gissue(g2)
a("s_cmp_ge_u32 s%d, 4" % sJ); a("s_cbranch_scc1 L_nv1")
landed(0, 36)
trreads(WB, vVA, 256, 8, [(vVA, 0)]); trreads(vA, vVB, 256, 8, [(vVB, 0)])
a.label("L_nv1")
gfinish(g2, R(GD, 16), cnt=1)
stamp(4)
add4(GD, GD + 4); add4(GD + 8, GD + 12); add4(GD, GD + 8)
a("v_permlane32_swap_b32 v%d, v%d" % (GD, GD + 2)); a("v_permlane32_swap_b32 v%d, v%d" % (GD + 1, GD + 3))
a("v_add_f32 v%d, v%d, v%d" % (GD, GD, GD + 2)); a("v_add_f32 v%d, v%d, v%d" % (GD + 1, GD + 1, GD + 3))
a("v_cvt_pk_bf16_f32 v%d, v%d, v%d" % (GD, GD, GD + 1))
a("ds_write_b32 v%d, v%d offset:%d" % (vQW, GD, A_Q))
hbar(afrags(vQA, A_Q, 4, GD)); stamp(12)
for s in range(4):
    a("s_waitcnt lgkmcnt(%d)" % (3 - s))
    for t in range(2): mfma(ACC + 4 * t, WA + 16 * t + 4 * s, GD + 4 * s, s == 0)
for i in range(4): a("v_cndmask_b32 v%d, v%d, v%d, s[%d:%d]" % (ACC + i, ACC + i, ACC + 4 + i, sMSK, sMSK + 1))
a("v_max_f32 v%d, v%d, v%d" % (GL, ACC, ACC + 1)); a("v_max3_f32 v%d, v%d, v%d, v%d" % (GL, GL, ACC + 2, ACC + 3))
dpp("v_max_f32", GL, GL, GL, "row_ror:8")
rowred(GL, GL + 1, "v_max_f32")
a("ds_write_b32 v%d, v%d offset:%d" % (vMW, GL, A_MX))
hbar(["ds_read_b128 v[%d:%d], v%d offset:%d" % (GL + 4 * i, GL + 4 * i + 3, vMR, A_MX + 16 * i) for i in range(2)]); stamp(13)
a("s_waitcnt lgkmcnt(0)")
a("v_max3_f32 v%d, v%d, v%d, v%d" % (GL, GL, GL + 1, GL + 2)); a("v_max3_f32 v%d, v%d, v%d, v%d" % (GL + 4, GL + 4, GL + 5, GL + 6))
a("v_max3_f32 v%d, v%d, v%d, v%d" % (GL, GL, GL + 3, GL + 7)); a("v_max_f32 v%d, v%d, v%d" % (GL, GL, GL + 4))
a("v_mul_f32 v%d, s%d, v%d" % (GL, st1, GL))
for i in range(4): a("v_fma_f32 v%d, v%d, s%d, -v%d" % (ACC + i, ACC + i, st1, GL))
for i in range(4): a("v_exp_f32 v%d, v%d" % (ACC + i, ACC + i))
for i in range(2): a("v_cvt_pk_bf16_f32 v%d, v%d, v%d" % (GL + 2 + i, ACC + 2 * i, ACC + 2 * i + 1))
a("ds_write_b64 v%d, v[%d:%d] offset:%d" % (vPW, GL + 2, GL + 3, A_P))
a("v_add_f32 v%d, v%d, v%d" % (ACC, ACC, ACC + 1)); a("v_add_f32 v%d, v%d, v%d" % (ACC + 2, ACC + 2, ACC + 3)); a("v_add_f32 v%d, v%d, v%d" % (ACC, ACC, ACC + 2))
a("ds_write_b32 v%d, v%d offset:%d" % (vLW, ACC, A_LS))
hbar(); stamp(14)
a("s_cmp_ge_u32 s%d, 4" % sJ); a("s_cbranch_scc1 L_nopv")
pf_ = afrags(vPA, A_P, 8, WA)
for x in pf_[:2] + ["ds_read_b128 v[%d:%d], v%d offset:%d" % (GD + 8 + 4 * i, GD + 11 + 4 * i, vLR, A_LS + 16 * i) for i in range(2)] + ["ds_read_b32 v%d, v%d offset:%d" % (GL + 1, vH2, A_MX)] + pf_[2:]: a(x)
for s in range(8):
    a("s_waitcnt lgkmcnt(%d)" % (10 - s if s < 2 else 7 - s))
    for t in range(2): mfma(ACC + 4 * t, WA + 4 * s, (WB, vA)[t] + 4 * s, s == 0)
    if s == 2:
        add4(GD + 8, GD + 12); a("v_add_f32 v%d, v%d, v%d" % (GD + 8, GD + 8, GD + 9)); a("v_add_f32 v%d, v%d, v%d" % (GD + 10, GD + 10, GD + 11))
    if s == 3:
        a("v_add_f32 v%d, v%d, v%d" % (GL, GD + 8, GD + 10))
    if 3 <= s < 6:
        ctl = ("quad_perm:[1,0,3,2]", "quad_perm:[2,3,0,1]", "row_half_mirror")[s - 3]
        dpp("v_max_f32", GL + 1, GL + 1, GL + 1, ctl); dpp("v_add_f32", GL, GL, GL, ctl)
    if s == 6: a("v_log_f32 v%d, v%d" % (GL + 2, GL)); a("v_rcp_f32 v%d, v%d" % (GL, GL))
    if s == 7:
        a("v_fmac_f32 v%d, s%d, v%d" % (GL + 2, st1, GL + 1)); a("v_mov_b32 v%d, v%d" % (GL + 1, GL))
        a("v_lshrrev_b32 v%d, v%d, v%d" % (GL + 2, vSH, GL + 2))
        a("v_mov_b32_dpp v%d, v%d row_ror:8 row_mask:0xf bank_mask:0x3" % (GL + 1, GL)); a("v_mov_b32 v%d, v%d" % (GL + 3, GL + 2))
        a("v_mov_b32_dpp v%d, v%d row_ror:8 row_mask:0xf bank_mask:0xc" % (GL, GL))
        a("v_mov_b32_dpp v%d, v%d row_ror:8 row_mask:0xf bank_mask:0x3" % (GL + 3, GL + 2)); a("v_mov_b32_dpp v%d, v%d row_ror:8 row_mask:0xf bank_mask:0xc" % (GL + 2, GL + 2))
for k in range(2):
    for t in range(2): a("v_cndmask_b32 v%d, v%d, v%d, s[%d:%d]" % (GD + 2 * k + t, ACC + 4 * t + k, ACC + 4 * t + 2 + k, sHI, sHI + 1))
    for t in range(2): a("v_mul_f32 v%d, v%d, v%d" % (GD + 2 * k + t, GD + 2 * k + t, GL + k))
    a("v_bfi_b32 v%d, s%d, v%d, v%d" % (GD + 2 * k, sTM, vT, GD + 2 * k)); a("v_bfi_b32 v%d, s%d, v%d, v%d" % (GD + 2 * k + 1, sTM, GL + 2 + k, GD + 2 * k + 1))
    a("global_store_dwordx2 v%d, v[%d:%d], s[%d:%d] sc1" % (vS3, GD + 2 * k, GD + 2 * k + 1, (sB2, sB3)[k], (sB2, sB3)[k] + 1))
a.label("L_nopv")
stamp(5)
a("s_barrier")
p1b(0, vTR2, 44)
stamp(11)
a("s_cmp_ge_u32 s%d, 14" % sz); a("s_cbranch_scc1 L_fin")
vGM, vG4, vP5, vA5, vS2W, vF1 = TMP + 8, TMP + 9, TMP + 10, TMP + 11, TMP + 12, TMP + 13
a("s_lshl_b32 s%d, s%d, 15" % (st0, sx)); base(sB, sWS, st0, O_SM); base(sB2, sB, None, 8192); base(sB3, sB, None, 16384)
a("s_lshl_b32 s%d, s%d, 14" % (st0, sx)); base(sB4, sWS, st0, O_S4)
a("v_lshrrev_b32 v%d, 3, v%d" % (vGM, vL)); a("v_lshl_add_u32 v%d, v%d, 10, v%d" % (vGM, vGM, vJQ))
a("v_add_u32 v%d, %d, v%d" % (vF1, SL1, vTR5))
a("v_lshrrev_b32 v%d, 3, v%d" % (vG4, vL)); a("v_lshl_add_u32 v%d, v%d, 11, v%d" % (vG4, vG4, vJQ))
a("v_lshrrev_b32 v%d, 5, v%d" % (vP5, vL)); a("v_lshl_add_u32 v%d, v%d, 13, v%d" % (vP5, vP5, vPUB))
a("v_and_b32 v%d, 3, v%d" % (vA5, vL)); a("v_min_u32 v%d, 2, v%d" % (vA5, vA5)); a("v_mul_u32_u24 v%d, %d, v%d" % (vA5, 2 * ASTR, vA5)); a("v_add_u32 v%d, v%d, v%d" % (vA5, vA5, vAF))
a("v_and_b32 v%d, 4, v%d" % (vS2W, vL)); a("v_lshlrev_b32 v%d, 6, v%d" % (vS2W, vS2W)); a("v_lshl_add_u32 v%d, v%d, 3, v%d" % (vS2W, vG, vS2W)); a("s_lshl_b32 s%d, s%d, 5" % (st0, sJ)); a("v_add3_u32 v%d, v%d, v%d, s%d" % (vS2W, vS2W, vZ, st0))
landed(0, 44 + P["gmat"])
gm = ["global_load_dwordx4 v[%d:%d], v%d, s[%d:%d] sc1" % (GD + 4 * i, GD + 4 * i + 3, vGM, (sB, sB2, sB3)[i], (sB, sB2, sB3)[i] + 1) for i in range(3)]
gissue(gm); gfinish(gm, R(GD, 12), cnt=0x100)
stamp(6)
swapred([GD, GD + 4, GD + 8])
a("v_mov_b32 v%d, v%d" % (vGA, GD)); a("v_add_f32 v%d, 1.0, v%d" % (vCB, GD + 8)); pack(GD + 4); pack(vCB, GD + 2)
a("ds_write_b16 v%d, v%d offset:%d" % (vWV, GD + 2, A_X + 2 * ASTR)); a("ds_write_b16 v%d, v%d offset:%d" % (vWV, GD + 4, A_X + 4 * ASTR))
lin(st0, [(16384, sz), (1024, sx)]); base(sB3, sWS, st0, O_S5U); base(sB, sB3, None, O_S5V - O_S5U); base(sB2, sB3, None, O_S5T - O_S5U)
landed(0, 44 + P["g4at"])
g4 = ["global_load_dwordx4 v[%d:%d], v%d, s[%d:%d] offset:%d sc1" % (GD + 4 * i, GD + 4 * i + 3, vG4, sB4, sB4 + 1, i * 1024) for i in range(2)]
gissue(g4)
if P["g4at"] < 16: landed(0, 60)
trreads(WA, vF1, 512, 4, [(vF1, 0), (vF1, 256)])
stamp(7)
gfinish(g4, R(GD, 8), cnt=0x10000)
stamp(8)
add4(GD, GD + 4); swapred([GD])
a("v_fmac_f32 v%d, v%d, v%d" % (vX, vGA, GD))
a("v_mul_f32 v%d, v%d, v%d" % (GD, vX, vCB)); a("v_mul_f32 v%d, v%d, v%d" % (GD + 3, vX, vX)); pack(GD)
dpp("v_add_f32", GD + 2, vX, vX, "quad_perm:[1,0,3,2]"); dpp("v_add_f32", GD + 3, GD + 3, GD + 3, "quad_perm:[1,0,3,2]")
a("ds_write_b16 v%d, v%d offset:%d" % (vWV, GD, A_X))
dpp("v_add_f32", GD + 2, GD + 2, GD + 2, "quad_perm:[2,3,0,1]"); dpp("v_add_f32", GD + 3, GD + 3, GD + 3, "quad_perm:[2,3,0,1]")
a("ds_write_b64 v%d, v[%d:%d] offset:%d" % (vS2W, GD + 2, GD + 3, A_ST2))
hbar(afrags(vA5, A_X, 4))
for s in range(4):
    a("s_waitcnt lgkmcnt(%d)" % (3 - s))
    for h in range(2): mfma(ACC + 4 * h, vA + 4 * s, WA + 8 * s + 4 * h, s == 0)
for r in range(3):
    a("v_cndmask_b32 v%d, v%d, v%d, s[%d:%d]" % (GD + r, ACC + r, ACC + 4 + r, sHI, sHI + 1)); tag([GD + r])
    sb = (sB3, sB, sB2)[r]
    a("global_store_dword v%d, v%d, s[%d:%d] sc1" % (vP5, GD + r, sb, sb + 1))
stamp(9)
a("s_cmp_lg_u32 s%d, s%d" % (sz, sJ)); a("s_cbranch_scc1 L_fin")
a("s_mul_i32 s%d, s%d, %d" % (st0, sx, 28 * 1024)); base(sB, sWS, st0, O_S6)
a("v_lshrrev_b32 v%d, 3, v%d" % (TMP + 10, vL)); a("v_cmp_gt_u32 s[%d:%d], 7, v%d" % (sMSK, sMSK + 1, TMP + 10)); a("v_min_u32 v%d, 6, v%d" % (TMP + 10, TMP + 10))
a("v_lshl_add_u32 v%d, v%d, 12, v%d" % (TMP + 10, TMP + 10, vJQ))
lin(st0, [(256, sx), (32, sJ)]); base(sB2, sOUT, st0)
a("v_and_b32 v%d, 4, v%d" % (TMP + 11, vL)); a("v_lshlrev_b32 v%d, 9, v%d" % (TMP + 11, TMP + 11)); a("v_and_b32 v%d, 3, v%d" % (TMP + 12, vL))
a("v_lshl_add_u32 v%d, v%d, 3, v%d" % (TMP + 11, TMP + 12, TMP + 11)); a("v_lshl_add_u32 v%d, v%d, 1, v%d" % (TMP + 11, vG, TMP + 11))
a("s_lshl_b32 s%d, s%d, 15" % (st0, sx)); base(sB3, sWS, st0, O_SM + 3 * 8192)
gg = ["global_load_dwordx4 v[%d:%d], v%d, s[%d:%d] sc1" % (GL, GL + 3, vGM, sB3, sB3 + 1)]
gissue(gg); gfinish(gg, R(GL)); swapred([GL]); vGB = GL
if P["d6"]: a("s_sleep %d" % P["d6"])
g6 = ["global_load_dwordx4 v[%d:%d], v%d, s[%d:%d] offset:%d sc1" % (GD + 4 * i, GD + 4 * i + 3, TMP + 10, sB, sB + 1, i * 1024) for i in range(4)]
gissue(g6); gfinish(g6, R(GD, 16), cnt=0x1000000)
add4(GD, GD + 4); add4(GD + 8, GD + 12); add4(GD, GD + 8)
for i in range(4): a("v_cndmask_b32 v%d, 0, v%d, s[%d:%d]" % (GD + i, GD + i, sMSK, sMSK + 1))
swapred([GD])
a("v_fmac_f32 v%d, v%d, v%d" % (vX, vGB, GD)); pack(vX)
a("s_mov_b32 exec_lo, 0x00ff00ff"); a("s_mov_b32 exec_hi, 0x00ff00ff")
a("global_store_short v%d, v%d, s[%d:%d]" % (TMP + 11, vX, sB2, sB2 + 1))
a("s_mov_b64 exec, -1")
stamp(10)
a("s_cmp_lg_u32 s2, 0"); a("s_cbranch_scc1 L_fin")
a("v_mov_b32 v%d, 0" % TMP); a("s_mov_b64 exec, 1")
a("global_store_dword v%d, v%d, s[%d:%d] sc1" % (TMP, vT, sWS, sWS + 1))
a("s_mov_b64 exec, -1")
if AMP >= 0:
    a("s_memrealtime s[%d:%d]" % (sB, sB + 1)); a("s_waitcnt lgkmcnt(0)")
    a("s_sub_u32 s%d, s%d, s%d" % (st0, sSTMP + 2 * AMP, sSTMP)); a("s_mul_i32 s%d, s%d, 10" % (st0, st0)); a("s_min_u32 s%d, s%d, 100000" % (st0, st0))
    a.label("L_amp")
    a("s_memrealtime s[%d:%d]" % (sB2, sB2 + 1)); a("s_waitcnt lgkmcnt(0)")
    a("s_sub_u32 s%d, s%d, s%d" % (st1, sB2, sB)); a("s_cmp_lt_u32 s%d, s%d" % (st1, st0)); a("s_cbranch_scc1 L_amp")
a("s_branch L_fin")
a.label("L_B")
late_loads(1)
vG1, vQ0, vQ1, vA2, vP2, vM1, vL16, vW4 = TMP + 8, TMP + 9, TMP + 10, TMP + 11, TMP + 12, TMP + 13, TMP + 14, TMP + 15
a("s_lshl_b32 s%d, s%d, 15" % (st0, sx)); base(sB, sWS, st0, O_S1)
a("v_lshrrev_b32 v%d, 3, v%d" % (vG1, vL)); a("v_lshl_add_u32 v%d, v%d, 12, v%d" % (vG1, vG1, vJQ))
a("s_lshl_b32 s%d, s%d, 1" % (st0, sJ)); a("s_and_b32 s%d, s%d, 7" % (st0, st0)); a("s_xor_b32 s%d, s%d, s%d" % (st0, st0, sJ)); a("s_lshl_b32 s%d, s%d, 5" % (st0, st0))
a("s_lshr_b32 s%d, s%d, 2" % (st1, sJ)); a("s_lshl_b32 s%d, s%d, 8" % (st2, st1))
a("v_xor_b32 v%d, s%d, v%d" % (vQ0, st0, vTR5)); a("v_add_u32 v%d, s%d, v%d" % (vQ0, st2, vQ0)); a("v_xor_b32 v%d, 32, v%d" % (vQ1, vQ0))
a("v_bfe_u32 v%d, v%d, 3, 1" % (vA2, vL)); a("v_mul_u32_u24 v%d, %d, v%d" % (vA2, ASTR, vA2)); a("v_lshl_add_u32 v%d, v%d, 4, v%d" % (vA2, vG, vA2)); a("v_add_u32 v%d, v%d, v%d" % (vA2, vA2, vZ))
a("v_lshrrev_b32 v%d, 5, v%d" % (vP2, vL)); a("v_lshl_add_u32 v%d, v%d, 17, v%d" % (vP2, vP2, vPUB))
lin(st0, [(4096 - 512, st1), (8192, sz), (512, sx)]); base(sB2, sWS, st0, O_S2)
a("s_mov_b32 s%d, 0xffff0000" % sMSK); a("s_mov_b32 s%d, 0xffff0000" % (sMSK + 1))
a("s_and_b32 s%d, s%d, 1" % (st0, sz)); a("s_lshl_b32 s%d, s%d, 1" % (sHP, sx)); a("s_add_u32 s%d, s%d, s%d" % (sHP, sHP, st0)); a("s_lshr_b32 s%d, s%d, 1" % (sCB, sz))
a("s_lshr_b32 s%d, s%d, 2" % (st2, sx)); a("s_lshl_b32 s%d, s%d, 1" % (sRB, sz)); a("s_add_u32 s%d, s%d, s%d" % (sRB, sRB, st2)); a("s_and_b32 s%d, s%d, 3" % (sCQ, sx))
a("v_add_u32 v%d, %d, v%d" % (vM1, SL1, vTR2)); a("v_lshlrev_b32 v%d, 4, v%d" % (vL16, vL))
a("v_and_b32 v%d, 1, v%d" % (TMP + 4, vG)); a("v_lshlrev_b32 v%d, 4, v%d" % (TMP + 4, TMP + 4)); a("v_and_b32 v%d, 7, v%d" % (TMP + 5, vL)); a("v_lshl_add_u32 v%d, v%d, 1, v%d" % (TMP + 4, TMP + 5, TMP + 4))
a("v_lshrrev_b32 v%d, 5, v%d" % (TMP + 5, vL)); a("v_add_u32 v%d, v%d, v%d" % (TMP + 4, TMP + 4, TMP + 5))
perm32(TMP + 4, TMP + 4, TMP + 5); a("v_bfe_u32 v%d, v%d, 3, 1" % (TMP + 5, vL)); a("v_mul_u32_u24 v%d, %d, v%d" % (TMP + 5, ASTR, TMP + 5))
a("v_lshl_add_u32 v%d, v%d, 1, v%d" % (TMP + 4, TMP + 4, TMP + 5)); a("s_lshl_b32 s%d, s%d, 6" % (st0, sJ)); a("v_add3_u32 v%d, v%d, v%d, s%d" % (vW4, TMP + 4, vZ, st0))
late_use(1)
landed(1, 4 + P["g1at"])
stamp(3)
g1 = ["global_load_dwordx4 v[%d:%d], v%d, s[%d:%d] offset:%d sc1" % (GD + 4 * i, GD + 4 * i + 3, vG1, sB, sB + 1, i * 1024) for i in range(4)]
gissue(g1)
if P["g1at"] < 16: landed(1, 20)
trreads(WA, vQ0, 512, 4, [(vQ0, 0), (vQ1, 0)])
gfinish(g1, R(GD, 16), cnt=1)
stamp(4)
add4(GD, GD + 4); add4(GD + 8, GD + 12); add4(GD, GD + 8); swapred([GD]); pack(GD)
a("ds_write_b16 v%d, v%d offset:%d" % (vWV, GD, A_X))
hbar(afrags(vA2, A_X, 4))
for s in range(4):
    a("s_waitcnt lgkmcnt(%d)" % (3 - s))
    for h in range(2): mfma(ACC + 4 * h, vA + 4 * s, WA + 8 * s + 4 * h, s == 0)
a("v_cndmask_b32 v%d, v%d, v%d, s[%d:%d]" % (GD, ACC, ACC + 4, sMSK, sMSK + 1)); tag([GD])
a("global_store_dword v%d, v%d, s[%d:%d] sc1" % (vP2, GD, sB2, sB2 + 1))
stamp(5)
a("s_barrier")
lin(st0, [(32768, sHP), (4096, sJ)]); base(sB, sWS, st0, O_S3)
lin(st0, [(16384, sCB), (1024, sHP)]); base(sB2, sWS, st0, O_S4)
p1b(1, vM1, 28)
stamp(6)
a("s_mov_b32 s%d, 0x000fff00" % st2)
landed(1, 28 + P["g3at"])
stamp(7)
g3 = ["global_load_dwordx4 v[%d:%d], v%d, s[%d:%d] offset:%d sc1" % (GD + 4 * k, GD + 4 * k + 3, vL16, sB, sB + 1, k * 1024) for k in range(4)]
gissue(g3)
if P["g3at"] < 16: landed(1, 44)
trreads(WA, vTR2, 256, 8, [(vTR2, 0)])
gfinish(g3, [GD + 2 * k for k in range(8)], cnt=0x100, grp=True)
stamp(8)
for i in range(4): a("v_lshlrev_b32 v%d, 20, v%d" % (GL + i, GD + 4 * i + 1)); a("v_lshlrev_b32 v%d, 8, v%d" % (GL + 4 + i, GD + 4 * i + 3))
for i in range(4): a("v_bfi_b32 v%d, s%d, v%d, v%d" % (GL + i, st2, GL + 4 + i, GL + i))
a("v_max_f32 v%d, v%d, v%d" % (GL + 4, GL, GL + 1)); a("v_max3_f32 v%d, v%d, v%d, v%d" % (GL + 4, GL + 4, GL + 2, GL + 3))
rowred(GL + 4, GL + 5, "v_max_f32")
for i in range(4): a("v_sub_f32 v%d, v%d, v%d" % (GL + i, GL + i, GL + 4))
for i in range(4): a("v_exp_f32 v%d, v%d" % (GL + i, GL + i))
for e in range(4): a("v_mul_f32 v%d, v%d, v%d" % (GD + e, GD + e, GL))
a("v_add_f32 v%d, v%d, v%d" % (GL + 4, GL, GL + 1)); a("v_add_f32 v%d, v%d, v%d" % (GL + 5, GL + 2, GL + 3)); a("v_add_f32 v%d, v%d, v%d" % (GL + 4, GL + 4, GL + 5))
for i in range(1, 4):
    for e in range(4): a("v_fmac_f32 v%d, v%d, v%d" % (GD + e, GD + 4 * i + e, GL + i))
rowred(GL + 4, GL + 5, "v_add_f32")
swapred([GD], ror=False)
a("v_rcp_f32 v%d, v%d" % (GL + 4, GL + 4))
a("v_mul_f32 v%d, v%d, v%d" % (GD, GD, GL + 4)); pack(GD)
a("ds_write_b16 v%d, v%d offset:%d" % (vW4, GD, A_Y))
hbar(afrags(vAF, A_Y, 8))
for s in range(8):
    a("s_waitcnt lgkmcnt(%d)" % (7 - s)); mfma(ACC, vA + 4 * s, WA + 4 * s, s == 0)
tag([ACC])
a("s_mov_b32 exec_hi, 0")
a("global_store_dword v%d, v%d, s[%d:%d] sc1" % (vPUB, ACC, sB2, sB2 + 1))
a("s_mov_b64 exec, -1")
stamp(9)
a("s_barrier")
a("s_cmp_ge_u32 s%d, 14" % sz); a("s_cbranch_scc1 L_fin")
vG5, vGS, vP6, vF2 = TMP + 8, TMP + 9, TMP + 10, TMP + 11
a("s_lshl_b32 s%d, s%d, 13" % (st0, sRB)); base(sB, sWS, st0, O_S5U); base(sB2, sB, None, O_S5V - O_S5U); base(sB3, sB, None, O_S5T - O_S5U)
a("s_lshl_b32 s%d, s%d, 10" % (st0, sz)); base(sB4, sWS, st0, O_S5S)
a("v_lshrrev_b32 v%d, 3, v%d" % (vG5, vL)); a("v_lshl_add_u32 v%d, v%d, 10, v%d" % (vG5, vG5, vJQ))
a("v_and_b32 v%d, 0x38, v%d" % (vGS, vL)); a("v_lshlrev_b32 v%d, 4, v%d" % (vGS, vGS)); a("v_and_b32 v%d, 4, v%d" % (TMP + 4, vL)); a("v_lshl_add_u32 v%d, v%d, 2, v%d" % (vGS, TMP + 4, vGS))
a("v_lshrrev_b32 v%d, 5, v%d" % (vP6, vL)); a("v_mul_u32_u24 v%d, %d, v%d" % (vP6, 28 * 1024, vP6)); lin(st0, [(56 * 1024, sCQ), (1024, sRB)], O_S6); a("v_add3_u32 v%d, v%d, v%d, s%d" % (vP6, vP6, vPUB, st0))
a("v_add_u32 v%d, %d, v%d" % (vF2, SL1, vTR5))
landed(1, 44 + P["g5at"])
stamp(10)
g5 = ["global_load_dwordx4 v[%d:%d], v%d, s[%d:%d] sc1" % (GD + 4 * k, GD + 4 * k + 3, vG5, (sB2, sB3, sB)[k], (sB2, sB3, sB)[k] + 1) for k in range(3)] + \
     ["global_load_dwordx4 v[%d:%d], v%d, s[%d:%d] sc1" % (GL, GL + 3, vGS, sB4, sB4 + 1)]
gissue(g5)
if P["g5at"] < 16: landed(1, 60)
trreads(WA, vF2, 512, 4, [(vF2, 0), (vF2, 256)])
gfinish(g5, R(GD, 12), [GL + 1, GL + 3], cnt=0x10000)
stamp(11)
a("v_permlane32_swap_b32 v%d, v%d" % (GL, GL + 2)); a("v_add_f32 v%d, v%d, v%d" % (GL, GL, GL + 2))
dpp("v_add_f32", GL, GL, GL, "row_ror:8")
a("v_mov_b32 v%d, v%d" % (GL + 1, GL)); a("v_permlane16_swap_b32 v%d, v%d" % (GL, GL + 1)); a("v_add_f32 v%d, v%d, v%d" % (GL, GL, GL + 1))
a("v_mov_b32 v%d, v%d" % (GL + 2, GL)); a("v_permlane32_swap_b32 v%d, v%d" % (GL, GL + 2))
lnstats(GL, GL + 2)
for e in range(4): a("v_fma_f32 v%d, -v%d, v%d, v%d" % (GD + e, GL, GD + e, GD + 8 + e))
for e in range(4): a("v_fma_f32 v%d, v%d, v%d, v%d" % (GD + e, GD + e, GL + 2, GD + 4 + e))
swapred([GD])
a("v_max_f32 v%d, 0, v%d" % (GD, GD)); pack(GD)
a("ds_write_b16 v%d, v%d offset:%d" % (vWV, GD, A_Z))
hbar(afrags(vAF, A_Z, 4))
for s in range(4):
    a("s_waitcnt lgkmcnt(%d)" % (3 - s))
    for h in range(2): mfma(ACC + 4 * h, vA + 4 * s, WA + 8 * s + 4 * h, s == 0)
a("v_cndmask_b32 v%d, v%d, v%d, s[%d:%d]" % (GD, ACC, ACC + 4, sHI, sHI + 1)); tag([GD])
a("global_store_dword v%d, v%d, s[%d:%d] sc1" % (vP6, GD, sWS, sWS + 1))
stamp(12)
a.label("L_fin")
if STAMPS:
    for i in range(4): a("s_sleep 127")
    a("s_waitcnt lgkmcnt(0)")
    a("v_mov_b32 v%d, 0" % TMP); a("s_mov_b64 exec, 1")
    for i in range(NST):
        a("v_mov_b32 v%d, s%d" % (TMP + 2, sSTMP + 2 * i)); a("v_mov_b32 v%d, s%d" % (TMP + 3, sSTMP + 2 * i + 1))
        a("global_store_dwordx2 v%d, v[%d:%d], s[%d:%d] offset:%d" % (TMP, TMP + 2, TMP + 3, sSTB, sSTB + 1, i * 8))
a.label("L_end")
a("s_endpgm")
if P["pf"]: a(".fill 2048, 4, 0xbf810000")
main = a.l; a.l = []
vS5, vS2, vO, vCN, vLA = 16, 17, 18, 19, 20
if P["prio"]: a("s_setprio 2")
a("v_lshrrev_b32 v%d, 5, v%d" % (TMP, vL)); a("s_lshl_b32 s%d, s%d, 2" % (st0, sLD)); a("v_lshl_add_u32 v%d, v%d, 1, s%d" % (TMP + 1, TMP, st0)); a("v_xor_b32 v%d, v%d, v%d" % (vS5, vC, TMP + 1)); a("v_lshlrev_b32 v%d, 4, v%d" % (vS5, vS5))
a("v_and_b32 v%d, 1, v%d" % (TMP + 8, vG))
a("v_mul_u32_u24 v%d, 12288, v%d" % (vO, TMP)); a("v_lshl_add_u32 v%d, v%d, 11, v%d" % (vO, TMP + 8, vO)); a("v_add_u32 v%d, v%d, v%d" % (vO, vO, vS5))
lin(st2, [(32 * 12288, sy), (2 * 12288, sLD), (256, sx)])
a("s_lshl_b32 s%d, s%d, 10" % (sJ, sLD))
a("s_waitcnt lgkmcnt(0)")
class Ld:
    def __init__(self, grp, issued=0): self.grp = grp; self.iss = issued; self.pub = 0; self.known = 0
    def publish(self):
        t = [x for x in THR[self.grp] if self.pub < x <= self.known]
        if t:
            self.pub = self.known
            a("v_mov_b32 v%d, %d" % (vCN, self.known)); a("ds_write_b32 v%d, v%d offset:%d" % (vLA, vCN, F_LAND))
    def item(self, n, slot, step, W=9, i0=0, last=True):
        for i in range(i0, n):
            a("s_add_u32 m0, s%d, %d" % (sJ, slot + i * 4096))
            if self.iss - self.known >= W:
                a("s_waitcnt vmcnt(%d)" % (W - 1)); self.known = self.iss - (W - 1)
            a("global_load_lds_dwordx4 v%d, s[%d:%d]%s" % (vO, sB, sB + 1, NT)); self.iss += 1
            if i != n - 1 or not last: a("s_add_u32 s%d, s%d, %d" % (sB, sB, step)); a("s_addc_u32 s%d, s%d, 0" % (sB + 1, sB + 1))
            self.publish()
    def drain(self):
        for t in sorted(set(x for x in THR[self.grp] if self.known < x <= self.iss) | {self.iss}):
            a("s_waitcnt vmcnt(%d)" % (self.iss - t)); self.known = t; self.publish()
base(sB, sWM, st2)
stamp(8)
l0 = Ld(0); l0.item(4, SLA, 8 * 12288)
stamp(9)
a("s_and_b32 s%d, s%d, 15" % (sz, sy))
a("v_lshl_add_u32 v%d, v%d, 8, v%d" % (vS5, TMP + 8, vS5))
a("s_and_b32 s%d, s%d, 1" % (st0, sLD)); a("s_lshl_b32 s%d, s%d, 3" % (st0, st0)); a("v_lshl_add_u32 v%d, v%d, 1, s%d" % (TMP + 1, vG, st0)); a("v_xor_b32 v%d, v%d, v%d" % (vS2, vC, TMP + 1)); a("v_lshlrev_b32 v%d, 4, v%d" % (vS2, vS2))
a("s_lshl_b32 s%d, s%d, 2" % (st0, sLD)); a("v_add_u32 v%d, s%d, v%d" % (vLA, st0, vZ))
if STAMPS: lin(st0, [(NST * 8 * 12, 2), (NST * 8, sLD)]); base(sSTB, sWS, st0, 128 << 20)
def off5(stride): a("v_mul_u32_u24 v%d, %d, v%d" % (vO, stride, TMP)); a("v_add_u32 v%d, v%d, v%d" % (vO, vO, vS5))
def off2(stride): a("v_mul_u32_u24 v%d, %d, v%d" % (vO, stride, vG)); a("v_add_u32 v%d, v%d, v%d" % (vO, vO, vS2))
a("s_cmp_ge_u32 s2, 128"); a("s_cbranch_scc1 L_ldB")
L = Ld(0, 4)
a("s_lshl_b32 s%d, s%d, 2" % (st0, sLD)); a("v_add_u32 v%d, s%d, v%d" % (TMP + 1, st0, vG)); a("v_xor_b32 v%d, v%d, v%d" % (vO, vC, TMP + 1)); a("v_lshlrev_b32 v%d, 4, v%d" % (vO, vO)); a("v_lshl_add_u32 v%d, v%d, 8, v%d" % (vO, vG, vO))
lin(st0, [(1 << 23, sx), (1 << 16, sz), (1024, sLD)], 28672 * 256); base(sB, sK, st0); base(sB2, sV, st0)
stamp(10)
a("s_barrier")
stamp(11)
L.item(16, SL0, 4096, P["w1"]); stamp(1)
off2(256); a("s_mov_b64 s[%d:%d], s[%d:%d]" % (sB, sB + 1, sB2, sB2 + 1))
L.item(16, SL1, 4096, P["wv"]); stamp(2)
L.drain(); stamp(3)
def mbase(): off2(12288); lin(st0, [(128 * 12288, sMRB), (4 * 12288, sLD), (2048, sMOD), (256, sMCB)], 4096); base(sB, sWM, st0)
mtile(0); mbase()
a("s_barrier")
L.item(P["mpre"], SL0, 16 * 12288, 9, last=False)
for i in range(3): a("s_barrier")
stamp(4)
L.item(8, SL0, 16 * 12288, P["wm"], i0=P["mpre"])
a("s_cmp_ge_u32 s%d, 14" % sz); a("s_cbranch_scc0 L_f1")
import copy
L2 = copy.copy(L); L2.drain(); a("s_branch L_fin")
a.label("L_f1")
off5(7168); lin(st0, [(128 * 7168, sx), (2 * 7168, sLD), (512, sz)]); base(sB, sW1, st0)
L.item(16, SL1, 8 * 7168, P["wf"]); L.drain(); stamp(5)
a("s_cmp_lg_u32 s%d, 0" % sLD); a("s_cbranch_scc1 L_bar1")
a("s_load_dword s%d, s[%d:%d], 0" % (sEP, sWS, sWS + 1))
lin(st0, [(1024, sz), (128, sx)]); base(sB, sWS, st0, O_S5S)
a("v_lshl_add_u32 v%d, v%d, 3, v%d" % (vO, vL, vZ)); a("v_lshlrev_b32 v%d, 4, v%d" % (vCN, TMP))
a("s_waitcnt lgkmcnt(0)")
a("s_add_u32 s%d, s%d, 0x9e5" % (sT, sEP)); a("s_and_b32 s%d, s%d, 0x%x" % (sT, sT, TAGM)); a("s_mul_i32 s%d, s%d, 0x00100101" % (sTW, sT)); a("s_xor_b32 s%d, s%d, 0x5a5a0000" % (sTW, sTW))
a("v_mov_b32 v%d, s%d" % (GD + 5, sTW)); a("v_mov_b32 v%d, s%d" % (GD + 7, sTW))
hbar(["ds_read_b64 v[%d:%d], v%d offset:%d" % (GD, GD + 1, vO, A_ST2)])
a("s_waitcnt lgkmcnt(0)")
allred([GD, GD + 1], 4)
a("v_mov_b32 v%d, v%d" % (GD + 2, GD)); a("v_mov_b32 v%d, v%d" % (GD + 3, GD + 1))
a("v_permlane16_swap_b32 v%d, v%d" % (GD, GD + 2)); a("v_permlane16_swap_b32 v%d, v%d" % (GD + 1, GD + 3))
a("v_add_f32 v%d, v%d, v%d" % (GD + 4, GD, GD + 2)); a("v_add_f32 v%d, v%d, v%d" % (GD + 6, GD + 1, GD + 3))
a("s_mov_b32 exec_lo, 1"); a("s_mov_b32 exec_hi, 1")
a("global_store_dwordx4 v%d, v[%d:%d], s[%d:%d] sc1" % (vCN, GD + 4, GD + 7, sB, sB + 1))
a("s_mov_b64 exec, -1")
stamp(6)
a("s_branch L_fin")
a.label("L_ldB")
L = Ld(1, 4)
off5(8192); lin(st0, [(128 * 8192, sx), (2 * 8192, sLD), (512, sz)]); base(sB, sWQ, st0)
a("s_barrier")
L.item(16, SL0, 8 * 8192, P["w1"]); stamp(1)
mtile(1); mbase()
L.drain(); stamp(7); a("s_barrier"); a("s_barrier")
L.item(8, SL1, 16 * 12288, P["wm"]); stamp(2)
off2(2048); a("s_and_b32 s%d, s%d, 1" % (st1, sz)); a("s_lshr_b32 s%d, s%d, 1" % (st2, sz))
lin(st0, [(512 * 2048, sx), (256 * 2048, st1), (4 * 2048, sLD), (256, st2)]); base(sB, sWO, st0)
L.item(16, SL0, 16 * 2048, P["wo"]); stamp(3)
L.drain(); stamp(4)
a("s_cmp_ge_u32 s%d, 14" % sz); a("s_cbranch_scc1 L_bar2")
off5(2048); a("s_lshr_b32 s%d, s%d, 2" % (st1, sx)); a("s_and_b32 s%d, s%d, 3" % (st2, sx))
lin(st0, [(256 * 2048, sz), (128 * 2048, st1), (2 * 2048, sLD), (512, st2)]); base(sB, sW2, st0)
a("s_barrier"); a("s_barrier"); stamp(5)
L.item(16, SL1, 8 * 2048, P["wf"]); L.drain(); stamp(6)
a("s_branch L_bar1")
a.label("L_bar2"); a("s_barrier")
a.label("L_bar1"); a("s_barrier"); a("s_branch L_fin")
a.l = main[:LOADER_POS] + a.l + main[LOADER_POS:]
a.l = hazard.fix(a.l)
open(OUT, "w").write(wrap(a.text(), 256, 768, LDS, NV))
print(OUT, "LDS", LDS, "lines", len(a.l))
```

```python
import sys, math, struct, copy
from asmlib import *
import hazard
args = sys.argv[1:]
OUT = [x for x in args if x.endswith(".s")][0]
P = dict(stamps=0, light=0, amp=-1, nt=1, pf=1, prio=1, lsleep=1, rsleep=0,
         ma=0, mb=0,
         g1=3, g2=3, g3=0, gm=12, g4=0, gv=4, g5=0,
         w1=7, wk=7, wv=9, wq=7, wo=9, wf=9, wf2=9, pre=4, f1pre=7, f2pre=0, kb=0, wbl=3, ka=0, wal=3,
         gme=0, vt=0, loc6=0, d6=0,
         h3=1, h4=1, h5=1, h6=0, f3at=2, pk=2, p3=10, p4=10, p5=10, cprio=0, gj=1, mall=0, f2mid=0, adel=0, s4=4, s5=4, s6=4, r3=0, r4=0, r5=0, wsleep=2)
for x in args:
    if "=" in x:
        k, v = x.split("="); assert k in P, k; P[k] = int(v)
STAMPS = P["stamps"]; NT = " nt" if P["nt"] else ""; AMP = P["amp"]
NST = 16; TAGM = 0xfff
O_S1 = 0x1000; O_S2 = O_S1 + 0x40000; O_S3 = O_S2 + 0x40000; O_S4 = O_S3 + 0x80000; O_SM = O_S4 + 0x20000
O_S5U = O_SM + 0x40000; O_S5V = O_S5U + 0x38000; O_S5T = O_S5V + 0x38000; O_S6 = O_S5T + 0x38000; O_S6L = O_S6 + 0x38000; O_S5S = O_S6L + 0x38000
O_F3 = O_S5S + 0x4000; O_F4 = O_F3 + 0x4000; O_F5 = O_F4 + 0x4000; O_F6 = O_F5 + 0x4000
SL0, SL1, SLA = 0, 65536, 131072
LS = 147456
F_LAND = 0; F_GO = 16; F_BAR = 32
B_P1A, B_C2, B_MF, B_VT, B_G3 = range(5)
A_ST1 = 128; A_ST2 = A_ST1 + 256; A_MX = A_ST2 + 512; A_LS = A_MX + 256
ASTR = 576
A_C1 = A_LS + 8 * 272; A_C2 = A_C1 + 2 * ASTR; A_X = A_C2 + 2 * ASTR; A_Y = A_X + 2 * ASTR; A_Z = A_C2
A_Q = A_X + 6 * ASTR; A_P = A_Q + 8 * 288
LDS = LS + A_P + 8 * 544
assert LDS <= 163840, LDS
def plan(items):
    d = {}; c = 0
    for n, k in items: c += k; d[n] = c
    return d
MALL = P["mall"]; NMA = 0 if MALL else 8; NMB = 16 if MALL else 8
if MALL: P["ma"] = 0
EA = plan([("a", 4)] + ([("m", 8)] if P["ma"] else []) + [("K", 16), ("V", 16)] + ([] if P["ma"] else [("m", NMA)]) + [("f1", 16)])
EB = plan([("a", 4)] + ([("m", NMB)] if P["mb"] else []) + [("q", 16)] + ([] if P["mb"] else [("m", NMB)]) + [("o", 16), ("f2p", P["f2pre"]), ("f2", 16 - P["f2pre"])])
SLM_A = SL1 if P["ma"] else SL0; SLF1 = SL1; SLM_B = SL1; SLF2 = SL1
LOC = P["loc6"]; NP6 = 14 if LOC else 28
sJ = 3
sX, sK, sV, sWQ, sWO, sW1, sW2, sC, sWM, sOUT, sDBG, sWS = 4, 6, 8, 10, 12, 16, 18, 20, 22, 24, 26, 28
sx, sy, sz, sT, sTM, sTO, sTW = 30, 31, 14, 32, 33, 34, 35
sONES = 36; sHI = 54
sB, sB2, sB3, sB4, sB5, sB6 = 38, 40, 56, 58, 98, 100
st0, st1, st2, st3 = 42, 43, 44, 45
sHP, sCB, sRB, sC6 = 46, 47, 51, 15
sMOD, sMCB, sMRB = 94, 95, 96
sSTB = 48; sEP = 50; sMSK = 52; sSTMP = 60; sLD = 93; sALT = 92; sPRE = 97
vL, vG, vC, vT, vTW, vJQ, vPUB, vZ, vONE, vFL, vTR5, vTR2, vAF, vX, vXD = range(1, 16)
vWV = 0
vA = 16; WA = 48; WB = 80; GD = 112; GL = 128; ACC = 136; TMP = 144
vGA, vCB, vXS = 164, 165, 166
NV = 168
a = Asm(); cold = []
class Cold:
    def __enter__(self): self.sv = a.l; a.l = []
    def __exit__(self, *x): cold.extend(a.l); a.l = self.sv
def stamp(i):
    if STAMPS or (AMP >= 0 and i in (0, AMP)) or (P["light"] and i == 0): a("s_memrealtime s[%d:%d]" % (sSTMP + 2 * i, sSTMP + 2 * i + 1))
def base(dst, src, off=None, imm=0):
    if off is not None:
        if imm: a("s_add_u32 s%d, s%d, %d" % (off, off, imm))
        a("s_add_u32 s%d, s%d, s%d" % (dst, src, off)); a("s_addc_u32 s%d, s%d, 0" % (dst + 1, src + 1))
    else:
        a("s_add_u32 s%d, s%d, %d" % (dst, src, imm)); a("s_addc_u32 s%d, s%d, 0" % (dst + 1, src + 1))
def lin(dst, terms, imm=0):
    first = True
    for coef, r in terms:
        t = dst if first else st3
        if coef & (coef - 1) == 0: a("s_lshl_b32 s%d, s%d, %d" % (t, r, coef.bit_length() - 1))
        else: a("s_mul_i32 s%d, s%d, %d" % (t, r, coef))
        if not first: a("s_add_u32 s%d, s%d, s%d" % (dst, dst, t))
        first = False
    if imm: a("s_add_u32 s%d, s%d, %d" % (dst, dst, imm))
def wsb(dst, terms, off): lin(st0, terms, off); base(dst, sWS, st0)
def R(r, n=4): return list(range(r, r + n))
def V(fmt, *x): a(fmt % x)
def dpp(op, d, s0, s1, ctl, extra="row_mask:0xf bank_mask:0xf"): a("%s_dpp v%d, v%d, v%d %s %s" % (op, d, s0, s1, ctl, extra))
def allred(rs, steps, op="v_add_f32"):
    for ctl in ("quad_perm:[1,0,3,2]", "quad_perm:[2,3,0,1]", "row_half_mirror", "row_mirror")[:steps]:
        for r in rs: dpp(op, r, r, r, ctl)
def swapred(ds, ror=True):
    for d in ds: V("v_permlane32_swap_b32 v%d, v%d", d, d + 2); V("v_permlane32_swap_b32 v%d, v%d", d + 1, d + 3)
    for d in ds: V("v_add_f32 v%d, v%d, v%d", d, d, d + 2); V("v_add_f32 v%d, v%d, v%d", d + 1, d + 1, d + 3)
    for d in ds: V("v_permlane16_swap_b32 v%d, v%d", d, d + 1)
    for d in ds: V("v_add_f32 v%d, v%d, v%d", d, d, d + 1)
    if ror:
        for d in ds: dpp("v_add_f32", d, d, d, "row_ror:8")
def rowred(r, t, op):
    V("v_mov_b32 v%d, v%d", t, r); V("v_permlane16_swap_b32 v%d, v%d", r, t); V("%s v%d, v%d, v%d", op, r, r, t)
    V("v_mov_b32 v%d, v%d", t, r); V("v_permlane32_swap_b32 v%d, v%d", r, t); V("%s v%d, v%d, v%d", op, r, r, t)
def add4(d, s):
    for h in (0, 2): V("v_pk_add_f32 v[%d:%d], v[%d:%d], v[%d:%d]", d + h, d + h + 1, d + h, d + h + 1, s + h, s + h + 1)
def check(tag_regs, word_regs=(), grp=False):
    V("v_xor_b32 v%d, v%d, v%d", TMP, tag_regs[0], vT)
    for r in tag_regs[1:]: V("v_bitop3_b32 v%d, v%d, v%d, v%d bitop3:0xbe", TMP, r, vT, TMP)
    V("v_and_b32 v%d, s%d, v%d", TMP, sTM, TMP)
    for r in word_regs: V("v_bitop3_b32 v%d, v%d, v%d, v%d bitop3:0xbe", TMP, r, vTW, TMP)
    if grp: allred([TMP], 3, "v_or_b32")
    V("v_cmp_ne_u32 vcc, 0, v%d", TMP)
def gl(d, va, sb, off=0): return "global_load_dwordx4 v[%d:%d], v%d, s[%d:%d] offset:%d sc1" % (d, d + 3, va, sb, sb + 1, off)
def emit(xs):
    for x in xs: a(x)
def gfinish(loads, tag_regs, word_regs=(), cnt=None, grp=False, nyoung=0, alt=None):
    ok, lp = a.lab("Ok"), a.lab("Rp")
    a("s_waitcnt vmcnt(%d)" % nyoung)
    check(tag_regs, word_regs)
    a("s_cbranch_vccnz %s_e" % lp)
    a.label(ok)
    with Cold():
        a.label(lp + "_e")
        if grp: a("s_nop 1"); allred([TMP], 3, "v_or_b32"); V("v_cmp_ne_u32 vcc, 0, v%d", TMP)
        a.label(lp)
        a("s_mov_b64 exec, vcc")
        if P["rsleep"]: a("s_sleep %d" % P["rsleep"])
        if STAMPS and cnt is not None: V("s_add_u32 s%d, s%d, %d", sSTMP + 30, sSTMP + 30, cnt)
        if alt is not None:
            sb, delta = alt
            V("s_sub_u32 s%d, s%d, 1", sALT, sALT); V("s_cmp_eq_u32 s%d, 0", sALT); V("s_cselect_b32 s%d, %d, 0", st3, delta)
            V("s_sub_u32 s%d, s%d, s%d", sb, sb, st3); V("s_subb_u32 s%d, s%d, 0", sb + 1, sb + 1)
        emit(loads)
        a("s_waitcnt vmcnt(0)")
        check(tag_regs, word_regs, grp)
        a("s_cbranch_vccz %s_dn" % ok)
        V("s_sub_u32 s%d, s%d, 1", sTO, sTO); a("s_cbranch_scc0 %s" % lp)
        V("s_mov_b32 s%d, 0", sTO)
        a.label(ok + "_dn"); a("s_mov_b64 exec, -1"); a("s_branch %s" % ok)
def mfma(acc, A, B, first):
    a("v_mfma_f32_16x16x32_bf16 v[%d:%d], v[%d:%d], v[%d:%d], %s" % (acc, acc + 3, A, A + 3, B, B + 3, "0" if first else "v[%d:%d]" % (acc, acc + 3)))
def pack(r, d=None): V("v_cvt_pk_bf16_f32 v%d, v%d, v%d", r if d is None else d, r, r)
def tag(rs):
    for r in rs: V("v_bfi_b32 v%d, s%d, v%d, v%d", r, sTM, vT, r)
def silu(r, t):
    V("v_mul_f32 v%d, 0xbfb8aa3b, v%d", t, r); V("v_exp_f32 v%d, v%d", t, t); V("v_add_f32 v%d, 1.0, v%d", t, t)
    V("v_rcp_f32 v%d, v%d", t, t); V("v_mul_f32 v%d, v%d, v%d", r, r, t)
def lnstats(s, q):
    V("v_mul_f32 v%d, 0x3a800000, v%d", s, s); V("v_mul_f32 v%d, 0x3a800000, v%d", q, q)
    V("v_fma_f32 v%d, -v%d, v%d, v%d", q, s, s, q); V("v_max_f32 v%d, 0, v%d", q, q)
    V("v_add_f32 v%d, 0x3727c5ac, v%d", q, q); V("v_rsq_f32 v%d, v%d", q, q)
def arrive(k): V("ds_write_b8 v%d, v%d offset:%d", vFL, vONE, F_BAR + 8 * k)
def waitloop(body, sleep):
    l, ok = a.lab("Sp"), a.lab("So")
    a.label(l); body()
    a("s_cbranch_vccnz %s_r" % l)
    a.label(ok)
    with Cold():
        a.label(l + "_r")
        if sleep: a("s_sleep %d" % sleep)
        V("s_sub_u32 s%d, s%d, 1", sTO, sTO); a("s_cbranch_scc0 %s" % l)
        V("s_mov_b32 s%d, 0", sTO); a("s_branch %s" % ok)
def spin(k, sleep=0):
    def body():
        V("ds_read_b64 v[%d:%d], v%d offset:%d", TMP + 2, TMP + 3, vZ, F_BAR + 8 * k); a("s_waitcnt lgkmcnt(0)")
        V("v_cmp_ne_u64 vcc, s[%d:%d], v[%d:%d]", sONES, sONES + 1, TMP + 2, TMP + 3)
    waitloop(body, sleep)
THR = {0: {EA["f1"]}, 1: {EB["f2p"], EB["f2"]}}
def landed(grp, thr, where=F_LAND):
    if where == F_LAND:
        for g in ((0, 1) if grp is None else (grp,)): THR[g].add(thr)
    def body():
        V("ds_read_b128 v[%d:%d], v%d offset:%d", TMP + 4, TMP + 7, vZ, where); a("s_waitcnt lgkmcnt(0)")
        V("v_min_u32 v%d, v%d, v%d", TMP + 4, TMP + 4, TMP + 5); V("v_min3_u32 v%d, v%d, v%d, v%d", TMP + 4, TMP + 4, TMP + 6, TMP + 7)
        V("v_cmp_gt_u32 vcc, %d, v%d", thr, TMP + 4)
    waitloop(body, P["lsleep"])
def hbar(reads=()):
    a("s_waitcnt lgkmcnt(0)"); a("s_barrier"); emit(reads)
def trreads(W, RS, nst, halves):
    for s in range(nst):
        for h, (r, o) in enumerate(halves):
            for hh in range(2):
                d = W + (s * len(halves) + h) * 4 + 2 * hh
                V("ds_read_b64_tr_b16 v[%d:%d], v%d offset:%d", d, d + 1, r, s * 32 * RS + hh * 8 * RS + o)
def afrags(va, off, n, d=vA): return ["ds_read_b128 v[%d:%d], v%d offset:%d" % (d + 4 * s, d + 4 * s + 3, va, off + s * 64) for s in range(n)]
def perm32(d, s, t):
    V("v_lshrrev_b32 v%d, 1, v%d", t, s); V("v_xor_b32 v%d, v%d, v%d", t, t, s); V("v_and_b32 v%d, 4, v%d", t, t)
    V("v_mul_u32_u24 v%d, 3, v%d", t, t); V("v_xor_b32 v%d, v%d, v%d", d, s, t)
def pub32(r, va, sb, fl="sc1"):
    a("s_mov_b32 exec_hi, 0"); V("global_store_dword v%d, v%d, s[%d:%d] %s", va, r, sb, sb + 1, fl); a("s_mov_b64 exec, -1")
def mtile(grp):
    V("s_and_b32 s%d, s%d, 3", sMOD, sx); V("s_lshr_b32 s%d, s%d, 2", sMRB, sx)
    if grp == 0:
        V("s_and_b32 s%d, s%d, 7", sMCB, sz); V("s_lshr_b32 s%d, s%d, 3", st0, sz); V("s_add_u32 s%d, s%d, 2", st0, st0)
    else:
        V("s_lshr_b32 s%d, s%d, 1", sMCB, sz); V("s_xor_b32 s%d, s%d, 1", sMCB, sMCB); V("s_and_b32 s%d, s%d, 1", st0, sz)
    V("s_lshl_b32 s%d, s%d, 1", st0, st0); V("s_add_u32 s%d, s%d, s%d", sMRB, sMRB, st0)
    if MALL and grp: V("s_lshl_b32 s%d, s%d, 1", sMRB, sMRB)
def p6map():
    V("s_min_u32 s%d, s%d, 13", sRB, sz)
    if LOC: V("s_mov_b32 s%d, s%d", sC6, sx)
    else:
        V("s_mul_i32 s%d, s%d, 14", st0, sx); V("s_add_u32 s%d, s%d, s%d", sRB, sRB, st0); V("s_and_b32 s%d, s%d, 3", sC6, sRB); V("s_lshr_b32 s%d, s%d, 2", sRB, sRB)
def go(k): landed(None, k, F_GO)
def either(grp, thr, k, frags):
    THR[grp].add(thr)
    l, lg, ok = a.lab("Ei"), a.lab("Eg"), a.lab("Eo")
    V("s_mov_b32 s%d, 0", sPRE)
    a.label(l)
    V("ds_read_b128 v[%d:%d], v%d offset:%d", TMP + 4, TMP + 7, vZ, F_LAND); V("ds_read_b128 v[%d:%d], v%d offset:%d", ACC, ACC + 3, vZ, F_GO)
    a("s_waitcnt lgkmcnt(0)")
    V("v_min_u32 v%d, v%d, v%d", ACC, ACC, ACC + 1); V("v_min3_u32 v%d, v%d, v%d, v%d", ACC, ACC, ACC + 2, ACC + 3)
    V("v_cmp_gt_u32 vcc, %d, v%d", k, ACC); a("s_cbranch_vccz %s" % ok)
    V("v_min_u32 v%d, v%d, v%d", TMP + 4, TMP + 4, TMP + 5); V("v_min3_u32 v%d, v%d, v%d, v%d", TMP + 4, TMP + 4, TMP + 6, TMP + 7)
    V("v_cmp_gt_u32 vcc, %d, v%d", thr, TMP + 4); a("s_cbranch_vccz %s" % lg)
    a("s_sleep %d" % P["lsleep"]); V("s_sub_u32 s%d, s%d, 1", sTO, sTO); a("s_cbranch_scc0 %s" % l)
    V("s_mov_b32 s%d, 0", sTO); a("s_branch %s" % ok)
    a.label(lg)
    frags(); V("s_mov_b32 s%d, 1", sPRE); go(k)
    a.label(ok)
def maybe(grp, thr, frags):
    l = a.lab("Mb")
    V("s_cmp_eq_u32 s%d, 1", sPRE); a("s_cbranch_scc1 %s" % l)
    V("ds_read_b128 v[%d:%d], v%d offset:%d", TMP + 4, TMP + 7, vZ, F_LAND); a("s_waitcnt lgkmcnt(0)")
    V("v_min_u32 v%d, v%d, v%d", TMP + 4, TMP + 4, TMP + 5); V("v_min3_u32 v%d, v%d, v%d, v%d", TMP + 4, TMP + 4, TMP + 6, TMP + 7)
    V("v_cmp_gt_u32 vcc, %d, v%d", thr, TMP + 4); a("s_cbranch_vccnz %s" % l)
    frags(); V("s_mov_b32 s%d, 1", sPRE)
    a.label(l)
def hbarf(on, frags, reads):
    a("s_waitcnt lgkmcnt(0)"); a("s_barrier")
    if on:
        l = a.lab("Hf"); V("s_cmp_eq_u32 s%d, 0", sPRE); a("s_cbranch_scc1 %s_c" % l); a.label(l)
        with Cold():
            a.label(l + "_c"); frags(); a("s_branch %s" % l)
    emit(reads)

a("s_load_dwordx8 s[20:27], s[0:1], 64")
a("s_load_dwordx16 s[4:19], s[0:1], 0")
a("s_load_dwordx2 s[28:29], s[0:1], 96")
a("s_cmp_ge_u32 s2, 256"); a("s_cbranch_scc1 L_end")
stamp(0)
a("v_lshrrev_b32 v2, 6, v0"); a("v_and_b32 v1, 63, v0"); V("v_readfirstlane_b32 s%d, v2", sLD)
V("v_lshrrev_b32 v%d, 4, v%d", vG, vL); V("v_and_b32 v%d, 15, v%d", vC, vL)
V("s_and_b32 s%d, s2, 7", sx); V("s_lshr_b32 s%d, s2, 3", sy)
V("s_mov_b32 s%d, 400000", sTO); V("v_mov_b32 v%d, %d", vZ, LS)
V("s_mov_b32 s%d, 0x01010101", sONES); V("s_mov_b32 s%d, 0x01010101", sONES + 1)
if STAMPS:
    for i in range(1, NST): V("s_mov_b64 s[%d:%d], 0", sSTMP + 2 * i, sSTMP + 2 * i + 1)
if P["pf"]:
    V("s_and_b32 s%d, s%d, 14", st0, sLD); V("s_cmp_lg_u32 s%d, 4", st0); a("s_cbranch_scc1 L_nopf")
    if P["pf"] == 2:
        V("s_and_b32 s%d, s%d, 7", st0, sy); V("s_cmp_lg_u32 s%d, 7", st0); a("s_cbranch_scc1 L_nopf")
    V("s_getpc_b64 s[%d:%d]", sB, sB + 1); a.label("L_pc")
    V("v_and_b32 v%d, 127, v0", TMP); V("v_lshlrev_b32 v%d, 7, v%d", TMP, TMP); V("v_min_u32 v%d, L_codeend-L_pc-4, v%d", TMP, TMP)
    V("global_load_dword v%d, v%d, s[%d:%d]", ACC, TMP, sB, sB + 1)
    a.label("L_nopf")
V("s_cmp_ge_u32 s%d, 4", sLD); a("s_cbranch_scc1 L_comp")
LOADER_POS = len(a.l)
a.label("L_comp")
V("s_sub_u32 s%d, s%d, 4", sJ, sLD)
if P["cprio"]: a("s_setprio %d" % P["cprio"])
V("v_lshrrev_b32 v%d, 5, v%d", TMP, vL); V("v_lshlrev_b32 v%d, 11, v%d", TMP + 1, TMP); V("v_and_b32 v%d, 31, v%d", TMP + 2, vL)
V("v_lshl_add_u32 v%d, v%d, 1, v%d", TMP + 3, TMP + 2, TMP + 1)
V("s_lshl_b32 s%d, s%d, 6", st0, sy); V("v_add_u32 v%d, s%d, v%d", TMP + 4, st0, TMP + 3)
V("v_lshl_add_u32 v%d, v%d, 3, v%d", TMP + 5, TMP + 2, TMP + 1); V("s_lshl_b32 s%d, s%d, 8", st0, sJ); V("v_add_u32 v%d, s%d, v%d", TMP + 5, st0, TMP + 5)
lin(st1, [(256, sx), (32, sJ)])
V("v_and_b32 v%d, 1, v%d", TMP + 6, vG); V("v_lshlrev_b32 v%d, 11, v%d", TMP + 6, TMP + 6); V("v_lshl_add_u32 v%d, v%d, 1, v%d", TMP + 6, vC, TMP + 6); V("v_add_u32 v%d, s%d, v%d", TMP + 6, st1, TMP + 6)
V("v_mov_b32 v%d, 0", TMP + 8); V("v_lshl_add_u32 v%d, v%d, 2, v%d", TMP + 9, TMP + 2, vZ)
V("ds_write_b32 v%d, v%d", TMP + 9, TMP + 8)
a("s_waitcnt lgkmcnt(0)")
V("global_load_dwordx2 v[%d:%d], v%d, s[%d:%d]", vXS, vXS + 1, TMP + 5, sX, sX + 1)
V("global_load_ushort v%d, v%d, s[%d:%d]", GL, TMP + 4, sC, sC + 1)
V("global_load_ushort v%d, v%d, s[%d:%d]", vXD, TMP + 6, sX, sX + 1)
V("s_load_dword s%d, s[%d:%d], 0", sEP, sWS, sWS + 1)
a("s_barrier")
V("s_and_b32 s%d, s%d, 15", sz, sy)
V("s_mov_b32 s%d, 0x%x", sTM, TAGM); V("s_mov_b32 s%d, 0", sHI); V("s_mov_b32 s%d, -1", sHI + 1)
V("v_mov_b32 v%d, 1", vONE); V("v_add_u32 v%d, s%d, v%d", vFL, sJ, vZ)
V("s_lshl_b32 s%d, s%d, 7", st0, sJ); V("v_and_b32 v%d, 7, v%d", TMP + 4, vL); V("v_lshl_add_u32 v%d, v%d, 4, s%d", vJQ, TMP + 4, st0)
V("v_lshl_add_u32 v%d, v%d, 2, s%d", vPUB, TMP + 2, st0)
V("v_bfe_u32 v%d, v%d, 2, 3", TMP + 16, vL); V("v_lshl_add_u32 v%d, v%d, 4, v%d", TMP + 17, TMP, TMP + 16)
V("v_xor_b32 v%d, s%d, v%d", TMP + 4, sJ, TMP + 16); V("v_lshlrev_b32 v%d, 5, v%d", TMP + 4, TMP + 4); V("v_and_b32 v%d, 3, v%d", TMP + 5, vL); V("v_lshl_add_u32 v%d, v%d, 3, v%d", TMP + 4, TMP + 5, TMP + 4)
V("v_lshl_add_u32 v%d, v%d, 9, v%d", vTR5, TMP + 17, TMP + 4); V("v_lshl_add_u32 v%d, v%d, 8, v%d", vTR2, TMP + 17, TMP + 4)
V("v_bfe_u32 v%d, v%d, 2, 1", TMP + 4, vL); V("v_mul_u32_u24 v%d, %d, v%d", TMP + 7, ASTR, TMP + 4); V("v_lshl_add_u32 v%d, v%d, 4, v%d", TMP + 4, vG, TMP + 7); V("v_add_u32 v%d, v%d, v%d", vAF, TMP + 4, vZ)
vW32 = TMP + 18
perm32(TMP + 4, TMP + 2, TMP + 5); V("v_mul_u32_u24 v%d, %d, v%d", TMP + 5, ASTR, TMP); V("v_lshl_add_u32 v%d, v%d, 1, v%d", TMP + 4, TMP + 4, TMP + 5); V("v_add_u32 v%d, v%d, v%d", vW32, TMP + 4, vZ)
V("v_and_b32 v%d, 3, v%d", TMP + 4, vL); V("v_lshl_add_u32 v%d, v%d, 2, v%d", TMP + 4, TMP + 4, vG); V("s_lshl_b32 s%d, s%d, 4", st0, sJ); V("v_add_u32 v%d, s%d, v%d", TMP + 4, st0, TMP + 4)
perm32(TMP + 4, TMP + 4, TMP + 5); V("v_lshl_add_u32 v%d, v%d, 1, v%d", TMP + 4, TMP + 4, TMP + 7); V("v_add_u32 v%d, v%d, v%d", vWV, TMP + 4, vZ)
V("v_and_b32 v%d, 1, v%d", TMP + 4, vG); V("v_lshlrev_b32 v%d, 7, v%d", TMP + 10, TMP); V("v_lshl_add_u32 v%d, v%d, 3, v%d", TMP + 10, TMP + 4, TMP + 10); V("v_add3_u32 v%d, v%d, v%d, s%d", TMP + 10, TMP + 10, vZ, st0)
V("v_lshlrev_b32 v%d, 7, v%d", TMP + 11, TMP + 4); V("v_lshl_add_u32 v%d, v%d, 3, v%d", TMP + 11, vC, TMP + 11); V("v_add_u32 v%d, v%d, v%d", TMP + 11, TMP + 11, vZ)
V("v_add_u32 v%d, %d, v%d", TMP + 12, SLA, vTR5)
wsb(sB, [(32768, sx), (1024, sy)], O_S1)
if STAMPS: wsb(sSTB, [(NST * 8 * 12, 2), (NST * 8, sLD)], 128 << 20)
V("s_mov_b32 s%d, 0x3f803f80", st0)
V("s_cmp_eq_u32 s%d, 0", sy); V("s_cselect_b32 s%d, 1.0, 0", st2)
a("s_waitcnt vmcnt(0)")
V("v_dot2_f32_bf16 v%d, v%d, s%d, 0", GD, vXS, st0); V("v_dot2_f32_bf16 v%d, v%d, v%d, 0", GD + 1, vXS, vXS)
V("v_dot2_f32_bf16 v%d, v%d, s%d, v%d", GD, vXS + 1, st0, GD); V("v_dot2_f32_bf16 v%d, v%d, v%d, v%d", GD + 1, vXS + 1, vXS + 1, GD + 1)
V("v_lshlrev_b32 v%d, 16, v%d", GL, GL)
V("v_mul_f32 v%d, 0xbfb8aa3b, v%d", GL + 2, GL); V("v_exp_f32 v%d, v%d", GL + 2, GL + 2)
allred([GD, GD + 1], 2)
V("v_add_f32 v%d, 1.0, v%d", GL + 2, GL + 2); V("v_rcp_f32 v%d, v%d", GL + 2, GL + 2)
for r in (GD, GD + 1): dpp("v_add_f32", r, r, r, "row_half_mirror")
V("v_mul_f32 v%d, v%d, v%d", GL, GL, GL + 2); pack(GL)
for r in (GD, GD + 1): dpp("v_add_f32", r, r, r, "row_mirror")
V("ds_write_b16 v%d, v%d offset:%d", vW32, GL, A_C1)
V("ds_write_b64 v%d, v[%d:%d] offset:%d", TMP + 10, GD, GD + 1, A_ST1)
arrive(B_P1A)
V("v_lshlrev_b32 v%d, 16, v%d", vXD, vXD)
a("s_waitcnt lgkmcnt(0)")
V("s_add_u32 s%d, s%d, 0x9e5", sT, sEP); V("s_and_b32 s%d, s%d, s%d", sT, sT, sTM); V("v_mov_b32 v%d, s%d", vT, sT)
V("s_mul_i32 s%d, s%d, 0x00100101", sTW, sT); V("s_xor_b32 s%d, s%d, 0x5a5a0000", sTW, sTW); V("v_mov_b32 v%d, s%d", vTW, sTW)
spin(B_P1A)
V("ds_read_b64 v[%d:%d], v%d offset:%d", GD, GD + 1, TMP + 11, A_ST1); emit(afrags(vAF, A_C1, 1))
a("s_waitcnt lgkmcnt(0)")
allred([GD, GD + 1], 4); lnstats(GD, GD + 1)
V("v_sub_f32 v%d, v%d, v%d", vXD, vXD, GD); V("v_mul_f32 v%d, v%d, v%d", vXD, vXD, GD + 1)
landed(None, 4)
stamp(1)
trreads(WA, 512, 1, [(TMP + 12, 0), (TMP + 12, 256)])
a("s_waitcnt lgkmcnt(0)")
mfma(ACC + 4, vA, WA + 4, True); mfma(ACC, vA, WA, True)
V("v_add_f32 v%d, s%d, v%d", ACC + 4, st2, ACC + 4); V("v_fmac_f32 v%d, v%d, v%d", ACC, vXD, ACC + 4); tag([ACC])
pub32(ACC, vPUB, sB)
stamp(2)
def late(grp):
    mtile(grp)
    V("v_and_b32 v%d, 4, v%d", TMP + 5, vL); V("v_lshlrev_b32 v%d, 9, v%d", TMP + 5, TMP + 5); V("v_and_b32 v%d, 3, v%d", TMP + 6, vL)
    V("v_lshl_add_u32 v%d, v%d, 3, v%d", TMP + 5, TMP + 6, TMP + 5); V("v_lshl_add_u32 v%d, v%d, 1, v%d", TMP + 19, vG, TMP + 5)
    lin(st0, [(256, sMRB), (32, sJ)]); V("v_add_u32 v%d, s%d, v%d", TMP + 6, st0, TMP + 19)
    if not (MALL and grp == 0): V("global_load_ushort v%d, v%d, s[%d:%d]", vGA, TMP + 6, sC, sC + 1)
    if MALL and grp: V("global_load_ushort v%d, v%d, s[%d:%d] offset:256", vX, TMP + 6, sC, sC + 1)
    if grp == 0:
        lin(st0, [(256, sx), (32, sJ)]); V("v_add_u32 v%d, s%d, v%d", TMP + 19, st0, TMP + 19)
        V("global_load_ushort v%d, v%d, s[%d:%d]", vX, TMP + 19, sX, sX + 1)
def late_use(grp):
    a("s_waitcnt vmcnt(0)")
    if not (MALL and grp == 0):
        V("v_lshlrev_b32 v%d, 16, v%d", vGA, vGA); silu(vGA, vCB); pack(vGA)
        V("ds_write_b16 v%d, v%d offset:%d", vWV, vGA, A_C2)
    if MALL and grp:
        V("v_lshlrev_b32 v%d, 16, v%d", vX, vX); silu(vX, vCB); pack(vX)
        V("ds_write_b16 v%d, v%d offset:%d", vWV, vX, A_C2 + 256)
    if grp == 0: V("v_lshlrev_b32 v%d, 16, v%d", vX, vX)
def p1b(grp, slot, thr, front):
    if front: arrive(B_C2); spin(B_C2, sleep=1)
    ns = 8 if MALL else 4
    emit(afrags(vAF, A_C2, ns))
    V("v_add_u32 v%d, %d, v%d", TMP + 1, slot, vTR2)
    wsb(sB6, [(32768, sMCB), (8192, sMOD), (1024, sMRB)], O_SM)
    landed(grp, thr)
    trreads(WA, 256, ns, [(TMP + 1, 0)])
    arrive(B_MF)
    for s in range(ns):
        a("s_waitcnt lgkmcnt(%d)" % (2 * ns - 1 - 2 * s)); mfma(ACC + 4 * (s >> 2), vA + 4 * s, WA + 4 * s, (s & 3) == 0)
    if MALL:
        V("v_lshrrev_b32 v%d, 5, v%d", TMP + 1, vL); V("v_lshl_add_u32 v%d, v%d, 10, v%d", TMP + 1, TMP + 1, vPUB)
        V("v_cndmask_b32 v%d, v%d, v%d, s[%d:%d]", ACC, ACC, ACC + 4, sHI, sHI + 1); tag([ACC])
        V("global_store_dword v%d, v%d, s[%d:%d] sc1", TMP + 1, ACC, sB6, sB6 + 1)
    else:
        tag([ACC]); pub32(ACC, vPUB, sB6)
vG8 = TMP + 8
a("s_cmp_ge_u32 s2, 128"); a("s_cbranch_scc1 L_B")
late(0)
vL16, vQW, vQA, vMW, vPW, vPA, vVA, vVB, vLW, vLR, vMR, vS3, vH2, vSH = TMP + 8, TMP + 9, TMP + 10, TMP + 11, TMP + 12, TMP + 13, TMP + 14, TMP + 15, TMP + 16, TMP + 17, TMP + 18, vXS, vXS + 1, vXD
wsb(sB, [(32768, sx), (4096, sJ)], O_S2)
V("v_lshlrev_b32 v%d, 4, v%d", vL16, vL)
V("v_and_b32 v%d, 31, v%d", vQW, vL); V("v_lshlrev_b32 v%d, 3, v%d", vQW, vQW); V("v_lshrrev_b32 v%d, 5, v%d", TMP + 4, vL); V("v_lshl_add_u32 v%d, v%d, 2, v%d", vQW, TMP + 4, vQW)
V("s_mul_i32 s%d, s%d, 288", st0, sJ); V("v_add3_u32 v%d, v%d, v%d, s%d", vQW, vQW, vZ, st0)
V("v_and_b32 v%d, 7, v%d", TMP + 4, vL)
V("v_mul_u32_u24 v%d, 288, v%d", vQA, TMP + 4); V("v_lshl_add_u32 v%d, v%d, 4, v%d", vQA, vG, vQA); V("v_add_u32 v%d, v%d, v%d", vQA, vQA, vZ)
V("v_lshl_add_u32 v%d, v%d, 5, v%d", vMR, TMP + 4, vZ); V("s_lshl_b32 s%d, s%d, 2", st0, sJ); V("v_add_u32 v%d, s%d, v%d", vMW, st0, vMR)
V("v_mul_u32_u24 v%d, 544, v%d", vPA, TMP + 4); V("v_add_u32 v%d, v%d, v%d", vPA, vPA, vZ)
V("v_and_b32 v%d, 0x38, v%d", vPW, vL); V("s_lshl_b32 s%d, s%d, 6", st0, sJ); V("v_add3_u32 v%d, v%d, v%d, s%d", vPW, vPW, vPA, st0)
V("v_lshl_add_u32 v%d, v%d, 4, v%d", vPA, vG, vPA)
V("v_mul_u32_u24 v%d, 272, v%d", vLW, TMP + 4); V("v_lshrrev_b32 v%d, 3, v%d", TMP + 6, vL); V("v_lshl_add_u32 v%d, v%d, 2, v%d", vLW, TMP + 6, vLW)
V("s_lshl_b32 s%d, s%d, 5", st0, sJ); V("v_add3_u32 v%d, v%d, v%d, s%d", vLW, vLW, vZ, st0)
V("v_xor_b32 v%d, v%d, v%d", GL, TMP + 4, vG); V("v_lshlrev_b32 v%d, 4, v%d", GL, GL); V("v_lshl_add_u32 v%d, v%d, 8, v%d", GL, TMP + 4, GL)
V("v_and_b32 v%d, 8, v%d", TMP + 4, vL); V("v_lshl_add_u32 v%d, v%d, 9, v%d", GL, TMP + 4, GL)
V("s_lshl_b32 s%d, s%d, 13", st0, sJ); V("v_add_u32 v%d, s%d, v%d", GL, st0, GL)
for s in range(1, 4): V("v_xor_b32 v%d, %d, v%d", GL + s, s << 6, GL)
V("s_mov_b32 s%d, 0xff00ff00", sMSK); V("s_mov_b32 s%d, 0xff00ff00", sMSK + 1)
V("v_and_b32 v%d, 1, v%d", TMP + 4, vG); V("v_and_b32 v%d, 2, v%d", TMP + 5, vG); V("v_lshl_add_u32 v%d, v%d, 2, v%d", TMP + 4, TMP + 4, TMP + 5)
V("v_lshlrev_b32 v%d, 14, v%d", vS3, TMP + 4); V("v_lshl_add_u32 v%d, v%d, 3, v%d", vS3, vC, vS3)
V("v_lshlrev_b32 v%d, 5, v%d", vH2, TMP + 4); V("v_lshl_add_u32 v%d, v%d, 2, v%d", vH2, vC, vH2); V("v_lshl_add_u32 v%d, v%d, 3, v%d", vLR, vH2, vZ)
V("v_lshrrev_b32 v%d, 5, v%d", TMP + 6, vH2); V("v_lshl_add_u32 v%d, v%d, 4, v%d", vLR, TMP + 6, vLR); V("v_add_u32 v%d, v%d, v%d", vH2, vH2, vZ)
V("v_and_b32 v%d, 1, v%d", vSH, vL); V("v_mul_u32_u24 v%d, 12, v%d", vSH, vSH); V("v_sub_u32 v%d, 20, v%d", vSH, vSH)
V("s_lshl_b32 s%d, s%d, 1", st0, sJ); V("s_and_b32 s%d, s%d, 7", st0, st0); V("s_xor_b32 s%d, s%d, s%d", st0, st0, sJ); V("s_lshl_b32 s%d, s%d, 5", st0, st0)
V("v_xor_b32 v%d, s%d, v%d", vVA, st0, vTR2); V("v_add_u32 v%d, %d, v%d", vVA, SL1, vVA); V("v_xor_b32 v%d, 32, v%d", vVB, vVA)
V("s_and_b32 s%d, s%d, 3", st1, sx); V("s_lshr_b32 s%d, s%d, 2", st2, sx)
wsb(sB2, [(8 * 16384, st1), (4096, sJ), (256, sz), (128, st2)], O_S3); base(sB3, sB2, None, 16384)
SC = struct.unpack("<I", struct.pack("<f", 128 ** -0.5 * math.log2(math.e)))[0]
V("s_mov_b32 s%d, 0x%08x", st1, SC)
late_use(0)
if P["ma"]: p1b(0, SLM_A, EA["m"], True); stamp(13)
landed(0, EA["K"])
for s in range(4):
    for t in range(2): V("ds_read_b128 v[%d:%d], v%d offset:%d", WA + 16 * t + 4 * s, WA + 16 * t + 4 * s + 3, GL + (s ^ (2 * t)), SL0 + t * 2048)
landed(0, EA["V"] - P["g2"])
stamp(3)
g2 = [gl(GD + 4 * i, vL16, sB, i * 1024) for i in range(4)]
emit(g2)
V("s_cmp_ge_u32 s%d, 4", sJ); a("s_cbranch_scc1 L_nv1")
landed(0, EA["V"])
trreads(WB, 256, 8, [(vVA, 0)]); trreads(vA, 256, 8, [(vVB, 0)])
a.label("L_nv1")
gfinish(g2, R(GD, 16), cnt=1)
stamp(4)
add4(GD, GD + 4); add4(GD + 8, GD + 12); add4(GD, GD + 8)
V("v_permlane32_swap_b32 v%d, v%d", GD, GD + 2); V("v_permlane32_swap_b32 v%d, v%d", GD + 1, GD + 3)
V("v_add_f32 v%d, v%d, v%d", GD, GD, GD + 2); V("v_add_f32 v%d, v%d, v%d", GD + 1, GD + 1, GD + 3)
V("v_cvt_pk_bf16_f32 v%d, v%d, v%d", GD, GD, GD + 1)
V("ds_write_b32 v%d, v%d offset:%d", vQW, GD, A_Q)
hbar(afrags(vQA, A_Q, 4, GD))
for s in range(4):
    a("s_waitcnt lgkmcnt(%d)" % (3 - s))
    for t in range(2): mfma(ACC + 4 * t, WA + 16 * t + 4 * s, GD + 4 * s, s == 0)
for i in range(4): V("v_cndmask_b32 v%d, v%d, v%d, s[%d:%d]", ACC + i, ACC + i, ACC + 4 + i, sMSK, sMSK + 1)
V("v_max_f32 v%d, v%d, v%d", GL, ACC, ACC + 1); V("v_max3_f32 v%d, v%d, v%d, v%d", GL, GL, ACC + 2, ACC + 3)
dpp("v_max_f32", GL, GL, GL, "row_ror:8")
rowred(GL, GL + 1, "v_max_f32")
a("s_mov_b64 exec, 0xff"); V("ds_write_b32 v%d, v%d offset:%d", vMW, GL, A_MX); a("s_mov_b64 exec, -1")
hbar(["ds_read_b128 v[%d:%d], v%d offset:%d" % (GL + 4 * i, GL + 4 * i + 3, vMR, A_MX + 16 * i) for i in range(2)])
a("s_waitcnt lgkmcnt(0)")
V("v_max3_f32 v%d, v%d, v%d, v%d", GL, GL, GL + 1, GL + 2); V("v_max3_f32 v%d, v%d, v%d, v%d", GL + 4, GL + 4, GL + 5, GL + 6)
V("v_max3_f32 v%d, v%d, v%d, v%d", GL, GL, GL + 3, GL + 7); V("v_max_f32 v%d, v%d, v%d", GL, GL, GL + 4)
V("v_mul_f32 v%d, s%d, v%d", GL, st1, GL)
for i in range(4): V("v_fma_f32 v%d, v%d, s%d, -v%d", ACC + i, ACC + i, st1, GL)
for i in range(4): V("v_exp_f32 v%d, v%d", ACC + i, ACC + i)
for i in range(2): V("v_cvt_pk_bf16_f32 v%d, v%d, v%d", GL + 2 + i, ACC + 2 * i, ACC + 2 * i + 1)
V("ds_write_b64 v%d, v[%d:%d] offset:%d", vPW, GL + 2, GL + 3, A_P)
V("v_add_f32 v%d, v%d, v%d", ACC, ACC, ACC + 1); V("v_add_f32 v%d, v%d, v%d", ACC + 2, ACC + 2, ACC + 3); V("v_add_f32 v%d, v%d, v%d", ACC, ACC, ACC + 2)
V("ds_write_b32 v%d, v%d offset:%d", vLW, ACC, A_LS)
hbar()
V("s_cmp_ge_u32 s%d, 4", sJ); a("s_cbranch_scc1 L_nopv")
pf_ = afrags(vPA, A_P, 8, WA)
emit(pf_[:2] + ["ds_read_b128 v[%d:%d], v%d offset:%d" % (GD + 8 + 4 * i, GD + 11 + 4 * i, vLR, A_LS + 16 * i) for i in range(2)] + ["ds_read_b32 v%d, v%d offset:%d" % (GL + 1, vH2, A_MX)] + pf_[2:])
for s in range(8):
    a("s_waitcnt lgkmcnt(%d)" % (10 - s if s < 2 else 7 - s))
    for t in range(2): mfma(ACC + 4 * t, WA + 4 * s, (WB, vA)[t] + 4 * s, s == 0)
    if s == 2:
        add4(GD + 8, GD + 12); V("v_add_f32 v%d, v%d, v%d", GD + 8, GD + 8, GD + 9); V("v_add_f32 v%d, v%d, v%d", GD + 10, GD + 10, GD + 11)
    if s == 3: V("v_add_f32 v%d, v%d, v%d", GL, GD + 8, GD + 10)
    if 3 <= s < 6:
        ctl = ("quad_perm:[1,0,3,2]", "quad_perm:[2,3,0,1]", "row_half_mirror")[s - 3]
        dpp("v_max_f32", GL + 1, GL + 1, GL + 1, ctl); dpp("v_add_f32", GL, GL, GL, ctl)
    if s == 6: V("v_log_f32 v%d, v%d", GL + 2, GL); V("v_rcp_f32 v%d, v%d", GL, GL)
    if s == 7:
        V("v_fmac_f32 v%d, s%d, v%d", GL + 2, st1, GL + 1); V("v_mov_b32 v%d, v%d", GL + 1, GL)
        V("v_lshrrev_b32 v%d, v%d, v%d", GL + 2, vSH, GL + 2)
        V("v_mov_b32_dpp v%d, v%d row_ror:8 row_mask:0xf bank_mask:0x3", GL + 1, GL); V("v_mov_b32 v%d, v%d", GL + 3, GL + 2)
        V("v_mov_b32_dpp v%d, v%d row_ror:8 row_mask:0xf bank_mask:0xc", GL, GL)
        V("v_mov_b32_dpp v%d, v%d row_ror:8 row_mask:0xf bank_mask:0x3", GL + 3, GL + 2); V("v_mov_b32_dpp v%d, v%d row_ror:8 row_mask:0xf bank_mask:0xc", GL + 2, GL + 2)
for k in range(2):
    for t in range(2): V("v_cndmask_b32 v%d, v%d, v%d, s[%d:%d]", GD + 2 * k + t, ACC + 4 * t + k, ACC + 4 * t + 2 + k, sHI, sHI + 1)
    for t in range(2): V("v_mul_f32 v%d, v%d, v%d", GD + 2 * k + t, GD + 2 * k + t, GL + k)
    V("v_bfi_b32 v%d, s%d, v%d, v%d", GD + 2 * k, sTM, vT, GD + 2 * k); V("v_bfi_b32 v%d, s%d, v%d, v%d", GD + 2 * k + 1, sTM, GL + 2 + k, GD + 2 * k + 1)
    V("global_store_dwordx2 v%d, v[%d:%d], s[%d:%d] sc1", vS3, GD + 2 * k, GD + 2 * k + 1, (sB2, sB3)[k], (sB2, sB3)[k] + 1)
a.label("L_nopv")
stamp(5)
GM = WB
gm = [gl(GM + 4 * i, vG8, (sB, sB2, sB3, sB4)[i]) for i in range(4)]
def gmaddr():
    V("v_lshrrev_b32 v%d, 3, v%d", vG8, vL); V("v_lshl_add_u32 v%d, v%d, 10, v%d", vG8, vG8, vJQ)
    wsb(sB, [(32768, sx)], O_SM); base(sB2, sB, None, 8192); base(sB3, sB, None, 16384); base(sB4, sB, None, 24576)
if P["gme"]:
    assert P["ma"]
    gmaddr(); emit(gm)
a("s_barrier")
if not P["ma"] and not MALL: p1b(0, SLM_A, EA["m"], False); stamp(13)
V("s_cmp_ge_u32 s%d, 14", sz); a("s_cbranch_scc1 L_fin")
vG4, vP5, vA5, vS2W, vF1, vG6, vGB = TMP + 9, TMP + 10, TMP + 11, TMP + 12, TMP + 13, TMP + 16, TMP + 17
if not P["gme"]: gmaddr()
V("v_add_u32 v%d, %d, v%d", vF1, SLF1, vTR5)
V("v_lshrrev_b32 v%d, 3, v%d", vG4, vL); V("v_cmp_gt_u32 s[%d:%d], 7, v%d", sMSK, sMSK + 1, vG4); V("v_min_u32 v%d, 6, v%d", vG6, vG4)
V("v_lshl_add_u32 v%d, v%d, %d, v%d", vG6, vG6, 11 if LOC else 12, vJQ); V("v_lshl_add_u32 v%d, v%d, 11, v%d", vG4, vG4, vJQ)
V("v_lshrrev_b32 v%d, 5, v%d", vP5, vL); V("v_lshl_add_u32 v%d, v%d, 13, v%d", vP5, vP5, vPUB)
V("v_and_b32 v%d, 3, v%d", vA5, vL); V("v_min_u32 v%d, 2, v%d", vA5, vA5); V("v_mul_u32_u24 v%d, %d, v%d", vA5, 2 * ASTR, vA5); V("v_add_u32 v%d, v%d, v%d", vA5, vA5, vAF)
V("v_and_b32 v%d, 4, v%d", vS2W, vL); V("v_lshlrev_b32 v%d, 6, v%d", vS2W, vS2W); V("v_lshl_add_u32 v%d, v%d, 3, v%d", vS2W, vG, vS2W); V("s_lshl_b32 s%d, s%d, 5", st0, sJ); V("v_add3_u32 v%d, v%d, v%d, s%d", vS2W, vS2W, vZ, st0)
wsb(sB5, [(16384, sx)], O_S4)
g4 = [gl(GD + 4 * i, vG4, sB5, i * 1024) for i in range(2)]
assert not P["vt"] and not P["gme"]
GJ = True
def f1frags(): trreads(WA, 512, 4, [(vF1, 0), (vF1, 256)])
if P["h4"]:
    either(0, EA["f1"], 1, f1frags); stamp(7); emit(gm); emit(g4); maybe(0, EA["f1"], f1frags)
else:
    landed(0, EA["f1"] - P["gm"]); emit(gm); stamp(7); emit(g4); landed(0, EA["f1"]); f1frags()
gfinish(gm, R(GM, 16), cnt=0x100, nyoung=2 if GJ else 0)
stamp(6)
swapred([GM, GM + 4, GM + 8, GM + 12])
V("v_mov_b32 v%d, v%d", vGA, GM); V("v_add_f32 v%d, 1.0, v%d", vCB, GM + 8); V("v_mov_b32 v%d, v%d", vGB, GM + 12); pack(GM + 4); pack(vCB, GM + 2)
V("ds_write_b16 v%d, v%d offset:%d", vWV, GM + 2, A_X + 2 * ASTR); V("ds_write_b16 v%d, v%d offset:%d", vWV, GM + 4, A_X + 4 * ASTR)
if P["vt"]: arrive(B_VT)
wsb(sB3, [(16384, sz), (1024, sx)], O_S5U); base(sB, sB3, None, O_S5V - O_S5U); base(sB2, sB3, None, O_S5T - O_S5U)
if not GJ: landed(0, EA["f1"])
if P["vt"]:
    spin(B_VT, sleep=1)
    emit(afrags(vA5, A_X, 4))
if not GJ: trreads(WA, 512, 4, [(vF1, 0), (vF1, 256)])
if P["vt"]:
    for s in range(4):
        a("s_waitcnt lgkmcnt(%d)" % (12 - 4 * s))
        for h in range(2): mfma(ACC + 4 * h, vA + 4 * s, WA + 8 * s + 4 * h, s == 0)
    for r in (1, 2):
        V("v_cndmask_b32 v%d, v%d, v%d, s[%d:%d]", GL + r, ACC + r, ACC + 4 + r, sHI, sHI + 1); tag([GL + r])
        V("global_store_dword v%d, v%d, s[%d:%d] sc1", vP5, GL + r, (sB3, sB, sB2)[r], (sB3, sB, sB2)[r] + 1)
stamp(14)
if not GJ: stamp(7); emit(g4)
gfinish(g4, R(GD, 8), cnt=0x10000)
stamp(8)
add4(GD, GD + 4); swapred([GD])
V("v_fmac_f32 v%d, v%d, v%d", vX, vGA, GD)
V("v_mul_f32 v%d, v%d, v%d", GD, vX, vCB); V("v_mul_f32 v%d, v%d, v%d", GD + 3, vX, vX); pack(GD)
dpp("v_add_f32", GD + 2, vX, vX, "quad_perm:[1,0,3,2]"); dpp("v_add_f32", GD + 3, GD + 3, GD + 3, "quad_perm:[1,0,3,2]")
V("ds_write_b16 v%d, v%d offset:%d", vWV, GD, A_X)
dpp("v_add_f32", GD + 2, GD + 2, GD + 2, "quad_perm:[2,3,0,1]"); dpp("v_add_f32", GD + 3, GD + 3, GD + 3, "quad_perm:[2,3,0,1]")
V("ds_write_b64 v%d, v[%d:%d] offset:%d", vS2W, GD + 2, GD + 3, A_ST2)
hbarf(P["h4"], f1frags, afrags(vA5, A_X, 4))
for s in range(4):
    a("s_waitcnt lgkmcnt(%d)" % (3 - s))
    for h in range(2): mfma(ACC + 4 * h, vA + 4 * s, WA + 8 * s + 4 * h, s == 0)
for r in range(1 if P["vt"] else 3):
    V("v_cndmask_b32 v%d, v%d, v%d, s[%d:%d]", GD + r, ACC + r, ACC + 4 + r, sHI, sHI + 1); tag([GD + r])
    V("global_store_dword v%d, v%d, s[%d:%d] sc1", vP5, GD + r, (sB3, sB, sB2)[r], (sB3, sB, sB2)[r] + 1)
stamp(9)
V("s_cmp_lg_u32 s%d, s%d", sz, sJ); a("s_cbranch_scc1 L_fin")
wsb(sB6, [(NP6 * 1024, sx)], O_S6L if LOC else O_S6); V("s_mov_b32 s%d, 60", sALT)
if P["h6"] and not LOC:
    V("s_lshr_b32 s%d, s%d, 1", st1, sx); wsb(sB, [(4096, st1)], O_F6)
    V("v_min_u32 v%d, 27, v%d", TMP + 1, vL); V("v_lshlrev_b32 v%d, 7, v%d", TMP + 1, TMP + 1)
    def body():
        a("s_mov_b32 exec_hi, 0")
        V("global_load_dword v%d, v%d, s[%d:%d] sc1", TMP + 2, TMP + 1, sB, sB + 1); a("s_waitcnt vmcnt(0)")
        V("v_cmp_ne_u32 vcc, v%d, v%d", TMP + 2, vTW); a("s_mov_b64 exec, -1")
    waitloop(body, P["wsleep"])
if P["d6"]: a("s_sleep %d" % P["d6"])
stamp(11)
g6 = [gl(GD + 4 * i, vG6, sB6, i * 1024) for i in range(2 if LOC else 4)]
emit(g6); gfinish(g6, R(GD, 8 if LOC else 16), cnt=0x1000000, alt=(sB6, O_S6L - O_S6) if LOC else None)
add4(GD, GD + 4)
if not LOC: add4(GD + 8, GD + 12); add4(GD, GD + 8)
for i in range(4): V("v_cndmask_b32 v%d, 0, v%d, s[%d:%d]", GD + i, GD + i, sMSK, sMSK + 1)
swapred([GD])
V("v_fmac_f32 v%d, v%d, v%d", vX, vGB, GD); pack(vX)
a("s_mov_b32 exec_lo, 0x00ff00ff"); a("s_mov_b32 exec_hi, 0x00ff00ff")
V("global_store_short v%d, v%d, s[%d:%d]", TMP + 19, vX, sOUT, sOUT + 1)
a("s_mov_b64 exec, -1")
stamp(10)
if P["light"]:
    V("s_memrealtime s[%d:%d]", sSTMP + 2, sSTMP + 3)
    wsb(sSTB, [(16, 2)], 128 << 20)
    a("s_waitcnt lgkmcnt(0)"); V("v_mov_b32 v%d, 0", TMP)
    for i in range(4): V("v_mov_b32 v%d, s%d", TMP + 4 + i, sSTMP + i)
    a("s_mov_b64 exec, 1"); V("global_store_dwordx4 v%d, v[%d:%d], s[%d:%d]", TMP, TMP + 4, TMP + 7, sSTB, sSTB + 1); a("s_mov_b64 exec, -1")
a("s_cmp_lg_u32 s2, 0"); a("s_cbranch_scc1 L_fin")
V("v_mov_b32 v%d, 0", TMP); a("s_mov_b64 exec, 1")
V("global_store_dword v%d, v%d, s[%d:%d] sc1", TMP, vT, sWS, sWS + 1)
a("s_mov_b64 exec, -1")
if AMP >= 0:
    V("s_memrealtime s[%d:%d]", sB, sB + 1); a("s_waitcnt lgkmcnt(0)")
    V("s_sub_u32 s%d, s%d, s%d", st0, sSTMP + 2 * AMP, sSTMP); V("s_mul_i32 s%d, s%d, 10", st0, st0); V("s_min_u32 s%d, s%d, 100000", st0, st0)
    a.label("L_amp")
    V("s_memrealtime s[%d:%d]", sB2, sB2 + 1); a("s_waitcnt lgkmcnt(0)")
    V("s_sub_u32 s%d, s%d, s%d", st1, sB2, sB); V("s_cmp_lt_u32 s%d, s%d", st1, st0); a("s_cbranch_scc1 L_amp")
a("s_branch L_fin")
a.label("L_B")
late(1)
vG1, vQ0, vQ1, vA2, vP2, vL16, vW4 = TMP + 9, TMP + 10, TMP + 11, TMP + 12, TMP + 13, TMP + 16, TMP + 17
p6map()
wsb(sB, [(32768, sx)], O_S1)
V("v_lshrrev_b32 v%d, 3, v%d", vG1, vL); V("v_lshl_add_u32 v%d, v%d, 12, v%d", vG1, vG1, vJQ)
V("s_lshl_b32 s%d, s%d, 1", st0, sJ); V("s_and_b32 s%d, s%d, 7", st0, st0); V("s_xor_b32 s%d, s%d, s%d", st0, st0, sJ); V("s_lshl_b32 s%d, s%d, 5", st0, st0)
V("s_lshr_b32 s%d, s%d, 2", st1, sJ); V("s_lshl_b32 s%d, s%d, 8", st2, st1)
V("v_xor_b32 v%d, s%d, v%d", vQ0, st0, vTR5); V("v_add_u32 v%d, s%d, v%d", vQ0, st2, vQ0); V("v_xor_b32 v%d, 32, v%d", vQ1, vQ0)
V("v_bfe_u32 v%d, v%d, 3, 1", TMP + 7, vL); V("v_mul_u32_u24 v%d, %d, v%d", TMP + 7, ASTR, TMP + 7); V("v_lshl_add_u32 v%d, v%d, 4, v%d", vA2, vG, TMP + 7); V("v_add_u32 v%d, v%d, v%d", vA2, vA2, vZ)
V("v_lshrrev_b32 v%d, 5, v%d", vP2, vL); V("v_lshl_add_u32 v%d, v%d, 17, v%d", vP2, vP2, vPUB)
wsb(sB2, [(4096 - 512, st1), (8192, sz), (512, sx)], O_S2)
V("s_mov_b32 s%d, 0xffff0000", sMSK); V("s_mov_b32 s%d, 0xffff0000", sMSK + 1)
V("s_and_b32 s%d, s%d, 1", st0, sz); V("s_lshl_b32 s%d, s%d, 1", sHP, sx); V("s_add_u32 s%d, s%d, s%d", sHP, sHP, st0); V("s_lshr_b32 s%d, s%d, 1", sCB, sz)
wsb(sB3, [(32768, sHP), (4096, sJ)], O_S3); wsb(sB4, [(16384, sCB), (1024, sHP)], O_S4)
V("v_lshlrev_b32 v%d, 4, v%d", vL16, vL)
V("v_and_b32 v%d, 1, v%d", TMP + 4, vG); V("v_lshlrev_b32 v%d, 4, v%d", TMP + 4, TMP + 4); V("v_and_b32 v%d, 7, v%d", TMP + 5, vL); V("v_lshl_add_u32 v%d, v%d, 1, v%d", TMP + 4, TMP + 5, TMP + 4)
V("v_lshrrev_b32 v%d, 5, v%d", TMP + 5, vL); V("v_add_u32 v%d, v%d, v%d", TMP + 4, TMP + 4, TMP + 5)
perm32(TMP + 4, TMP + 4, TMP + 5)
V("v_lshl_add_u32 v%d, v%d, 1, v%d", TMP + 4, TMP + 4, TMP + 7); V("s_lshl_b32 s%d, s%d, 6", st0, sJ); V("v_add3_u32 v%d, v%d, v%d, s%d", vW4, TMP + 4, vZ, st0)
late_use(1)
if P["mb"]: p1b(1, SLM_B, EB["m"], True); stamp(6)
landed(1, EB["q"] - P["g1"])
stamp(3)
g1 = [gl(GD + 4 * i, vG1, sB, i * 1024) for i in range(4)]
emit(g1)
if P["g1"]: landed(1, EB["q"])
trreads(WA, 512, 4, [(vQ0, 0), (vQ1, 0)])
gfinish(g1, R(GD, 16), cnt=1)
stamp(4)
add4(GD, GD + 4); add4(GD + 8, GD + 12); add4(GD, GD + 8); swapred([GD]); pack(GD)
V("ds_write_b16 v%d, v%d offset:%d", vWV, GD, A_X)
hbar(afrags(vA2, A_X, 4))
for s in range(4):
    a("s_waitcnt lgkmcnt(%d)" % (3 - s))
    for h in range(2): mfma(ACC + 4 * h, vA + 4 * s, WA + 8 * s + 4 * h, s == 0)
V("v_cndmask_b32 v%d, v%d, v%d, s[%d:%d]", GD, ACC, ACC + 4, sMSK, sMSK + 1); tag([GD])
V("global_store_dword v%d, v%d, s[%d:%d] sc1", vP2, GD, sB2, sB2 + 1)
stamp(5)
a("s_barrier")
if not P["mb"]: p1b(1, SLM_B, EB["m"], False); stamp(6)
V("s_mov_b32 s%d, 0x000fff00", st2)
def ofrags(): trreads(WA, 256, 8, [(vTR2, 0)])
g3 = [gl(GD + 4 * k, vL16, sB3, k * 1024) for k in range(4)]
if P["h3"]:
    either(1, EB["o"], 1, ofrags); stamp(7); emit(g3); maybe(1, EB["o"], ofrags)
else:
    landed(1, EB["f2p"] - P["g3"]); stamp(7); emit(g3); landed(1, EB["o"]); ofrags()
gfinish(g3, [GD + 2 * k for k in range(8)], cnt=0x100, grp=True)
if P["f2mid"]: arrive(B_G3)
stamp(8)
for i in range(4): V("v_lshlrev_b32 v%d, 20, v%d", GL + i, GD + 4 * i + 1); V("v_lshlrev_b32 v%d, 8, v%d", GL + 4 + i, GD + 4 * i + 3)
for i in range(4): V("v_bfi_b32 v%d, s%d, v%d, v%d", GL + i, st2, GL + 4 + i, GL + i)
V("v_max_f32 v%d, v%d, v%d", GL + 4, GL, GL + 1); V("v_max3_f32 v%d, v%d, v%d, v%d", GL + 4, GL + 4, GL + 2, GL + 3)
rowred(GL + 4, GL + 5, "v_max_f32")
for i in range(4): V("v_sub_f32 v%d, v%d, v%d", GL + i, GL + i, GL + 4)
for i in range(4): V("v_exp_f32 v%d, v%d", GL + i, GL + i)
for e in range(4): V("v_mul_f32 v%d, v%d, v%d", GD + e, GD + e, GL)
V("v_add_f32 v%d, v%d, v%d", GL + 4, GL, GL + 1); V("v_add_f32 v%d, v%d, v%d", GL + 5, GL + 2, GL + 3); V("v_add_f32 v%d, v%d, v%d", GL + 4, GL + 4, GL + 5)
for i in range(1, 4):
    for e in range(4): V("v_fmac_f32 v%d, v%d, v%d", GD + e, GD + 4 * i + e, GL + i)
rowred(GL + 4, GL + 5, "v_add_f32")
swapred([GD], ror=False)
V("v_rcp_f32 v%d, v%d", GL + 4, GL + 4)
V("v_mul_f32 v%d, v%d, v%d", GD, GD, GL + 4); pack(GD)
V("ds_write_b16 v%d, v%d offset:%d", vW4, GD, A_Y)
hbarf(P["h3"], ofrags, afrags(vAF, A_Y, 8))
for s in range(8):
    a("s_waitcnt lgkmcnt(%d)" % (7 - s)); mfma(ACC, vA + 4 * s, WA + 4 * s, s == 0)
tag([ACC]); pub32(ACC, vPUB, sB4)
stamp(9)
a("s_barrier")
V("s_cmp_ge_u32 s%d, 14", sz); a("s_cbranch_scc1 L_fin")
vG8b, vGS, vP6, vF2 = TMP + 9, TMP + 10, TMP + 11, TMP + 12
NH = 2 if LOC else 1; vt = P["vt"]; GV = WB
wsb(sB, [(16384 if LOC else 8192, sRB)], O_S5U); base(sB2, sB, None, O_S5V - O_S5U); base(sB3, sB, None, O_S5T - O_S5U)
V("s_lshr_b32 s%d, s%d, %d", st1, sRB, 0 if LOC else 1); wsb(sB4, [(1024, st1)], O_S5S)
V("v_lshrrev_b32 v%d, 3, v%d", vG8, vL); V("v_lshl_add_u32 v%d, v%d, 10, v%d", vG8, vG8, vJQ); V("v_add_u32 v%d, 8192, v%d", vG8b, vG8)
V("v_and_b32 v%d, 0x38, v%d", vGS, vL); V("v_lshlrev_b32 v%d, 4, v%d", vGS, vGS); V("v_and_b32 v%d, 4, v%d", TMP + 4, vL); V("v_lshl_add_u32 v%d, v%d, 2, v%d", vGS, TMP + 4, vGS)
if LOC:
    lin(st0, [(14 * 1024, sC6), (1024, sRB)], O_S6); V("v_add_u32 v%d, s%d, v%d", vP6, st0, vPUB); base(sB5, sWS, None, O_S6L - O_S6)
    V("v_add_u32 v%d, %d, v%d", vF2, SLF2, vTR2)
else:
    V("v_lshrrev_b32 v%d, 5, v%d", vP6, vL); V("v_mul_u32_u24 v%d, %d, v%d", vP6, 28 * 1024, vP6); lin(st0, [(56 * 1024, sC6), (1024, sRB)], O_S6); V("v_add3_u32 v%d, v%d, v%d, s%d", vP6, vP6, vPUB, st0)
    V("v_add_u32 v%d, %d, v%d", vF2, SLF2, vTR5)
gv = [gl(GV + 8 * k + 4 * h, (vG8, vG8b)[h], (sB2, sB3)[k]) for k in range(2) for h in range(NH)]
gvr = [r for k in range(2) for h in range(NH) for r in R(GV + 8 * k + 4 * h)]
gu = [gl(GD + 4 * h, (vG8, vG8b)[h], sB) for h in range(NH)] + [gl(GL, vGS, sB4)]
g5 = gu if vt else gv + gu
def f2frags(): trreads(WA, 256, 8, [(vF2, 0)]) if LOC else trreads(WA, 512, 4, [(vF2, 0), (vF2, 256)])
if vt:
    landed(1, max(EB["f2"] - P["gv"], EB["f2p"]))
    emit(gv); gfinish(gv, gvr, cnt=0x1000000); swapred([GV + 8 * k + 4 * h for k in range(2) for h in range(NH)])
    stamp(13)
if P["h5"]:
    either(1, EB["f2"], 2, f2frags); stamp(10); emit(g5); maybe(1, EB["f2"], f2frags)
else:
    landed(1, max(EB["f2"] - P["g5"], EB["f2p"])); stamp(10); emit(g5); landed(1, EB["f2"]); f2frags()
gfinish(g5, R(GD, 4 * NH) + ([] if vt else gvr), [GL + 1, GL + 3], cnt=0x10000)
stamp(11)
US = [GD + 4 * h for h in range(NH)] if vt else []
V("v_permlane32_swap_b32 v%d, v%d", GL, GL + 2)
for d in US: V("v_permlane32_swap_b32 v%d, v%d", d, d + 2); V("v_permlane32_swap_b32 v%d, v%d", d + 1, d + 3)
V("v_add_f32 v%d, v%d, v%d", GL, GL, GL + 2)
for d in US: V("v_add_f32 v%d, v%d, v%d", d, d, d + 2); V("v_add_f32 v%d, v%d, v%d", d + 1, d + 1, d + 3)
dpp("v_add_f32", GL, GL, GL, "row_ror:8")
V("v_mov_b32 v%d, v%d", GL + 1, GL)
for d in US: V("v_permlane16_swap_b32 v%d, v%d", d, d + 1); V("v_add_f32 v%d, v%d, v%d", d, d, d + 1)
V("v_permlane16_swap_b32 v%d, v%d", GL, GL + 1); V("v_add_f32 v%d, v%d, v%d", GL, GL, GL + 1)
V("v_mov_b32 v%d, v%d", GL + 2, GL)
for d in US: dpp("v_add_f32", d, d, d, "row_ror:8")
V("v_permlane32_swap_b32 v%d, v%d", GL, GL + 2)
lnstats(GL, GL + 2)
ne = 1 if vt else 4
for h in range(NH):
    for e in range(ne): V("v_fma_f32 v%d, -v%d, v%d, v%d", GD + 4 * h + e, GL, GV + 4 * h + e, GD + 4 * h + e)
for h in range(NH):
    for e in range(ne): V("v_fma_f32 v%d, v%d, v%d, v%d", GD + 4 * h + e, GD + 4 * h + e, GL + 2, GV + 8 + 4 * h + e)
if not vt: swapred([GD + 4 * h for h in range(NH)])
for h in range(NH): V("v_max_f32 v%d, 0, v%d", GD + 4 * h, GD + 4 * h)
V("v_cvt_pk_bf16_f32 v%d, v%d, v%d", GD, GD, GD + 4 * (NH - 1))
V("ds_write_b16 v%d, v%d offset:%d", vWV, GD, A_Z)
if LOC: V("ds_write_b16_d16_hi v%d, v%d offset:%d", vWV, GD, A_Z + 256)
hbarf(P["h5"], f2frags, afrags(vAF, A_Z, 8 if LOC else 4))
if LOC:
    for s in range(8):
        a("s_waitcnt lgkmcnt(%d)" % (7 - s)); mfma(ACC, vA + 4 * s, WA + 4 * s, s == 0)
    tag([ACC])
    a("s_mov_b32 exec_hi, 0")
    V("global_store_dword v%d, v%d, s[%d:%d]", vP6, ACC, sB5, sB5 + 1)
    V("global_store_dword v%d, v%d, s[%d:%d] sc1", vP6, ACC, sWS, sWS + 1)
    a("s_mov_b64 exec, -1")
else:
    for s in range(4):
        a("s_waitcnt lgkmcnt(%d)" % (3 - s))
        for h in range(2): mfma(ACC + 4 * h, vA + 4 * s, WA + 8 * s + 4 * h, s == 0)
    V("v_cndmask_b32 v%d, v%d, v%d, s[%d:%d]", GD, ACC, ACC + 4, sHI, sHI + 1); tag([GD])
    V("global_store_dword v%d, v%d, s[%d:%d] sc1", vP6, GD, sWS, sWS + 1)
stamp(12)
a.label("L_fin")
if STAMPS:
    for i in range(4): a("s_sleep 127")
    a("s_waitcnt lgkmcnt(0)")
    V("v_mov_b32 v%d, 0", TMP); a("s_mov_b64 exec, 1")
    for i in range(NST):
        V("v_mov_b32 v%d, s%d", TMP + 2, sSTMP + 2 * i); V("v_mov_b32 v%d, s%d", TMP + 3, sSTMP + 2 * i + 1)
        V("global_store_dwordx2 v%d, v[%d:%d], s[%d:%d] offset:%d", TMP, TMP + 2, TMP + 3, sSTB, sSTB + 1, i * 8)
a.label("L_end")
a("s_endpgm")
main = a.l; a.l = []
vS5, vS2, vO, vCN, vLA, vFA, vGK, vZERO, vL8, vFD = 16, 17, 18, 19, 20, 21, 22, 23, 24, 32
if P["prio"]: a("s_setprio 2")
V("v_lshrrev_b32 v%d, 5, v%d", TMP, vL); V("s_lshl_b32 s%d, s%d, 2", st0, sLD); V("v_lshl_add_u32 v%d, v%d, 1, s%d", TMP + 1, TMP, st0); V("v_xor_b32 v%d, v%d, v%d", vS5, vC, TMP + 1); V("v_lshlrev_b32 v%d, 4, v%d", vS5, vS5)
V("v_add_u32 v%d, s%d, v%d", vLA, st0, vZ)
V("v_and_b32 v%d, 1, v%d", TMP + 8, vG)
V("v_mul_u32_u24 v%d, 12288, v%d", vO, TMP); V("v_lshl_add_u32 v%d, v%d, 11, v%d", vO, TMP + 8, vO); V("v_add_u32 v%d, v%d, v%d", vO, vO, vS5)
V("v_lshl_add_u32 v%d, v%d, 8, v%d", vS5, TMP + 8, vS5)
V("s_and_b32 s%d, s%d, 1", st0, sLD); V("s_lshl_b32 s%d, s%d, 3", st0, st0); V("v_lshl_add_u32 v%d, v%d, 1, s%d", TMP + 1, vG, st0); V("v_xor_b32 v%d, v%d, v%d", vS2, vC, TMP + 1); V("v_lshlrev_b32 v%d, 4, v%d", vS2, vS2)
lin(st2, [(32 * 12288, sy), (2 * 12288, sLD), (256, sx)])
V("s_lshl_b32 s%d, s%d, 10", sJ, sLD)
a("s_waitcnt lgkmcnt(0)")
class Ld:
    def __init__(self, grp, issued=0):
        self.grp = grp; self.ops = ["p"] * issued; self.done = 0; self.pub = 0; self.low = 0; self.wl = 9; self.bar_at = None; self.w = None; self.np = 0
    def clone(self):
        c = copy.copy(self); c.ops = list(self.ops); return c
    @property
    def iss(self): return sum(1 for o in self.ops if o == "p")
    @property
    def known(self): return sum(1 for o in self.ops[:self.done] if o == "p")
    def waitp(self, npieces):
        c = 0; idx = 0
        while c < npieces:
            if self.ops[idx] == "p": c += 1
            idx += 1
        if idx > self.done:
            a("s_waitcnt vmcnt(%d)" % (len(self.ops) - idx)); old = self.done; self.done = idx
            return [o for o in self.ops[old:idx] if o != "p"]
        return []
    def after(self, polls):
        if [x for x in THR[self.grp] if self.pub < x <= self.known]:
            self.pub = self.known
            V("v_mov_b32 v%d, %d", vCN, self.known); V("ds_write_b32 v%d, v%d offset:%d", vLA, vCN, F_LAND)
        if polls:
            l = a.lab("Pc")
            V("v_cmp_ne_u32 vcc, v%d, v%d", polls[-1], vTW); a("s_cbranch_vccnz %s" % l)
            V("ds_write_b32 v%d, v%d offset:%d", vLA, vGK, F_GO)
            a.label(l)
    def poll(self):
        r = vFD + self.np % 8; self.np += 1
        V("global_load_dword v%d, v%d, s[%d:%d] sc1", r, vFA, sB3, sB3 + 1); self.ops.append(r)
    def arm(self, k, nper, start):
        V("v_and_b32 v%d, %d, v%d", vFA, nper - 1, vG if nper <= 4 else vL8); V("s_mul_i32 s%d, s%d, %d", st0, sLD, nper); V("v_add_lshl_u32 v%d, v%d, s%d, 7", vFA, vFA, st0)
        V("v_mov_b32 v%d, %d", vGK, k)
        self.w = start
    def item(self, n, slot, step, W0=9, i0=0, last=True):
        for i in range(i0, n):
            W = W0
            if self.low > 0: W = min(W0, self.wl); self.low -= 1
            if self.bar_at is not None and (self.iss >= self.bar_at[0] or self.iss - self.known >= W): self.bars()
            V("s_add_u32 m0, s%d, %d", sJ, slot + i * 4096)
            polls = self.waitp(self.iss - (W - 1)) if self.iss - self.known >= W else []
            V("global_load_lds_dwordx4 v%d, s[%d:%d]%s", vO, sB, sB + 1, NT); self.ops.append("p")
            if self.w is not None and self.iss >= self.w and (self.iss - self.w) % P["pk"] == 0: self.poll()
            if i != n - 1 or not last: V("s_add_u32 s%d, s%d, %d", sB, sB, step); V("s_addc_u32 s%d, s%d, 0", sB + 1, sB + 1)
            self.after(polls)
    def bars(self):
        f = self.bar_at[1]; self.bar_at = None; f()
    def drain(self):
        if self.bar_at is not None: self.bars()
        ts = set(x for x in THR[self.grp] if self.known < x <= self.iss) | {self.iss}
        if self.w is not None: ts |= set(range(self.known + 1, self.iss + 1, P["pk"]))
        for t in sorted(ts):
            polls = self.waitp(t)
            if self.w is not None: self.poll()
            self.after(polls)
        if self.w is not None:
            l, ok = a.lab("Wa"), a.lab("Wo")
            pend = [o for o in self.ops[self.done:]]
            for i, r in enumerate(pend):
                a("s_waitcnt vmcnt(%d)" % (len(pend) - 1 - i)); V("v_cmp_ne_u32 vcc, v%d, v%d", r, vTW); a("s_cbranch_vccz %s" % ok)
            a.label(l)
            if P["wsleep"]: a("s_sleep %d" % P["wsleep"])
            V("global_load_dword v%d, v%d, s[%d:%d] sc1", vFD, vFA, sB3, sB3 + 1)
            a("s_waitcnt vmcnt(0)"); V("v_cmp_ne_u32 vcc, v%d, v%d", vFD, vTW); a("s_cbranch_vccz %s" % ok)
            V("s_sub_u32 s%d, s%d, 1", sTO, sTO); a("s_cbranch_scc0 %s" % l)
            V("s_mov_b32 s%d, 0", sTO)
            a.label(ok)
            V("ds_write_b32 v%d, v%d offset:%d", vLA, vGK, F_GO)
            a("s_waitcnt vmcnt(0)")
            self.done = len(self.ops); self.w = None
def sendflag(sb):
    l = a.lab("Sf"); V("s_cmp_lg_u32 s%d, 1", sLD); a("s_cbranch_scc1 %s" % l)
    a("s_mov_b64 exec, 1"); V("global_store_dword v%d, v%d, s[%d:%d] sc1", vZERO, vTW, sb, sb + 1); a("s_mov_b64 exec, -1")
    a.label(l)
def ltag():
    a("s_waitcnt lgkmcnt(0)")
    V("s_add_u32 s%d, s%d, 0x9e5", sT, sEP); V("s_and_b32 s%d, s%d, 0x%x", sT, sT, TAGM); V("s_mul_i32 s%d, s%d, 0x00100101", sTW, sT); V("s_xor_b32 s%d, s%d, 0x5a5a0000", sTW, sTW)
    V("v_mov_b32 v%d, s%d", vTW, sTW); V("v_mov_b32 v%d, 0", vZERO); V("v_lshrrev_b32 v%d, 3, v%d", vL8, vL)
def bar0(): a("s_barrier"); stamp(9)
base(sB, sWM, st2)
stamp(8)
Ld(0).item(4, SLA, 8 * 12288)
V("s_load_dword s%d, s[%d:%d], 0", sEP, sWS, sWS + 1)
V("s_and_b32 s%d, s%d, 15", sz, sy)
if STAMPS: wsb(sSTB, [(NST * 8 * 12, 2), (NST * 8, sLD)], 128 << 20)
def off5(stride): V("v_mul_u32_u24 v%d, %d, v%d", vO, stride, TMP); V("v_add_u32 v%d, v%d, v%d", vO, vO, vS5)
def off2(stride): V("v_mul_u32_u24 v%d, %d, v%d", vO, stride, vG); V("v_add_u32 v%d, v%d, v%d", vO, vO, vS2)
def mitem(L, slot, W,):
    mtile(L.grp); off2(12288); lin(st0, [(128 * 12288, sMRB), (4 * 12288, sLD), (2048, sMOD), (256, sMCB)], 4096); base(sB, sWM, st0)
    L.item(NMB if L.grp else 8, slot, 16 * 12288, W)
a("s_cmp_ge_u32 s2, 128"); a("s_cbranch_scc1 L_ldB")
L = Ld(0, 4); L.bar_at = (P["pre"], bar0)
if P["ma"]: mitem(L, SLM_A, P["w1"])
V("s_lshl_b32 s%d, s%d, 2", st0, sLD); V("v_add_u32 v%d, s%d, v%d", TMP + 1, st0, vG); V("v_xor_b32 v%d, v%d, v%d", vO, vC, TMP + 1); V("v_lshlrev_b32 v%d, 4, v%d", vO, vO); V("v_lshl_add_u32 v%d, v%d, 8, v%d", vO, vG, vO)
lin(st0, [(1 << 23, sx), (1 << 16, sz), (1024, sLD)], 28672 * 256); base(sB, sK, st0); base(sB2, sV, st0)
L.item(16, SL0, 4096, P["wk"]); stamp(1)
off2(256); V("s_mov_b64 s[%d:%d], s[%d:%d]", sB, sB + 1, sB2, sB2 + 1)
if P["ma"]: spin(B_MF, sleep=1)
L.item(16, SL1, 4096, P["wv"]); stamp(2)
ltag()
V("s_and_b32 s%d, s%d, 3", st1, sx); V("s_lshr_b32 s%d, s%d, 2", st2, sx); wsb(sB4, [(4096, st1), (2048, st2), (128, sz)], O_F3)
L.drain(); stamp(3)
a("s_barrier")
if P["h3"] and P["f3at"] == 1: sendflag(sB4)
def abars():
    for i in (2, 3, 4):
        a("s_barrier")
        if P["h3"] and P["f3at"] == i: sendflag(sB4)
    if P["adel"]: a("s_sleep %d" % P["adel"])
    stamp(4)
L.bar_at = (L.iss + P["f1pre"], abars); L.low = P["ka"]; L.wl = P["wal"]
if not P["ma"] and not MALL: mitem(L, SLM_A, P["wf"])
V("s_cmp_ge_u32 s%d, 14", sz); a("s_cbranch_scc0 L_f1")
L2 = L.clone(); L2.drain(); a("s_branch L_fin")
a.label("L_f1")
off5(7168); lin(st0, [(128 * 7168, sx), (2 * 7168, sLD), (512, sz)]); base(sB, sW1, st0)
wsb(sB3, [(2048, sx)], O_F4); wsb(sB5, [(1024, sz), (128, sx)], O_F5)
if P["h4"]: L.arm(1, 4, max(EA["f1"] - P["p4"], L.bar_at[0] + 1 if L.bar_at else 0))
L.item(16, SLF1, 8 * 7168, P["wf"])
L.drain()
stamp(5)
V("s_cmp_lg_u32 s%d, 0", sLD); a("s_cbranch_scc0 L_st")
a("s_barrier")
if P["h5"]: sendflag(sB5)
a("s_branch L_fin")
a.label("L_st")
wsb(sB, [(1024, sz), (128, sx)], O_S5S)
V("v_lshl_add_u32 v%d, v%d, 3, v%d", vO, vL, vZ); V("v_lshlrev_b32 v%d, 4, v%d", vCN, TMP)
V("v_mov_b32 v%d, s%d", GD + 5, sTW); V("v_mov_b32 v%d, s%d", GD + 7, sTW)
hbar(["ds_read_b64 v[%d:%d], v%d offset:%d" % (GD, GD + 1, vO, A_ST2)])
a("s_waitcnt lgkmcnt(0)")
allred([GD, GD + 1], 4)
V("v_mov_b32 v%d, v%d", GD + 2, GD); V("v_mov_b32 v%d, v%d", GD + 3, GD + 1)
V("v_permlane16_swap_b32 v%d, v%d", GD, GD + 2); V("v_permlane16_swap_b32 v%d, v%d", GD + 1, GD + 3)
V("v_add_f32 v%d, v%d, v%d", GD + 4, GD, GD + 2); V("v_add_f32 v%d, v%d, v%d", GD + 6, GD + 1, GD + 3)
a("s_mov_b32 exec_lo, 1"); a("s_mov_b32 exec_hi, 1")
V("global_store_dwordx4 v%d, v[%d:%d], s[%d:%d] sc1", vCN, GD + 4, GD + 7, sB, sB + 1)
a("s_mov_b64 exec, -1")
stamp(6)
a("s_branch L_fin")
a.label("L_ldB")
L = Ld(1, 4); L.bar_at = (P["pre"], bar0)
if P["mb"]: mitem(L, SLM_B, P["w1"])
off5(8192); lin(st0, [(128 * 8192, sx), (2 * 8192, sLD), (512, sz)]); base(sB, sWQ, st0)
L.item(16, SL0, 8 * 8192, P["wq"]); stamp(1)
ltag()
L.drain(); stamp(7); a("s_barrier"); a("s_barrier")
L.low = P["kb"]; L.wl = P["wbl"]
if not P["mb"]: mitem(L, SLM_B, P["wo"])
stamp(2)
off2(2048); V("s_and_b32 s%d, s%d, 1", st1, sz); V("s_lshr_b32 s%d, s%d, 1", st2, sz)
lin(st0, [(512 * 2048, sx), (256 * 2048, st1), (4 * 2048, sLD), (256, st2)]); base(sB, sWO, st0)
wsb(sB4, [(2048, st2), (256, sx), (128, st1)], O_F4)
V("s_lshr_b32 s%d, s%d, 1", st1, sx); wsb(sB3, [(4096, st1)], O_F3)
if P["h3"]: L.arm(1, 8, EB["f2p"] - P["p3"])
L.item(16, SL0, 16 * 2048, P["wo"]); stamp(3)
def p4bars():
    a("s_barrier")
    if P["h4"]: sendflag(sB4)
    a("s_barrier"); stamp(5)
V("s_cmp_ge_u32 s%d, 14", sz); a("s_cbranch_scc0 L_f2")
L2 = L.clone(); L2.drain(); stamp(4)
V("v_mov_b32 v%d, 99", vCN); V("ds_write_b32 v%d, v%d offset:%d", vLA, vCN, F_LAND)
p4bars(); a("s_branch L_fin")
a.label("L_f2")
p6map()
if LOC: lin(st0, [(256 * 2048, sRB), (4 * 2048, sLD), (256, sC6)]); F2S = 16 * 2048
else: off5(2048); lin(st0, [(128 * 2048, sRB), (2 * 2048, sLD), (512, sC6)]); F2S = 8 * 2048
base(sB, sW2, st0)
if P["f2pre"]:
    spin(B_MF, sleep=1); L.item(P["f2pre"], SLF2, F2S, P["wo"], last=False)
L.drain(); stamp(4)
nm = min(P["f2mid"], 16 - P["f2pre"])
if nm: spin(B_G3, 1); L.item(P["f2pre"] + nm, SLF2, F2S, 9, i0=P["f2pre"], last=False)
p4bars()
V("s_lshr_b32 s%d, s%d, %d", st1, sRB, 0 if LOC else 1); wsb(sB3, [(1024, st1)], O_F5); wsb(sB4, [(4096, sC6), (128, sRB)], O_F6)
if P["h5"]: L.arm(2, 2, EB["f2"] - P["p5"])
L.item(16, SLF2, F2S, P["wf2"], i0=P["f2pre"] + nm)
L.drain(); stamp(6)
a("s_barrier")
if P["h6"] and not LOC: sendflag(sB4)
a("s_branch L_fin")
a.l = main[:LOADER_POS] + a.l + main[LOADER_POS:] + cold + ["L_codeend:"]
a.l = hazard.fix(a.l)
open(OUT, "w").write(wrap(a.text(), 256, 768, LDS, NV))
print(OUT, "LDS", LDS, "lines", len(a.l))
```

```python
import re
TRANS = ("v_exp_f32", "v_log_f32", "v_rcp_f32", "v_rsq_f32", "v_sqrt_f32", "v_sin_f32", "v_cos_f32")
def regs(op):
    op = op.strip()
    op = op.replace("-", "").replace("abs(", "").replace("|", "").replace(")", "")
    m = re.fullmatch(r"([vsa])\[(\d+):(\d+)\]", op)
    if m: return {(m.group(1), i) for i in range(int(m.group(2)), int(m.group(3)) + 1)}
    m = re.fullmatch(r"([vsa])(\d+)", op)
    if m: return {(m.group(1), int(m.group(2)))}
    if op == "vcc": return {("s", 106), ("s", 107)}
    if op == "vcc_lo": return {("s", 106)}
    if op == "vcc_hi": return {("s", 107)}
    if op == "exec": return {("s", 126), ("s", 127)}
    if op == "exec_lo": return {("s", 126)}
    if op == "exec_hi": return {("s", 127)}
    if op == "m0": return {("s", 124)}
    return set()
class I: pass
def parse(line):
    s = line.split(";")[0].strip()
    if not s or s.endswith(":") or s.startswith("."): return None
    p = s.split(None, 1)
    i = I(); i.op = p[0]; i.text = s
    rest = p[1] if len(p) > 1 else ""
    ops = [x.strip() for x in rest.split(",")]
    clean = []
    depth_ops = re.findall(r"(?:[^,\[]|\[[^\]]*\])+", rest)
    for x in depth_ops:
        x = x.strip()
        clean.append(x.split()[0] if x else x)
    i.ops = clean
    op = i.op
    i.mfma = op.startswith(("v_mfma", "v_smfmac"))
    i.valu = op.startswith("v_") and not i.mfma
    i.vmem = op.startswith(("global_", "buffer_", "flat_"))
    i.ds = op.startswith("ds_")
    i.salu = op.startswith("s_")
    i.dpp = "_dpp" in op or "quad_perm" in s or "row_" in s
    i.trans = op.replace("_e32", "").replace("_e64", "") in TRANS
    i.dot = op.startswith("v_dot")
    i.perml = op.startswith("v_permlane")
    i.w = set(); i.r = set()
    if i.valu or i.mfma:
        if op.startswith("v_cmp"):
            i.w = regs(clean[0]);
            for x in clean[1:]: i.r |= regs(x)
            if op.startswith("v_cmpx"): i.w |= regs("exec")
        elif i.perml:
            i.w = regs(clean[0]) | regs(clean[1]); i.r = set(i.w)
        else:
            i.w = regs(clean[0])
            k = 1
            if re.match(r"v_(add|sub|subrev|addc|subb)_co_", op) or op.startswith("v_div_scale"):
                i.w |= regs(clean[1]); k = 2
            for x in clean[k:]: i.r |= regs(x)
            if op.startswith(("v_fmac", "v_dot2c", "v_writelane")) or i.dpp: i.r |= regs(clean[0])
            if op.startswith("v_cndmask") and len(clean) == 3: i.r |= regs("vcc")
        if i.mfma:
            i.srcc = regs(clean[3]); i.srcab = regs(clean[1]) | regs(clean[2])
            if op.startswith("v_smfmac"):
                i.srcab |= i.srcc; i.srcc = regs(clean[0]); i.r |= i.srcc
            i.passes = 8 if "32x32" in op else (2 if "4x4x4" in op else 4)
    elif i.vmem:
        st = "store" in op or ("atomic" in op)
        lds = "_lds_" in op or " lds" in s
        if st or lds:
            for x in clean: i.r |= regs(x)
            if lds: i.r |= regs("m0")
            i.wide_store = st and ("x3" in op or "x4" in op)
            if i.wide_store:
                i.sdata = regs(clean[1]) if op.startswith("global_") else regs(clean[0])
        else:
            i.w = regs(clean[0])
            for x in clean[1:]: i.r |= regs(x)
    elif i.ds:
        if op.startswith(("ds_read", "ds_bpermute", "ds_permute", "ds_swizzle")) or "_rtn" in op:
            i.w = regs(clean[0])
            for x in clean[1:]: i.r |= regs(x)
        else:
            for x in clean: i.r |= regs(x)
    elif i.salu:
        if op.startswith(("s_cmp", "s_cbranch", "s_branch", "s_waitcnt", "s_nop", "s_barrier", "s_sleep", "s_endpgm", "s_setprio", "s_bitcmp")):
            for x in clean: i.r |= regs(x)
        else:
            i.w = regs(clean[0])
            for x in clean[1:]: i.r |= regs(x)
            if "saveexec" in op: i.w |= regs("exec")
    return i
def need(p, c):
    n = 0
    vw = {r for r in p.w if r[0] in "va"}; sw = {r for r in p.w if r[0] == "s"}
    if p.valu:
        if c.valu and c.dpp and (vw & c.r): n = max(n, 2)
        if c.perml and (vw & c.r): n = max(n, 2)
        if c.mfma and (vw & c.r): n = max(n, 2)
        if p.trans and (c.valu or c.mfma) and (vw & c.r): n = max(n, 1)
        if c.op.startswith(("v_readfirstlane", "v_readlane")) and (vw & c.r): n = max(n, 1)
        if sw:
            if c.vmem and (sw & c.r): n = max(n, 5)
            if c.valu and (sw & c.r): n = max(n, 4 if c.op.startswith(("v_readlane", "v_writelane")) else 2)
            if c.salu and (sw & c.r): n = max(n, 1)
            if (sw & regs("exec")):
                if c.valu and c.dpp: n = max(n, 5)
                if c.mfma or c.perml or c.op.startswith(("v_readlane", "v_readfirstlane", "v_writelane")): n = max(n, 4)
        if p.dot and (vw & (c.r | c.w)):
            if not (c.op == p.op and c.dot and not (vw & (regs(c.ops[1]) | regs(c.ops[2])))): n = max(n, 3)
    if p.mfma:
        t = {2: 0, 4: 1, 8: 2}[p.passes]
        if c.mfma:
            if vw & c.srcab: n = max(n, (5, 8, 12)[t])
            if vw & c.srcc:
                if vw == c.srcc and c.passes == p.passes: n = max(n, (2, 0, 0)[t])
                else: n = max(n, (4, 6, 10)[t])
            elif vw & c.w: n = max(n, (5, 8, 12)[t])
        elif (c.valu or c.vmem or c.ds) and (vw & (c.r | c.w)): n = max(n, (5, 8, 12)[t])
        if c.valu and (p.srcc & c.w): n = max(n, (1, 3, 7)[t])
    if p.salu and (sw & regs("m0")) and c.vmem and (regs("m0") & c.r): n = max(n, 1)
    if p.vmem and getattr(p, "wide_store", False) and (p.sdata & c.w): n = max(n, 2)
    return n
def fix(lines):
    out = []; hist = []
    for line in lines:
        c = parse(line)
        if c is None:
            out.append(line); continue
        req = 0; dist = 0
        for p, st in reversed(hist):
            k = need(p, c) - dist
            if k > req: req = k
            dist += st
            if dist > 20: break
        if req > 0:
            nop = "s_nop %d" % (req - 1)
            out.append(nop); hist.append((parse(nop), req))
        out.append(line)
        st = 1
        if c.op == "s_nop": st = int(c.ops[0]) + 1
        hist.append((c, st))
        hist = hist[-24:]
    return out
```

```python
import sys, math, struct, copy
from asmlib import *
import hazard
args = sys.argv[1:]
OUT = [x for x in args if x.endswith(".s")][0]
P = dict(stamps=0, light=0, amp=-1, nt=1, pf=1, prio=2, cprio=3, lsleep=1, rsleep=0,
         ma=0, rb=128, g1=3, g2=2, g3=0, g4=3, g5=0,
         wm=5, wk=6, wv=8, wq=6, wo=6, wf=6, wf2=7, f1pre=6, f2pre=0, kb=0, wbl=3,
         loc6=1, rot=1, rmul=3, rmx=1, vpos=2, vt=0, lh5=0, m5=0)
for x in args:
    if "=" in x:
        k, v = x.split("="); assert k in P, k; P[k] = int(v)
STAMPS = P["stamps"]; NT = " nt" if P["nt"] else ""; AMP = P["amp"]; LOC = P["loc6"]; MA = P["ma"]; VT = P["vt"]; LH5 = P["lh5"]
NST = 16; TAGM = 0xfff
O_S1 = 0x1000; O_S2 = O_S1 + 0x40000; O_S3 = O_S2 + 0x40000; O_S4 = O_S3 + 0x80000; O_SM = O_S4 + 0x20000
O_S5U = O_SM + 0x40000; O_S5V = O_S5U + 0x38000; O_S5T = O_S5V + 0x38000; O_S6 = O_S5T + 0x38000; O_S6L = O_S6 + 0x38000; O_S5S = O_S6L + 0x38000; O_H5 = O_S5S + 0x4000
SL0, SL1, SLA = 0, 65536, 131072
LS = 147456
F_LAND = 0; F_BAR = 16
B_P1A, B_C2, B_MF = range(3)
A_ST1 = 128; A_ST2 = A_ST1 + 256; A_MX = A_ST2 + 512; A_LS = A_MX + 256
ASTR = 640
A_C1 = A_LS + 8 * 272; A_C2 = A_C1 + 2 * ASTR; A_X = A_C2 + 2 * ASTR; A_Y = A_X + 2 * ASTR; A_Z = A_C2
A_Q = A_X + 6 * ASTR; PSTR = 544; A_P = A_C1
A_P = A_Q + 8 * 288
LDS = LS + A_P + 8 * PSTR
if LDS > 163840:
    ASTR = 576
    A_C1 = A_LS + 8 * 272; A_C2 = A_C1 + 2 * ASTR; A_X = A_C2 + 2 * ASTR; A_Y = A_X + 2 * ASTR; A_Z = A_C2
    A_Q = A_X + 6 * ASTR; A_P = A_Q + 8 * 288; LDS = LS + A_P + 8 * PSTR
assert LDS <= 163840, LDS
RB = P["rb"]; assert RB % 64 == 0 and 0 < RB < 256
NM = (16 - RB // 16, RB // 16); NP6 = 14 if LOC else 28
EA_M = 4 + NM[0] if MA else 36 + NM[0]; EA_K = 20 + (NM[0] if MA else 0); EB_M = 20 + NM[1]
SLM_A = SL1 if MA else SL0
sJ = 3
sX, sK, sV, sWQ, sWO, sW1, sW2, sC, sWM, sOUT, sDBG, sWS = 4, 6, 8, 10, 12, 16, 18, 20, 22, 24, 26, 28
sx, sy, sz, sT, sTM, sTO, sTW = 30, 31, 14, 32, 33, 34, 35
sONES = 36; sHI = 54
sB, sB2, sB3, sB4, sB5, sB6 = 38, 40, 56, 58, 98, 100
st0, st1, st2, st3 = 42, 43, 44, 45
sHP, sCB, sRB, sC6 = 46, 47, 51, 15
sMOD, sMCB, sMRB, sMR0 = 94, 95, 96, 97
sSTB = 48; sEP = 50; sMSK = 52; sSTMP = 60; sLD = 93; sALT = 92
vL, vG, vC, vT, vTW, vJQ, vPUB, vZ, vIX, vFL, vTR5, vTR2, vAF, vX, vXD = range(1, 16)
vWV = 0
vA = 16; WA = 48; WB = 80; GD = 112; GL = 128; ACC = 136; TMP = 144
vGA, vCB, vXS = 164, 165, 166
NV = 168
a = Asm(); cold = []
class Cold:
    def __enter__(self): self.sv = a.l; a.l = []
    def __exit__(self, *x): cold.extend(a.l); a.l = self.sv
def V(fmt, *x): a(fmt % x)
def stamp(i):
    if STAMPS or (AMP >= 0 and i in (0, AMP)) or (P["light"] and i == 0): V("s_memrealtime s[%d:%d]", sSTMP + 2 * i, sSTMP + 2 * i + 1)
def base(dst, src, off=None, imm=0):
    if off is not None: V("s_add_u32 s%d, s%d, s%d", dst, src, off)
    else: V("s_add_u32 s%d, s%d, %d", dst, src, imm)
    V("s_addc_u32 s%d, s%d, 0", dst + 1, src + 1)
def lin(dst, terms, imm=0):
    first = True
    for coef, r in terms:
        t = dst if first else st3
        if coef & (coef - 1) == 0: V("s_lshl_b32 s%d, s%d, %d", t, r, coef.bit_length() - 1)
        else: V("s_mul_i32 s%d, s%d, %d", t, r, coef)
        if not first: V("s_add_u32 s%d, s%d, s%d", dst, dst, t)
        first = False
    if imm: V("s_add_u32 s%d, s%d, %d", dst, dst, imm)
def wsb(dst, terms, off): lin(st0, terms, off); base(dst, sWS, st0)
def R(r, n=4): return list(range(r, r + n))
def dpp(op, d, s0, s1, ctl, extra="row_mask:0xf bank_mask:0xf"): a("%s_dpp v%d, v%d, v%d %s %s" % (op, d, s0, s1, ctl, extra))
def allred(rs, steps, op="v_add_f32"):
    for ctl in ("quad_perm:[1,0,3,2]", "quad_perm:[2,3,0,1]", "row_half_mirror", "row_mirror")[:steps]:
        for r in rs: dpp(op, r, r, r, ctl)
def swapred(ds, ror=True):
    for d in ds: V("v_permlane32_swap_b32 v%d, v%d", d, d + 2); V("v_permlane32_swap_b32 v%d, v%d", d + 1, d + 3)
    for d in ds: V("v_add_f32 v%d, v%d, v%d", d, d, d + 2); V("v_add_f32 v%d, v%d, v%d", d + 1, d + 1, d + 3)
    for d in ds: V("v_permlane16_swap_b32 v%d, v%d", d, d + 1)
    for d in ds: V("v_add_f32 v%d, v%d, v%d", d, d, d + 1)
    if ror:
        for d in ds: dpp("v_add_f32", d, d, d, "row_ror:8")
def rowred(r, t, op):
    V("v_mov_b32 v%d, v%d", t, r); V("v_permlane16_swap_b32 v%d, v%d", r, t); V("%s v%d, v%d, v%d", op, r, r, t)
    V("v_mov_b32 v%d, v%d", t, r); V("v_permlane32_swap_b32 v%d, v%d", r, t); V("%s v%d, v%d, v%d", op, r, r, t)
def add4(d, s):
    for h in (0, 2): V("v_pk_add_f32 v[%d:%d], v[%d:%d], v[%d:%d]", d + h, d + h + 1, d + h, d + h + 1, s + h, s + h + 1)
def check(tag_regs, word_regs=(), grp=False):
    V("v_xor_b32 v%d, v%d, v%d", TMP, tag_regs[0], vT)
    for r in tag_regs[1:]: V("v_bitop3_b32 v%d, v%d, v%d, v%d bitop3:0xbe", TMP, r, vT, TMP)
    V("v_and_b32 v%d, s%d, v%d", TMP, sTM, TMP)
    for r in word_regs: V("v_bitop3_b32 v%d, v%d, v%d, v%d bitop3:0xbe", TMP, r, vTW, TMP)
    if grp: allred([TMP], 3, "v_or_b32")
    V("v_cmp_ne_u32 vcc, 0, v%d", TMP)
def gl(d, va, sb, off=0): return "global_load_dwordx4 v[%d:%d], v%d, s[%d:%d] offset:%d sc1" % (d, d + 3, va, sb, sb + 1, off)
def emit(xs):
    for x in xs: a(x)
def gfinish(loads, tag_regs, word_regs=(), cnt=None, grp=False, nyoung=0, alt=None):
    ok, lp = a.lab("Ok"), a.lab("Rp")
    a("s_waitcnt vmcnt(%d)" % nyoung)
    check(tag_regs, word_regs)
    a("s_cbranch_vccnz %s_e" % lp)
    a.label(ok)
    with Cold():
        a.label(lp + "_e")
        if grp: a("s_nop 1"); allred([TMP], 3, "v_or_b32"); V("v_cmp_ne_u32 vcc, 0, v%d", TMP)
        a.label(lp)
        a("s_mov_b64 exec, vcc")
        if P["rsleep"]: a("s_sleep %d" % P["rsleep"])
        if STAMPS and cnt is not None: V("s_add_u32 s%d, s%d, %d", sSTMP + 30, sSTMP + 30, cnt)
        if alt is not None:
            sb, delta = alt
            V("s_sub_u32 s%d, s%d, 1", sALT, sALT); V("s_cmp_eq_u32 s%d, 0", sALT); V("s_cselect_b32 s%d, %d, 0", st3, delta)
            V("s_sub_u32 s%d, s%d, s%d", sb, sb, st3); V("s_subb_u32 s%d, s%d, 0", sb + 1, sb + 1)
        emit(loads)
        a("s_waitcnt vmcnt(0)")
        check(tag_regs, word_regs, grp)
        a("s_cbranch_vccz %s_dn" % ok)
        V("s_sub_u32 s%d, s%d, 1", sTO, sTO); a("s_cbranch_scc0 %s" % lp)
        V("s_mov_b32 s%d, 0", sTO)
        a.label(ok + "_dn"); a("s_mov_b64 exec, -1"); a("s_branch %s" % ok)
def mfma(acc, A, B, first):
    a("v_mfma_f32_16x16x32_bf16 v[%d:%d], v[%d:%d], v[%d:%d], %s" % (acc, acc + 3, A, A + 3, B, B + 3, "0" if first else "v[%d:%d]" % (acc, acc + 3)))
def smf(acc, A, B): V("v_smfmac_f32_16x16x64_bf16 v[%d:%d], v[%d:%d], v[%d:%d], v%d", acc, acc + 3, A, A + 3, B, B + 7, vIX)
def zacc(n=8):
    for i in range(0, n, 2): V("v_mov_b64 v[%d:%d], 0", ACC + i, ACC + i + 1)
def pack(r, d=None): V("v_cvt_pk_bf16_f32 v%d, v%d, v%d", r if d is None else d, r, r)
def tag(rs):
    for r in rs: V("v_bfi_b32 v%d, s%d, v%d, v%d", r, sTM, vT, r)
def silu(r, t):
    V("v_mul_f32 v%d, 0xbfb8aa3b, v%d", t, r); V("v_exp_f32 v%d, v%d", t, t); V("v_add_f32 v%d, 1.0, v%d", t, t)
    V("v_rcp_f32 v%d, v%d", t, t); V("v_mul_f32 v%d, v%d, v%d", r, r, t)
def lnstats(s, q):
    V("v_mul_f32 v%d, 0x3a800000, v%d", s, s); V("v_mul_f32 v%d, 0x3a800000, v%d", q, q)
    V("v_fma_f32 v%d, -v%d, v%d, v%d", q, s, s, q); V("v_max_f32 v%d, 0, v%d", q, q)
    V("v_add_f32 v%d, 0x3727c5ac, v%d", q, q); V("v_rsq_f32 v%d, v%d", q, q)
def arrive(k): V("v_mov_b32 v%d, 1", TMP + 2); V("ds_write_b8 v%d, v%d offset:%d", vFL, TMP + 2, F_BAR + 8 * k)
def waitloop(body, sleep):
    l, ok = a.lab("Sp"), a.lab("So")
    a.label(l); body()
    a("s_cbranch_vccnz %s_r" % l)
    a.label(ok)
    with Cold():
        a.label(l + "_r")
        if sleep: a("s_sleep %d" % sleep)
        V("s_sub_u32 s%d, s%d, 1", sTO, sTO); a("s_cbranch_scc0 %s" % l)
        V("s_mov_b32 s%d, 0", sTO); a("s_branch %s" % ok)
def spin(k, sleep=0):
    def body():
        V("ds_read_b64 v[%d:%d], v%d offset:%d", TMP + 2, TMP + 3, vZ, F_BAR + 8 * k); a("s_waitcnt lgkmcnt(0)")
        V("v_cmp_ne_u64 vcc, s[%d:%d], v[%d:%d]", sONES, sONES + 1, TMP + 2, TMP + 3)
    waitloop(body, sleep)
def landed(thr):
    def body():
        V("ds_read_b128 v[%d:%d], v%d offset:%d", TMP + 4, TMP + 7, vZ, F_LAND); a("s_waitcnt lgkmcnt(0)")
        V("v_min_u32 v%d, v%d, v%d", TMP + 4, TMP + 4, TMP + 5); V("v_min3_u32 v%d, v%d, v%d, v%d", TMP + 4, TMP + 4, TMP + 6, TMP + 7)
        V("v_cmp_gt_u32 vcc, %d, v%d", thr, TMP + 4)
    waitloop(body, P["lsleep"])
def hbar(reads=()):
    a("s_waitcnt lgkmcnt(0)"); a("s_barrier"); emit(reads)
def trl(W, RS, steps, r, o=0):
    return ["ds_read_b64_tr_b16 v[%d:%d], v%d offset:%d" % (W + 4 * s + 2 * hh, W + 4 * s + 2 * hh + 1, r, s * 32 * RS + hh * 8 * RS + o) for s in steps for hh in range(2)]
def tr2(W, r0, o0, r1, o1):
    for d in range(2): emit(trl(W, 512, (2 * d, 2 * d + 1), r0, o0)); emit(trl(W + 16, 512, (2 * d, 2 * d + 1), r1, o1))
def afr(va, off, n, d=vA, st=128): return ["ds_read_b128 v[%d:%d], v%d offset:%d" % (d + 4 * s, d + 4 * s + 3, va, off + s * st) for s in range(n)]
def swapbits(d, s, t, lo, hi):
    V("v_lshrrev_b32 v%d, %d, v%d", t, hi - lo, s); V("v_xor_b32 v%d, v%d, v%d", t, t, s); V("v_and_b32 v%d, %d, v%d", t, 1 << lo, t)
    V("v_mul_u32_u24 v%d, %d, v%d", t, 1 + (1 << (hi - lo)), t); V("v_xor_b32 v%d, v%d, v%d", d, s, t)
def pub32(r, va, sb, fl="sc1"):
    a("s_mov_b32 exec_hi, 0"); V("global_store_dword v%d, v%d, s[%d:%d] %s", va, r, sb, sb + 1, fl); a("s_mov_b64 exec, -1")
def gemv1(W, nd, nafter=0):
    for d in range(nd):
        a("s_waitcnt lgkmcnt(%d)" % (nafter(d) if callable(nafter) else nd - 1 - d)); smf(ACC, vA + 4 * d, W + 8 * d)
    V("v_add_f32 v%d, v%d, v%d", ACC, ACC, ACC + 1); tag([ACC])
def gemv2(W):
    for d in range(2):
        a("s_waitcnt lgkmcnt(%d)" % (1 - d))
        for h in range(2): smf(ACC + 4 * h, vA + 4 * d, W + 16 * h + 8 * d)
def mtile(grp):
    V("s_and_b32 s%d, s%d, 3", sMOD, sx); V("s_lshr_b32 s%d, s%d, 2", sMRB, sx)
    if grp == 0:
        V("s_and_b32 s%d, s%d, 7", sMCB, sz); V("s_lshr_b32 s%d, s%d, 3", st0, sz)
    else:
        V("s_lshr_b32 s%d, s%d, 1", sMCB, sz); V("s_xor_b32 s%d, s%d, 1", sMCB, sMCB); V("s_and_b32 s%d, s%d, 1", st0, sz)
    V("s_lshl_b32 s%d, s%d, 1", st0, st0); V("s_add_u32 s%d, s%d, s%d", sMRB, sMRB, st0)
    V("s_lshl_b32 s%d, s%d, 8", sMR0, sMRB)
    if grp == 0: V("s_add_u32 s%d, s%d, %d", sMR0, sMR0, RB); V("s_add_u32 s%d, s%d, 4", sMRB, sMRB)
def p6map():
    V("s_min_u32 s%d, s%d, 13", sRB, sz)
    if LOC: V("s_mov_b32 s%d, s%d", sC6, sx)
    else:
        V("s_mul_i32 s%d, s%d, 14", st0, sx); V("s_add_u32 s%d, s%d, s%d", sRB, sRB, st0); V("s_and_b32 s%d, s%d, 3", sC6, sRB); V("s_lshr_b32 s%d, s%d, 2", sRB, sRB)

a("s_load_dwordx8 s[20:27], s[0:1], 64")
a("s_load_dwordx16 s[4:19], s[0:1], 0")
a("s_load_dwordx2 s[28:29], s[0:1], 96")
a("s_cmp_ge_u32 s2, 256"); a("s_cbranch_scc1 L_end")
stamp(0)
a("v_lshrrev_b32 v2, 6, v0"); a("v_and_b32 v1, 63, v0"); V("v_readfirstlane_b32 s%d, v2", sLD)
V("v_lshrrev_b32 v%d, 4, v%d", vG, vL); V("v_and_b32 v%d, 15, v%d", vC, vL)
V("s_and_b32 s%d, s2, 7", sx); V("s_lshr_b32 s%d, s2, 3", sy)
V("s_mov_b32 s%d, 400000", sTO); V("v_mov_b32 v%d, %d", vZ, LS)
V("s_mov_b32 s%d, 0x01010101", sONES); V("s_mov_b32 s%d, 0x01010101", sONES + 1)
V("v_lshrrev_b32 v%d, 5, v%d", TMP, vL)
if STAMPS:
    for i in range(1, NST): V("s_mov_b64 s[%d:%d], 0", sSTMP + 2 * i, sSTMP + 2 * i + 1)
if P["pf"]:
    V("s_and_b32 s%d, s%d, 14", st0, sLD); V("s_cmp_lg_u32 s%d, 4", st0); a("s_cbranch_scc1 L_nopf")
    V("s_getpc_b64 s[%d:%d]", sB, sB + 1); a.label("L_pc")
    V("v_and_b32 v%d, 127, v0", TMP + 1); V("v_lshlrev_b32 v%d, 7, v%d", TMP + 1, TMP + 1); V("v_min_u32 v%d, L_codeend-L_pc-4, v%d", TMP + 1, TMP + 1)
    V("global_load_dword v%d, v%d, s[%d:%d]", ACC, TMP + 1, sB, sB + 1)
    a.label("L_nopf")
V("s_cmp_ge_u32 s%d, 4", sLD); a("s_cbranch_scc1 L_comp")
vS5, vS2, vO, vCN, vLA = 16, 17, 18, 19, 20
sIDX, sCNT, sISS, sPUB, sM0, sROT = 46, 47, 52, 53, 54, 55
if P["prio"]: a("s_setprio %d" % P["prio"])
V("s_lshl_b32 s%d, s%d, 2", st0, sLD); V("v_lshl_add_u32 v%d, v%d, 1, s%d", TMP + 1, TMP, st0); V("v_xor_b32 v%d, v%d, v%d", vS5, vC, TMP + 1); V("v_lshlrev_b32 v%d, 4, v%d", vS5, vS5)
V("v_add_u32 v%d, s%d, v%d", vLA, st0, vZ)
V("v_and_b32 v%d, 1, v%d", TMP + 8, vG)
V("v_mul_u32_u24 v%d, 12288, v%d", vO, TMP); V("v_lshl_add_u32 v%d, v%d, 11, v%d", vO, TMP + 8, vO); V("v_add_u32 v%d, v%d, v%d", vO, vO, vS5)
V("v_lshl_add_u32 v%d, v%d, 8, v%d", vS5, TMP + 8, vS5)
V("s_and_b32 s%d, s%d, 1", st0, sLD); V("s_lshl_b32 s%d, s%d, 3", st0, st0); V("v_lshl_add_u32 v%d, v%d, 1, s%d", TMP + 1, vG, st0); V("v_xor_b32 v%d, v%d, v%d", vS2, vC, TMP + 1); V("v_lshlrev_b32 v%d, 4, v%d", vS2, vS2)
lin(st2, [(32 * 12288, sy), (2 * 12288, sLD), (256, sx)])
V("s_lshl_b32 s%d, s%d, 10", sJ, sLD)
V("s_mov_b32 s%d, 4", sISS); V("s_mov_b32 s%d, 0", sPUB)
if P["rot"]: lin(sROT, [(P["rmul"], sy), (P["rmx"], sx)])
else: V("s_mov_b32 s%d, -1", sROT)
a("s_waitcnt lgkmcnt(0)")
base(sB, sWM, st2)
stamp(8)
for i in range(4):
    V("s_add_u32 m0, s%d, %d", sJ, SLA + i * 4096)
    V("global_load_lds_dwordx4 v%d, s[%d:%d]%s", vO, sB, sB + 1, NT)
    if i != 3: base(sB, sB, None, 8 * 12288)
V("s_load_dword s%d, s[%d:%d], 0", sEP, sWS, sWS + 1)
V("s_and_b32 s%d, s%d, 15", sz, sy)
if STAMPS: wsb(sSTB, [(NST * 8 * 12, 2), (NST * 8, sLD)], 128 << 20)
def off5(stride): V("v_mul_u32_u24 v%d, %d, v%d", vO, stride, TMP); V("v_add_u32 v%d, v%d, v%d", vO, vO, vS5)
def off2(stride): V("v_mul_u32_u24 v%d, %d, v%d", vO, stride, vG); V("v_add_u32 v%d, v%d, v%d", vO, vO, vS2)
def begin(ptr, slot, rot=True):
    base(sB2, ptr, st0); V("s_add_u32 s%d, s%d, %d", sM0, sJ, slot)
    if rot: V("s_mov_b32 s%d, s%d", sIDX, sROT)
    else: V("s_mov_b32 s%d, -1", sIDX)
def run(n, step, W, pub=False):
    if n <= 0: return
    l = a.lab("Ld")
    V("s_mov_b32 s%d, %d", sCNT, n - 1)
    a.label(l)
    V("s_add_u32 s%d, s%d, 1", sIDX, sIDX); V("s_and_b32 s%d, s%d, 15", sIDX, sIDX); V("s_mul_i32 s%d, s%d, %d", st3, sIDX, step)
    base(sB, sB2, st3)
    V("s_lshl_b32 s%d, s%d, 12", st3, sIDX); V("s_add_u32 m0, s%d, s%d", st3, sM0)
    a("s_waitcnt vmcnt(%d)" % (W - 1))
    V("global_load_lds_dwordx4 v%d, s[%d:%d]%s", vO, sB, sB + 1, NT)
    if pub:
        V("s_sub_i32 s%d, s%d, %d", st3, sISS, W - 1); V("s_max_i32 s%d, s%d, s%d", sPUB, sPUB, st3); V("s_add_u32 s%d, s%d, 1", sISS, sISS)
        V("v_mov_b32 v%d, s%d", vCN, sPUB); V("ds_write_b32 v%d, v%d offset:%d", vLA, vCN, F_LAND)
    V("s_sub_u32 s%d, s%d, 1", sCNT, sCNT); a("s_cbranch_scc0 %s" % l)
    if not pub: V("s_add_u32 s%d, s%d, %d", sISS, sISS, n)
def tail(n, st=None):
    a("s_waitcnt vmcnt(%d)" % n); a("s_barrier")
    if n: a("s_waitcnt vmcnt(0)")
    if st is not None: stamp(st)
    if n: a("s_barrier")
def mbegin(grp, slot):
    mtile(grp); off2(12288); lin(st0, [(12288, sMR0), (4 * 12288, sLD), (2048, sMOD), (256, sMCB)], 4096); begin(sWM, slot, False)
a("s_cmp_ge_u32 s2, 128"); a("s_cbranch_scc1 L_ldB")
def kbegin():
    V("s_lshl_b32 s%d, s%d, 2", st0, sLD); V("v_add_u32 v%d, s%d, v%d", TMP + 1, st0, vG); V("v_xor_b32 v%d, v%d, v%d", vO, vC, TMP + 1); V("v_lshlrev_b32 v%d, 4, v%d", vO, vO); V("v_lshl_add_u32 v%d, v%d, 8, v%d", vO, vG, vO)
    lin(st0, [(1 << 23, sx), (1 << 16, sz), (1024, sLD)], 28672 * 256); begin(sK, SL0)
if MA:
    mbegin(0, SLM_A); a("s_barrier"); run(NM[0], 16 * 12288, P["wm"], True); kbegin()
else:
    kbegin(); a("s_barrier")
run(16, 4096, P["wk"], True); stamp(1)
off2(256); begin(sV, SL1)
if MA: spin(B_MF, sleep=1)
run(16, 4096, P["wv"], True); stamp(2)
def f1begin(): off5(7168); V("s_min_u32 s%d, s%d, 13", st1, sz); lin(st0, [(128 * 7168, sx), (2 * 7168, sLD), (512, st1)]); begin(sW1, SL0 if MA else SL1)
if MA: f1begin()
else: mbegin(0, SLM_A)
a("s_waitcnt vmcnt(%d)" % P["g2"]); a("s_barrier"); a("s_waitcnt vmcnt(0)"); stamp(3)
a("s_barrier")
pre = min(P["f1pre"], 16 if MA else NM[0], P["wf"])
if MA:
    V("s_cmp_ge_u32 s%d, 14", sz); a("s_cbranch_scc1 L_bar3")
    run(pre, 8 * 7168, 16)
    for i in range(3): a("s_barrier")
    stamp(4)
    run(16 - pre, 8 * 7168, P["wf"])
else:
    run(pre, 16 * 12288, 16)
    for i in range(3): a("s_barrier")
    stamp(4)
    run(NM[0] - pre, 16 * 12288, P["wf"])
    V("s_cmp_ge_u32 s%d, 14", sz); a("s_cbranch_scc1 L_mdone")
    f1begin(); run(16, 8 * 7168, P["wf"], True)
a("s_waitcnt lgkmcnt(0)")
V("s_add_u32 s%d, s%d, 0x9e5", sT, sEP); V("s_and_b32 s%d, s%d, 0x%x", sT, sT, TAGM); V("s_mul_i32 s%d, s%d, 0x00100101", sTW, sT); V("s_xor_b32 s%d, s%d, 0x5a5a0000", sTW, sTW)
wsb(sB, [(1024, sz), (128, sx)], O_S5S)
V("v_lshl_add_u32 v%d, v%d, 3, v%d", vO, vL, vZ); V("v_lshlrev_b32 v%d, 4, v%d", vCN, TMP)
V("v_mov_b32 v%d, s%d", GD + 5, sTW); V("v_mov_b32 v%d, s%d", GD + 7, sTW)
if LH5: wsb(sB3, [(1024, sz), (128, sx)], O_H5); V("v_mov_b32 v%d, 0", TMP + 1)
tail(P["g4"], 5)
if VT: a("s_barrier")
a("s_barrier")
if LH5:
    V("s_cmp_lg_u32 s%d, 1", sLD); a("s_cbranch_scc1 L_nh5")
    a("s_mov_b64 exec, 1"); V("global_store_dword v%d, v%d, s[%d:%d]", TMP + 1, GD + 5, sB3, sB3 + 1); a("s_mov_b64 exec, -1")
    a.label("L_nh5")
V("s_cmp_lg_u32 s%d, 0", sLD); a("s_cbranch_scc1 L_fin")
V("ds_read_b64 v[%d:%d], v%d offset:%d", GD, GD + 1, vO, A_ST2)
a("s_waitcnt lgkmcnt(0)")
allred([GD, GD + 1], 4)
V("v_mov_b32 v%d, v%d", GD + 2, GD); V("v_mov_b32 v%d, v%d", GD + 3, GD + 1)
V("v_permlane16_swap_b32 v%d, v%d", GD, GD + 2); V("v_permlane16_swap_b32 v%d, v%d", GD + 1, GD + 3)
V("v_add_f32 v%d, v%d, v%d", GD + 4, GD, GD + 2); V("v_add_f32 v%d, v%d, v%d", GD + 6, GD + 1, GD + 3)
a("s_mov_b32 exec_lo, 1"); a("s_mov_b32 exec_hi, 1")
V("global_store_dwordx4 v%d, v[%d:%d], s[%d:%d] sc1", vCN, GD + 4, GD + 7, sB, sB + 1)
a("s_mov_b64 exec, -1")
stamp(6)
a("s_branch L_fin")
if MA:
    a.label("L_bar3"); a("s_barrier"); a("s_barrier"); a("s_barrier"); a("s_branch L_fin")
else:
    a.label("L_mdone"); a("s_waitcnt vmcnt(0)"); V("v_mov_b32 v%d, 99", vCN); V("ds_write_b32 v%d, v%d offset:%d", vLA, vCN, F_LAND); a("s_branch L_fin")
a.label("L_ldB")
off5(8192); lin(st0, [(128 * 8192, sx), (2 * 8192, sLD), (512, sz)]); begin(sWQ, SL0)
a("s_barrier")
run(16, 8 * 8192, P["wq"], True); stamp(1)
mbegin(1, SL1)
tail(P["g1"], 7); a("s_barrier"); a("s_barrier")
kb = min(P["kb"], NM[1])
run(kb, 16 * 12288, P["wbl"]); run(NM[1] - kb, 16 * 12288, P["wo"]); stamp(2)
off2(2048); V("s_and_b32 s%d, s%d, 1", st1, sz); V("s_lshr_b32 s%d, s%d, 1", st2, sz)
lin(st0, [(512 * 2048, sx), (256 * 2048, st1), (4 * 2048, sLD), (256, st2)]); begin(sWO, SL0)
run(16, 16 * 2048, P["wo"], True); stamp(3)
p6map()
if LOC: lin(st0, [(256 * 2048, sRB), (4 * 2048, sLD), (256, sC6)]); F2S = 16 * 2048
else: off5(2048); lin(st0, [(128 * 2048, sRB), (2 * 2048, sLD), (512, sC6)]); F2S = 8 * 2048
begin(sW2, SL1)
if P["f2pre"]:
    V("s_cmp_ge_u32 s%d, 14", sz); a("s_cbranch_scc1 L_nf2p")
    spin(B_MF, sleep=1); run(P["f2pre"], F2S, P["wo"])
    a.label("L_nf2p")
tail(P["g3"], 4); a("s_barrier"); a("s_barrier"); stamp(5)
V("s_cmp_ge_u32 s%d, 14", sz); a("s_cbranch_scc1 L_fin")
run(16 - P["f2pre"], F2S, P["wf2"])
if LH5:
    a("s_waitcnt lgkmcnt(0)")
    V("s_add_u32 s%d, s%d, 0x9e5", sT, sEP); V("s_and_b32 s%d, s%d, 0x%x", sT, sT, TAGM); V("s_mul_i32 s%d, s%d, 0x00100101", sTW, sT); V("s_xor_b32 s%d, s%d, 0x5a5a0000", sTW, sTW)
    wsb(sB3, [(1024, sz), (128, sx)], O_H5); V("v_mov_b32 v%d, 0", TMP + 1); V("s_mov_b32 s%d, 40", sCNT)
tail(P["g5"], 6)
if LH5:
    V("s_cmp_lg_u32 s%d, 0", sLD); a("s_cbranch_scc1 L_h5d")
    a("s_mov_b64 exec, 1")
    a.label("L_h5")
    V("global_load_dword v%d, v%d, s[%d:%d] sc1", vCN, TMP + 1, sB3, sB3 + 1); a("s_waitcnt vmcnt(0)")
    V("v_cmp_ne_u32 vcc, s%d, v%d", sTW, vCN); a("s_cbranch_vccz L_h5o")
    V("s_sub_u32 s%d, s%d, 1", sCNT, sCNT); a("s_cbranch_scc0 L_h5")
    a.label("L_h5o"); a("s_mov_b64 exec, -1")
    if P["m5"]: a("s_sleep %d" % P["m5"])
    a.label("L_h5d")
    a("s_barrier")
a("s_barrier")
a("s_branch L_fin")
a.label("L_comp")
V("s_sub_u32 s%d, s%d, 4", sJ, sLD)
if P["cprio"]: a("s_setprio %d" % P["cprio"])
V("v_lshlrev_b32 v%d, 11, v%d", TMP + 1, TMP); V("v_and_b32 v%d, 31, v%d", TMP + 2, vL)
V("v_lshl_add_u32 v%d, v%d, 1, v%d", TMP + 3, TMP + 2, TMP + 1)
V("s_lshl_b32 s%d, s%d, 6", st0, sy); V("v_add_u32 v%d, s%d, v%d", TMP + 4, st0, TMP + 3)
V("v_lshl_add_u32 v%d, v%d, 3, v%d", TMP + 5, TMP + 2, TMP + 1); V("s_lshl_b32 s%d, s%d, 8", st0, sJ); V("v_add_u32 v%d, s%d, v%d", TMP + 5, st0, TMP + 5)
lin(st1, [(256, sx), (32, sJ)])
V("v_and_b32 v%d, 1, v%d", TMP + 6, vG); V("v_lshlrev_b32 v%d, 11, v%d", TMP + 6, TMP + 6); V("v_lshl_add_u32 v%d, v%d, 1, v%d", TMP + 6, vC, TMP + 6); V("v_add_u32 v%d, s%d, v%d", TMP + 6, st1, TMP + 6)
V("v_mov_b32 v%d, 0", TMP + 8); V("v_lshl_add_u32 v%d, v%d, 2, v%d", TMP + 9, TMP + 2, vZ)
V("ds_write_b32 v%d, v%d", TMP + 9, TMP + 8)
a("s_waitcnt lgkmcnt(0)")
V("global_load_dwordx2 v[%d:%d], v%d, s[%d:%d]", vXS, vXS + 1, TMP + 5, sX, sX + 1)
V("global_load_ushort v%d, v%d, s[%d:%d]", GL, TMP + 4, sC, sC + 1)
V("global_load_ushort v%d, v%d, s[%d:%d]", vXD, TMP + 6, sX, sX + 1)
V("s_load_dword s%d, s[%d:%d], 0", sEP, sWS, sWS + 1)
a("s_barrier")
V("s_and_b32 s%d, s%d, 15", sz, sy)
V("s_mov_b32 s%d, 0x%x", sTM, TAGM); V("s_mov_b32 s%d, 0", sHI); V("s_mov_b32 s%d, -1", sHI + 1)
V("v_add_u32 v%d, s%d, v%d", vFL, sJ, vZ)
V("s_lshl_b32 s%d, s%d, 7", st0, sJ); V("v_and_b32 v%d, 7, v%d", TMP + 4, vL); V("v_lshl_add_u32 v%d, v%d, 4, s%d", vJQ, TMP + 4, st0)
V("v_lshl_add_u32 v%d, v%d, 2, s%d", vPUB, TMP + 2, st0)
V("v_bfe_u32 v%d, v%d, 2, 3", TMP + 16, vL); V("v_lshl_add_u32 v%d, v%d, 4, v%d", TMP + 17, TMP, TMP + 16)
V("v_xor_b32 v%d, s%d, v%d", TMP + 4, sJ, TMP + 16); V("v_lshlrev_b32 v%d, 5, v%d", TMP + 4, TMP + 4); V("v_and_b32 v%d, 3, v%d", TMP + 5, vL); V("v_lshl_add_u32 v%d, v%d, 3, v%d", TMP + 4, TMP + 5, TMP + 4)
V("v_lshl_add_u32 v%d, v%d, 9, v%d", vTR5, TMP + 17, TMP + 4); V("v_lshl_add_u32 v%d, v%d, 8, v%d", vTR2, TMP + 17, TMP + 4)
vGH = TMP + 14
V("v_bfe_u32 v%d, v%d, 2, 1", TMP + 4, vL); V("v_mul_u32_u24 v%d, %d, v%d", TMP + 7, ASTR, TMP + 4); V("v_lshl_add_u32 v%d, v%d, 4, v%d", TMP + 4, vG, TMP + 7); V("v_add_u32 v%d, v%d, v%d", TMP + 13, TMP + 4, vZ)
V("v_and_b32 v%d, 1, v%d", TMP + 4, vL); V("v_mul_u32_u24 v%d, 0xaaaa, v%d", vIX, TMP + 4); V("v_add_u32 v%d, 0x4444, v%d", vIX, vIX)
V("v_lshl_add_u32 v%d, v%d, 4, v%d", vGH, TMP + 4, vZ); V("v_lshl_add_u32 v%d, v%d, 5, v%d", vGH, vG, vGH); V("v_add_u32 v%d, v%d, v%d", vAF, vGH, TMP + 7)
vW32 = TMP + 18
swapbits(TMP + 4, TMP + 2, TMP + 5, 2, 3); V("v_mul_u32_u24 v%d, %d, v%d", TMP + 5, ASTR, TMP); V("v_lshl_add_u32 v%d, v%d, 1, v%d", TMP + 4, TMP + 4, TMP + 5); V("v_add_u32 v%d, v%d, v%d", vW32, TMP + 4, vZ)
V("v_and_b32 v%d, 3, v%d", TMP + 4, vL); V("v_lshl_add_u32 v%d, v%d, 2, v%d", TMP + 4, TMP + 4, vG); V("s_lshl_b32 s%d, s%d, 4", st0, sJ); V("v_add_u32 v%d, s%d, v%d", TMP + 4, st0, TMP + 4)
swapbits(TMP + 4, TMP + 4, TMP + 5, 1, 3); V("v_lshl_add_u32 v%d, v%d, 1, v%d", TMP + 4, TMP + 4, TMP + 7); V("v_add_u32 v%d, v%d, v%d", vWV, TMP + 4, vZ)
V("v_and_b32 v%d, 1, v%d", TMP + 4, vG); V("v_lshlrev_b32 v%d, 7, v%d", TMP + 10, TMP); V("v_lshl_add_u32 v%d, v%d, 3, v%d", TMP + 10, TMP + 4, TMP + 10); V("v_add3_u32 v%d, v%d, v%d, s%d", TMP + 10, TMP + 10, vZ, st0)
V("v_lshlrev_b32 v%d, 7, v%d", TMP + 11, TMP + 4); V("v_lshl_add_u32 v%d, v%d, 3, v%d", TMP + 11, vC, TMP + 11); V("v_add_u32 v%d, v%d, v%d", TMP + 11, TMP + 11, vZ)
V("v_add_u32 v%d, %d, v%d", TMP + 12, SLA, vTR5)
wsb(sB, [(32768, sx), (1024, sy)], O_S1)
if STAMPS: wsb(sSTB, [(NST * 8 * 12, 2), (NST * 8, sLD)], 128 << 20)
V("s_mov_b32 s%d, 0x3f803f80", st0)
V("s_cmp_eq_u32 s%d, 0", sy); V("s_cselect_b32 s%d, 1.0, 0", st2)
a("s_waitcnt vmcnt(0)")
V("v_dot2_f32_bf16 v%d, v%d, s%d, 0", GD, vXS, st0); V("v_dot2_f32_bf16 v%d, v%d, v%d, 0", GD + 1, vXS, vXS)
V("v_dot2_f32_bf16 v%d, v%d, s%d, v%d", GD, vXS + 1, st0, GD); V("v_dot2_f32_bf16 v%d, v%d, v%d, v%d", GD + 1, vXS + 1, vXS + 1, GD + 1)
V("v_lshlrev_b32 v%d, 16, v%d", GL, GL)
V("v_mul_f32 v%d, 0xbfb8aa3b, v%d", GL + 2, GL); V("v_exp_f32 v%d, v%d", GL + 2, GL + 2)
allred([GD, GD + 1], 2)
V("v_add_f32 v%d, 1.0, v%d", GL + 2, GL + 2); V("v_rcp_f32 v%d, v%d", GL + 2, GL + 2)
for r in (GD, GD + 1): dpp("v_add_f32", r, r, r, "row_half_mirror")
V("v_mul_f32 v%d, v%d, v%d", GL, GL, GL + 2); pack(GL)
for r in (GD, GD + 1): dpp("v_add_f32", r, r, r, "row_mirror")
V("ds_write_b16 v%d, v%d offset:%d", vW32, GL, A_C1)
V("ds_write_b64 v%d, v[%d:%d] offset:%d", TMP + 10, GD, GD + 1, A_ST1)
arrive(B_P1A)
V("v_lshlrev_b32 v%d, 16, v%d", vXD, vXD)
a("s_waitcnt lgkmcnt(0)")
V("s_add_u32 s%d, s%d, 0x9e5", sT, sEP); V("s_and_b32 s%d, s%d, s%d", sT, sT, sTM); V("v_mov_b32 v%d, s%d", vT, sT)
V("s_mul_i32 s%d, s%d, 0x00100101", sTW, sT); V("s_xor_b32 s%d, s%d, 0x5a5a0000", sTW, sTW); V("v_mov_b32 v%d, s%d", vTW, sTW)
spin(B_P1A)
V("ds_read_b64 v[%d:%d], v%d offset:%d", GD, GD + 1, TMP + 11, A_ST1); emit(afr(TMP + 13, A_C1, 1))
a("s_waitcnt lgkmcnt(0)")
allred([GD, GD + 1], 4); lnstats(GD, GD + 1)
V("v_sub_f32 v%d, v%d, v%d", vXD, vXD, GD); V("v_mul_f32 v%d, v%d, v%d", vXD, vXD, GD + 1)
landed(4)
stamp(1)
emit(trl(WA, 512, (0,), TMP + 12, 0)); emit(trl(WA + 4, 512, (0,), TMP + 12, 256))
a("s_waitcnt lgkmcnt(0)")
mfma(ACC + 4, vA, WA + 4, True); mfma(ACC, vA, WA, True)
V("v_add_f32 v%d, s%d, v%d", ACC + 4, st2, ACC + 4); V("v_fmac_f32 v%d, v%d, v%d", ACC, vXD, ACC + 4); tag([ACC])
pub32(ACC, vPUB, sB)
stamp(2)
def late(grp):
    mtile(grp)
    V("v_and_b32 v%d, 4, v%d", TMP + 5, vL); V("v_lshlrev_b32 v%d, 9, v%d", TMP + 5, TMP + 5); V("v_and_b32 v%d, 3, v%d", TMP + 6, vL)
    V("v_lshl_add_u32 v%d, v%d, 3, v%d", TMP + 5, TMP + 6, TMP + 5); V("v_lshl_add_u32 v%d, v%d, 1, v%d", TMP + 19, vG, TMP + 5)
    lin(st0, [(2, sMR0), (32, sJ)]); V("v_add_u32 v%d, s%d, v%d", TMP + 6, st0, TMP + 19); V("v_min_u32 v%d, 4094, v%d", TMP + 7, TMP + 6)
    V("global_load_ushort v%d, v%d, s[%d:%d]", vGA, TMP + 7, sC, sC + 1)
    if NM[grp] > 8:
        V("v_add_u32 v%d, 256, v%d", TMP + 6, TMP + 6); V("v_min_u32 v%d, 4094, v%d", TMP + 6, TMP + 6)
        V("global_load_ushort v%d, v%d, s[%d:%d]", GL + 7, TMP + 6, sC, sC + 1)
    if grp == 0:
        lin(st0, [(256, sx), (32, sJ)]); V("v_add_u32 v%d, s%d, v%d", TMP + 19, st0, TMP + 19)
        V("global_load_ushort v%d, v%d, s[%d:%d]", vX, TMP + 19, sX, sX + 1)
def late_use(grp, ny=0):
    a("s_waitcnt vmcnt(%d)" % ny)
    V("v_lshlrev_b32 v%d, 16, v%d", vGA, vGA); silu(vGA, vCB); pack(vGA)
    V("ds_write_b16 v%d, v%d offset:%d", vWV, vGA, A_C2)
    if NM[grp] > 8:
        V("v_lshlrev_b32 v%d, 16, v%d", GL + 7, GL + 7); silu(GL + 7, vCB); pack(GL + 7)
        V("ds_write_b16 v%d, v%d offset:%d", vWV, GL + 7, A_C2 + 256)
    if grp == 0: V("v_lshlrev_b32 v%d, 16, v%d", vX, vX)
def p1b(grp, slot, thr, front):
    if front: arrive(B_C2); spin(B_C2, sleep=1)
    nd = NM[grp] // 4
    emit(afr(vAF, A_C2, nd)); zacc(4)
    V("v_add_u32 v%d, %d, v%d", TMP + 1, slot, vTR2)
    wsb(sB6, [(32768, sMCB), (8192, sMOD), (1024, sMRB)], O_SM)
    landed(thr)
    emit(trl(WA, 256, range(2 * nd), TMP + 1))
    arrive(B_MF)
    gemv1(WA, nd, lambda d: 4 * (nd - 1 - d) + 1)
    pub32(ACC, vPUB, sB6)
vG8 = TMP + 8
a("s_cmp_ge_u32 s2, 128"); a("s_cbranch_scc1 L_B")
late(0)
vL16, vQW, vQA, vMW, vPW, vPA, vVB, vLW, vLR, vMR, vS3, vH2, vSH = TMP + 8, TMP + 9, TMP + 10, TMP + 11, TMP + 12, TMP + 13, TMP + 15, TMP + 16, TMP + 17, TMP + 18, vXS, vXS + 1, vXD
vVA = TMP + 1
wsb(sB, [(32768, sx), (4096, sJ)], O_S2)
V("v_lshlrev_b32 v%d, 4, v%d", vL16, vL)
V("v_and_b32 v%d, 31, v%d", vQW, vL); V("v_lshlrev_b32 v%d, 3, v%d", vQW, vQW); V("v_lshrrev_b32 v%d, 5, v%d", TMP + 4, vL); V("v_lshl_add_u32 v%d, v%d, 2, v%d", vQW, TMP + 4, vQW)
V("s_mul_i32 s%d, s%d, 288", st0, sJ); V("v_add3_u32 v%d, v%d, v%d, s%d", vQW, vQW, vZ, st0)
V("v_lshlrev_b32 v%d, 5, v%d", vPW, TMP + 4); V("v_bfe_u32 v%d, v%d, 3, 2", TMP + 5, vL); V("v_lshl_add_u32 v%d, v%d, 2, v%d", vPW, TMP + 5, vPW)
V("v_and_b32 v%d, 7, v%d", TMP + 4, vL)
V("v_mul_u32_u24 v%d, %d, v%d", TMP + 5, PSTR, TMP + 4); V("s_lshl_b32 s%d, s%d, 6", st0, sJ); V("s_add_u32 s%d, s%d, %d", st0, st0, LS + A_P); V("v_add3_u32 v%d, v%d, v%d, s%d", vPW, vPW, TMP + 5, st0)
V("v_bfe_u32 v%d, v%d, 1, 3", TMP + 5, vL); V("v_mul_u32_u24 v%d, %d, v%d", vPA, PSTR, TMP + 5); V("v_add_u32 v%d, v%d, v%d", vPA, vPA, vGH)
V("v_mul_u32_u24 v%d, 288, v%d", vQA, TMP + 4); V("v_lshl_add_u32 v%d, v%d, 4, v%d", vQA, vG, vQA); V("v_add_u32 v%d, v%d, v%d", vQA, vQA, vZ)
V("v_lshl_add_u32 v%d, v%d, 5, v%d", vMR, TMP + 4, vZ); V("s_lshl_b32 s%d, s%d, 2", st0, sJ); V("v_add_u32 v%d, s%d, v%d", vMW, st0, vMR)
V("v_mul_u32_u24 v%d, 272, v%d", vLW, TMP + 4); V("v_lshrrev_b32 v%d, 3, v%d", TMP + 6, vL); V("v_lshl_add_u32 v%d, v%d, 2, v%d", vLW, TMP + 6, vLW)
V("s_lshl_b32 s%d, s%d, 5", st0, sJ); V("v_add3_u32 v%d, v%d, v%d, s%d", vLW, vLW, vZ, st0)
V("v_mul_u32_u24 v%d, 272, v%d", vLR, TMP + 6); V("v_lshl_add_u32 v%d, v%d, 5, v%d", vLR, TMP + 4, vLR); V("v_add_u32 v%d, v%d, v%d", vLR, vLR, vZ)
V("v_lshl_add_u32 v%d, v%d, 2, v%d", vH2, vL, vZ)
V("v_xor_b32 v%d, v%d, v%d", GL, TMP + 4, vG); V("v_lshlrev_b32 v%d, 4, v%d", GL, GL); V("v_lshl_add_u32 v%d, v%d, 8, v%d", GL, TMP + 4, GL)
V("v_and_b32 v%d, 8, v%d", TMP + 4, vL); V("v_lshl_add_u32 v%d, v%d, 9, v%d", GL, TMP + 4, GL)
V("s_lshl_b32 s%d, s%d, 13", st0, sJ); V("v_add_u32 v%d, s%d, v%d", GL, st0, GL)
for s in range(1, 4): V("v_xor_b32 v%d, %d, v%d", GL + s, s << 6, GL)
V("s_mov_b32 s%d, 0xff00ff00", sMSK); V("s_mov_b32 s%d, 0xff00ff00", sMSK + 1)
V("v_lshlrev_b32 v%d, 15, v%d", vS3, vG); V("v_lshl_add_u32 v%d, v%d, 3, v%d", vS3, vC, vS3)
V("v_and_b32 v%d, 1, v%d", vSH, vL); V("v_mul_u32_u24 v%d, 12, v%d", vSH, vSH); V("v_sub_u32 v%d, 20, v%d", vSH, vSH)
V("s_lshl_b32 s%d, s%d, 1", st0, sJ); V("s_and_b32 s%d, s%d, 7", st0, st0); V("s_xor_b32 s%d, s%d, s%d", st0, st0, sJ); V("s_lshl_b32 s%d, s%d, 5", st0, st0); V("s_xor_b32 s%d, s%d, 32", st0, st0)
V("v_xor_b32 v%d, s%d, v%d", vVB, st0, vTR2); V("v_add_u32 v%d, %d, v%d", vVB, SL1, vVB)
V("s_and_b32 s%d, s%d, 3", st1, sx); V("s_lshr_b32 s%d, s%d, 2", st2, sx)
wsb(sB2, [(8 * 16384, st1), (4096, sJ), (256, sz), (128, st2)], O_S3); base(sB3, sB2, None, 16384)
SC = struct.unpack("<I", struct.pack("<f", 128 ** -0.5 * math.log2(math.e)))[0]
V("s_mov_b32 s%d, 0x%08x", st1, SC)
late_use(0)
if MA: p1b(0, SLM_A, EA_M, True); stamp(13)
V("v_xor_b32 v%d, 32, v%d", vVA, vVB)
landed(EA_K)
for s in range(4):
    for t in range(2): V("ds_read_b128 v[%d:%d], v%d offset:%d", WA + 16 * t + 4 * s, WA + 16 * t + 4 * s + 3, GL + (s ^ (2 * t)), SL0 + t * 2048)
a("s_barrier")
stamp(3)
g2 = [gl(GD + 4 * i, vL16, sB, i * 1024) for i in range(4)]
emit(g2)
gfinish(g2, R(GD, 16), cnt=1)
stamp(4)
add4(GD, GD + 4); add4(GD + 8, GD + 12); add4(GD, GD + 8)
V("v_permlane32_swap_b32 v%d, v%d", GD, GD + 2); V("v_permlane32_swap_b32 v%d, v%d", GD + 1, GD + 3)
V("v_add_f32 v%d, v%d, v%d", GD, GD, GD + 2); V("v_add_f32 v%d, v%d, v%d", GD + 1, GD + 1, GD + 3)
V("v_cvt_pk_bf16_f32 v%d, v%d, v%d", GD, GD, GD + 1)
V("ds_write_b32 v%d, v%d offset:%d", vQW, GD, A_Q)
hbar(afr(vQA, A_Q, 4, GD, 64))
def pvonly(xs):
    l = a.lab("Nv"); V("s_cmp_ge_u32 s%d, 4", sJ); a("s_cbranch_scc1 %s" % l); emit(xs); a.label(l)
vall = trl(WB, 256, range(8), vVA) + trl(vA, 256, range(8), vVB)
n1 = (12, 20, 32)[P["vpos"]]
for s in range(4):
    a("s_waitcnt lgkmcnt(%d)" % (3 - s))
    for t in range(2): mfma(ACC + 4 * t, WA + 16 * t + 4 * s, GD + 4 * s, s == 0)
pvonly(vall[:n1]); a("s_nop 5")
for i in range(4): V("v_cndmask_b32 v%d, v%d, v%d, s[%d:%d]", GD + i, ACC + i, ACC + 4 + i, sMSK, sMSK + 1)
V("v_max_f32 v%d, v%d, v%d", GL, GD, GD + 1); V("v_max3_f32 v%d, v%d, v%d, v%d", GL, GL, GD + 2, GD + 3)
zacc(4)
dpp("v_max_f32", GL, GL, GL, "row_ror:8")
V("v_mov_b32 v%d, v%d", GL + 1, GL); V("v_mov_b64 v[%d:%d], 0", ACC + 4, ACC + 5); V("v_mov_b64 v[%d:%d], 0", ACC + 6, ACC + 7)
V("v_permlane16_swap_b32 v%d, v%d", GL, GL + 1); V("v_max_f32 v%d, v%d, v%d", GL, GL, GL + 1)
V("v_mov_b32 v%d, v%d", GL + 1, GL); V("v_permlane32_swap_b32 v%d, v%d", GL, GL + 1); V("v_max_f32 v%d, v%d, v%d", GL, GL, GL + 1)
a("s_mov_b64 exec, 0xff"); V("ds_write_b32 v%d, v%d offset:%d", vMW, GL, A_MX); a("s_mov_b64 exec, -1")
hbar(["ds_read_b128 v[%d:%d], v%d offset:%d" % (GL + 4 * i, GL + 4 * i + 3, vMR, A_MX + 16 * i) for i in range(2)])
a("s_waitcnt lgkmcnt(0)")
V("v_max3_f32 v%d, v%d, v%d, v%d", GL, GL, GL + 1, GL + 2); V("v_max3_f32 v%d, v%d, v%d, v%d", GL + 4, GL + 4, GL + 5, GL + 6)
V("v_max3_f32 v%d, v%d, v%d, v%d", GL, GL, GL + 3, GL + 7); V("v_max_f32 v%d, v%d, v%d", GL, GL, GL + 4)
V("v_mul_f32 v%d, s%d, v%d", GL, st1, GL)
for i in range(4): V("v_fma_f32 v%d, v%d, s%d, -v%d", GD + i, GD + i, st1, GL)
for i in range(4): V("v_exp_f32 v%d, v%d", GD + i, GD + i)
for i in range(2): V("v_cvt_pk_bf16_f32 v%d, v%d, v%d", GL + 2 + i, GD + 2 * i, GD + 2 * i + 1)
V("ds_write2_b32 v%d, v%d, v%d offset0:0 offset1:4", vPW, GL + 2, GL + 3)
V("v_add_f32 v%d, v%d, v%d", GD, GD, GD + 1); V("v_add_f32 v%d, v%d, v%d", GD + 2, GD + 2, GD + 3); V("v_add_f32 v%d, v%d, v%d", GD, GD, GD + 2)
V("ds_write_b32 v%d, v%d offset:%d", vLW, GD, A_LS)
if n1 < 32: pvonly(vall[n1:])
hbar()
V("s_cmp_ge_u32 s%d, 4", sJ); a("s_cbranch_scc1 L_nopv")
pf_ = afr(vPA, A_P, 4, WA)
emit(["ds_read_b128 v[%d:%d], v%d offset:%d" % (GD + 8 + 4 * i, GD + 11 + 4 * i, vLR, A_LS + 16 * i) for i in range(2)] + ["ds_read_b32 v%d, v%d offset:%d" % (GL + 1, vH2, A_MX)] + pf_)
for d in range(4):
    a("s_waitcnt lgkmcnt(%d)" % (3 - d))
    for t in range(2): smf(ACC + 4 * t, WA + 4 * d, (WB, vA)[t] + 8 * d)
    if d == 0:
        add4(GD + 8, GD + 12); V("v_add_f32 v%d, v%d, v%d", GD + 8, GD + 8, GD + 9); V("v_add_f32 v%d, v%d, v%d", GD + 10, GD + 10, GD + 11); V("v_add_f32 v%d, v%d, v%d", GL, GD + 8, GD + 10)
    else:
        ctl = ("quad_perm:[1,0,3,2]", "quad_perm:[2,3,0,1]", "row_half_mirror")[d - 1]
        dpp("v_max_f32", GL + 1, GL + 1, GL + 1, ctl); dpp("v_add_f32", GL, GL, GL, ctl)
V("v_log_f32 v%d, v%d", GL + 2, GL); V("v_rcp_f32 v%d, v%d", GL, GL)
V("v_fmac_f32 v%d, s%d, v%d", GL + 2, st1, GL + 1); V("v_mov_b32 v%d, v%d", GL + 1, GL)
V("v_lshrrev_b32 v%d, v%d, v%d", GL + 2, vSH, GL + 2)
for k in range(2):
    for t in range(2): V("v_add_f32 v%d, v%d, v%d", GD + 2 * k + t, ACC + 4 * t + 2 * k, ACC + 4 * t + 2 * k + 1)
V("v_mov_b32_dpp v%d, v%d row_ror:8 row_mask:0xf bank_mask:0x3", GL + 1, GL); V("v_mov_b32 v%d, v%d", GL + 3, GL + 2)
V("v_mov_b32_dpp v%d, v%d row_ror:8 row_mask:0xf bank_mask:0xc", GL, GL)
V("v_mov_b32_dpp v%d, v%d row_ror:8 row_mask:0xf bank_mask:0x3", GL + 3, GL + 2); V("v_mov_b32_dpp v%d, v%d row_ror:8 row_mask:0xf bank_mask:0xc", GL + 2, GL + 2)
for k in range(2):
    for t in range(2): V("v_mul_f32 v%d, v%d, v%d", GD + 2 * k + t, GD + 2 * k + t, GL + k)
    V("v_bfi_b32 v%d, s%d, v%d, v%d", GD + 2 * k, sTM, vT, GD + 2 * k); V("v_bfi_b32 v%d, s%d, v%d, v%d", GD + 2 * k + 1, sTM, GL + 2 + k, GD + 2 * k + 1)
    V("global_store_dwordx2 v%d, v[%d:%d], s[%d:%d] sc1", vS3, GD + 2 * k, GD + 2 * k + 1, (sB2, sB3)[k], (sB2, sB3)[k] + 1)
a.label("L_nopv")
stamp(5)
a("s_barrier")
if not MA: p1b(0, SLM_A, EA_M, False); stamp(13)
V("s_cmp_ge_u32 s%d, 14", sz); a("s_cbranch_scc1 L_fin")
vG4, vP5, vA5, vS2W, vF1, vP5U, vG6, vGB = TMP + 9, TMP + 10, TMP + 11, TMP + 12, TMP + 13, TMP + 15, TMP + 16, TMP + 17
GM = WB
V("v_lshrrev_b32 v%d, 3, v%d", vG4, vL); V("v_lshl_add_u32 v%d, v%d, 10, v%d", vG8, vG4, vJQ)
wsb(sB, [(32768, sx)], O_SM); base(sB2, sB, None, 8192); base(sB3, sB, None, 16384); base(sB4, sB, None, 24576)
wsb(sB5, [(16384, sx)], O_S4)
V("v_add_u32 v%d, %d, v%d", vF1, SL0 if MA else SL1, vTR5)
V("v_cmp_gt_u32 s[%d:%d], 7, v%d", sMSK, sMSK + 1, vG4); V("v_min_u32 v%d, 6, v%d", vG6, vG4)
V("v_lshl_add_u32 v%d, v%d, %d, v%d", vG6, vG6, 11 if LOC else 12, vJQ); V("v_lshl_add_u32 v%d, v%d, 11, v%d", vG4, vG4, vJQ)
V("v_lshrrev_b32 v%d, 5, v%d", vP5, vL); V("v_mul_u32_u24 v%d, %d, v%d", vP5U, O_S5T - O_S5U, vP5); V("v_add_u32 v%d, v%d, v%d", vP5U, vP5U, vPUB); V("v_lshl_add_u32 v%d, v%d, 13, v%d", vP5, vP5, vPUB)
if VT: V("v_mov_b32 v%d, 2", vA5)
else: V("v_bfe_u32 v%d, v%d, 3, 1", vA5, vL); V("v_lshlrev_b32 v%d, 1, v%d", vA5, vA5)
V("v_and_b32 v%d, 2, v%d", TMP + 4, vL); V("v_cmp_ne_u32 vcc, 0, v%d", TMP + 4); V("v_cndmask_b32 v%d, v%d, 1, vcc", vA5, vA5)
V("v_mul_u32_u24 v%d, %d, v%d", vA5, 2 * ASTR, vA5); V("v_add_u32 v%d, v%d, v%d", vA5, vA5, vAF)
V("v_and_b32 v%d, 4, v%d", vS2W, vL); V("v_lshlrev_b32 v%d, 6, v%d", vS2W, vS2W); V("v_lshl_add_u32 v%d, v%d, 3, v%d", vS2W, vG, vS2W); V("s_lshl_b32 s%d, s%d, 5", st0, sJ); V("v_add3_u32 v%d, v%d, v%d, s%d", vS2W, vS2W, vZ, st0)
zacc()
gm = [gl(GM + 4 * i, vG8, (sB, sB2, sB3, sB4)[i]) for i in range(4)]
g4 = [gl(GD + 4 * i, vG4, sB5, i * 1024) for i in range(2)]
a("s_barrier")
stamp(7)
emit(gm); emit(g4)
if P["g4"]: a("s_barrier")
tr2(WA, vF1, 0, vF1, 256)
gfinish(gm, R(GM, 16), cnt=0x100, nyoung=2)
stamp(6)
swapred([GM, GM + 4, GM + 8, GM + 12])
V("v_mov_b32 v%d, v%d", vGA, GM); V("v_add_f32 v%d, 1.0, v%d", vCB, GM + 8); V("v_mov_b32 v%d, v%d", vGB, GM + 12); pack(GM + 4); pack(vCB, GM + 2)
V("ds_write_b16 v%d, v%d offset:%d", vWV, GM + 2, A_X + 2 * ASTR); V("ds_write_b16 v%d, v%d offset:%d", vWV, GM + 4, A_X + 4 * ASTR)
wsb(sB3, [(16384, sz), (1024, sx)], O_S5U); base(sB, sB3, None, O_S5V - O_S5U); base(sB2, sB3, None, O_S5T - O_S5U if VT else 8192)
if VT:
    hbar(afr(vA5, A_X, 2))
    gemv2(WA)
    for h in range(2):
        V("v_add_f32 v%d, v%d, v%d", GL + h, ACC + 4 * h, ACC + 4 * h + 1); V("v_add_f32 v%d, v%d, v%d", GL + 2 + h, ACC + 4 * h + 2, ACC + 4 * h + 3)
    zacc()
    for k in range(2):
        V("v_cndmask_b32 v%d, v%d, v%d, s[%d:%d]", GL + 2 * k, GL + 2 * k, GL + 2 * k + 1, sHI, sHI + 1); tag([GL + 2 * k])
        V("global_store_dword v%d, v%d, s[%d:%d] sc1", vP5, GL + 2 * k, (sB2, sB)[k], (sB2, sB)[k] + 1)
    stamp(14)
gfinish(g4, R(GD, 8), cnt=0x10000, nyoung=2 if VT else 0)
stamp(8)
add4(GD, GD + 4); swapred([GD])
V("v_fmac_f32 v%d, v%d, v%d", vX, vGA, GD)
V("v_mul_f32 v%d, v%d, v%d", GD, vX, vCB); V("v_mul_f32 v%d, v%d, v%d", GD + 3, vX, vX); pack(GD)
dpp("v_add_f32", GD + 2, vX, vX, "quad_perm:[1,0,3,2]"); dpp("v_add_f32", GD + 3, GD + 3, GD + 3, "quad_perm:[1,0,3,2]")
V("ds_write_b16 v%d, v%d offset:%d", vWV, GD, A_X)
dpp("v_add_f32", GD + 2, GD + 2, GD + 2, "quad_perm:[2,3,0,1]"); dpp("v_add_f32", GD + 3, GD + 3, GD + 3, "quad_perm:[2,3,0,1]")
V("ds_write_b64 v%d, v[%d:%d] offset:%d", vS2W, GD + 2, GD + 3, A_ST2)
hbar(afr(vAF if VT else vA5, A_X, 2))
gemv2(WA)
def sel2(mask):
    for h in range(2): V("v_add_f32 v%d, v%d, v%d", GD + h, ACC + 4 * h, ACC + 4 * h + 1)
    V("v_cndmask_b32 v%d, v%d, v%d, s[%d:%d]", GD, GD, GD + 1, mask, mask + 1); tag([GD])
if VT:
    sel2(sHI); V("global_store_dword v%d, v%d, s[%d:%d] sc1", vP5, GD, sB3, sB3 + 1)
else:
    for h in range(2):
        V("v_add_f32 v%d, v%d, v%d", GD + h, ACC + 4 * h, ACC + 4 * h + 1); tag([GD + h])
        V("global_store_dword v%d, v%d, s[%d:%d] sc1", vP5U, GD + h, (sB3, sB2)[h], (sB3, sB2)[h] + 1)
    for h in range(2): V("v_add_f32 v%d, v%d, v%d", GD + 2 + h, ACC + 4 * h + 2, ACC + 4 * h + 3)
    V("v_cndmask_b32 v%d, v%d, v%d, s[%d:%d]", GD + 2, GD + 2, GD + 3, sHI, sHI + 1); tag([GD + 2])
    V("global_store_dword v%d, v%d, s[%d:%d] sc1", vP5, GD + 2, sB, sB + 1)
stamp(9)
V("s_cmp_lg_u32 s%d, s%d", sz, sJ); a("s_cbranch_scc1 L_fin")
wsb(sB6, [(NP6 * 1024, sx)], O_S6L if LOC else O_S6); V("s_mov_b32 s%d, 60", sALT)
g6 = [gl(GD + 4 * i, vG6, sB6, i * 1024) for i in range(2 if LOC else 4)]
emit(g6); gfinish(g6, R(GD, 8 if LOC else 16), cnt=0x1000000, alt=(sB6, O_S6L - O_S6) if LOC else None)
add4(GD, GD + 4)
if not LOC: add4(GD + 8, GD + 12); add4(GD, GD + 8)
for i in range(4): V("v_cndmask_b32 v%d, 0, v%d, s[%d:%d]", GD + i, GD + i, sMSK, sMSK + 1)
swapred([GD])
V("v_fmac_f32 v%d, v%d, v%d", vX, vGB, GD); pack(vX)
a("s_mov_b32 exec_lo, 0x00ff00ff"); a("s_mov_b32 exec_hi, 0x00ff00ff")
V("global_store_short v%d, v%d, s[%d:%d]", TMP + 19, vX, sOUT, sOUT + 1)
a("s_mov_b64 exec, -1")
stamp(10)
if P["light"]:
    V("s_memrealtime s[%d:%d]", sSTMP + 2, sSTMP + 3)
    wsb(sSTB, [(16, 2)], 128 << 20)
    a("s_waitcnt lgkmcnt(0)"); V("v_mov_b32 v%d, 0", TMP)
    for i in range(4): V("v_mov_b32 v%d, s%d", TMP + 4 + i, sSTMP + i)
    a("s_mov_b64 exec, 1"); V("global_store_dwordx4 v%d, v[%d:%d], s[%d:%d]", TMP, TMP + 4, TMP + 7, sSTB, sSTB + 1); a("s_mov_b64 exec, -1")
a("s_cmp_lg_u32 s2, 0"); a("s_cbranch_scc1 L_fin")
V("v_mov_b32 v%d, 0", TMP); a("s_mov_b64 exec, 1")
V("global_store_dword v%d, v%d, s[%d:%d] sc1", TMP, vT, sWS, sWS + 1)
a("s_mov_b64 exec, -1")
if AMP >= 0:
    V("s_memrealtime s[%d:%d]", sB, sB + 1); a("s_waitcnt lgkmcnt(0)")
    V("s_sub_u32 s%d, s%d, s%d", st0, sSTMP + 2 * AMP, sSTMP); V("s_mul_i32 s%d, s%d, 10", st0, st0); V("s_min_u32 s%d, s%d, 100000", st0, st0)
    a.label("L_amp")
    V("s_memrealtime s[%d:%d]", sB2, sB2 + 1); a("s_waitcnt lgkmcnt(0)")
    V("s_sub_u32 s%d, s%d, s%d", st1, sB2, sB); V("s_cmp_lt_u32 s%d, s%d", st1, st0); a("s_cbranch_scc1 L_amp")
a("s_branch L_fin")
a.label("L_B")
late(1)
vG1, vQ0, vQ1, vA2, vP2, vL16, vW4 = TMP + 9, TMP + 10, TMP + 11, TMP + 12, TMP + 13, TMP + 16, TMP + 17
p6map()
wsb(sB, [(32768, sx)], O_S1)
V("v_lshrrev_b32 v%d, 3, v%d", vG1, vL); V("v_lshl_add_u32 v%d, v%d, 10, v%d", vG8, vG1, vJQ); V("v_lshl_add_u32 v%d, v%d, 12, v%d", vG1, vG1, vJQ)
V("s_lshl_b32 s%d, s%d, 1", st0, sJ); V("s_and_b32 s%d, s%d, 7", st0, st0); V("s_xor_b32 s%d, s%d, s%d", st0, st0, sJ); V("s_lshl_b32 s%d, s%d, 5", st0, st0)
V("s_lshr_b32 s%d, s%d, 2", st1, sJ); V("s_lshl_b32 s%d, s%d, 8", st2, st1)
V("v_xor_b32 v%d, s%d, v%d", vQ0, st0, vTR5); V("v_add_u32 v%d, s%d, v%d", vQ0, st2, vQ0); V("v_xor_b32 v%d, 32, v%d", vQ1, vQ0)
V("v_bfe_u32 v%d, v%d, 3, 1", TMP + 7, vL); V("v_mul_u32_u24 v%d, %d, v%d", TMP + 7, ASTR, TMP + 7); V("v_add_u32 v%d, v%d, v%d", vA2, vGH, TMP + 7)
V("v_lshrrev_b32 v%d, 5, v%d", vP2, vL); V("v_lshl_add_u32 v%d, v%d, 17, v%d", vP2, vP2, vPUB)
wsb(sB2, [(4096 - 512, st1), (8192, sz), (512, sx)], O_S2)
V("s_mov_b32 s%d, 0xffff0000", sMSK); V("s_mov_b32 s%d, 0xffff0000", sMSK + 1)
V("s_and_b32 s%d, s%d, 1", st0, sz); V("s_lshl_b32 s%d, s%d, 1", sHP, sx); V("s_add_u32 s%d, s%d, s%d", sHP, sHP, st0); V("s_lshr_b32 s%d, s%d, 1", sCB, sz)
wsb(sB3, [(32768, sHP), (4096, sJ)], O_S3); wsb(sB4, [(16384, sCB), (1024, sHP)], O_S4)
V("v_lshlrev_b32 v%d, 4, v%d", vL16, vL)
V("v_and_b32 v%d, 1, v%d", TMP + 4, vG); V("v_lshlrev_b32 v%d, 4, v%d", TMP + 4, TMP + 4); V("v_and_b32 v%d, 7, v%d", TMP + 5, vL); V("v_lshl_add_u32 v%d, v%d, 1, v%d", TMP + 4, TMP + 5, TMP + 4)
V("v_lshrrev_b32 v%d, 5, v%d", TMP + 5, vL); V("v_add_u32 v%d, v%d, v%d", TMP + 4, TMP + 4, TMP + 5)
swapbits(TMP + 4, TMP + 4, TMP + 5, 1, 3)
V("v_lshl_add_u32 v%d, v%d, 1, v%d", TMP + 4, TMP + 4, TMP + 7); V("s_lshl_b32 s%d, s%d, 6", st0, sJ); V("v_add3_u32 v%d, v%d, v%d, s%d", vW4, TMP + 4, vZ, st0)
zacc()
g1 = [gl(GD + 4 * i, vG1, sB, i * 1024) for i in range(4)]
a("s_barrier")
stamp(3)
emit(g1)
late_use(1, 4)
if P["g1"]: a("s_barrier")
tr2(WA, vQ0, 0, vQ1, 0)
gfinish(g1, R(GD, 16), cnt=1)
stamp(4)
add4(GD, GD + 4); add4(GD + 8, GD + 12); add4(GD, GD + 8); swapred([GD]); pack(GD)
V("ds_write_b16 v%d, v%d offset:%d", vWV, GD, A_X)
hbar(afr(vA2, A_X, 2))
gemv2(WA)
sel2(sMSK)
V("global_store_dword v%d, v%d, s[%d:%d] sc1", vP2, GD, sB2, sB2 + 1)
stamp(5)
a("s_barrier")
p1b(1, SL1, EB_M, False); stamp(6)
V("s_mov_b32 s%d, 0x000fff00", st2)
zacc(4)
g3 = [gl(GD + 4 * k, vL16, sB3, k * 1024) for k in range(4)]
a("s_barrier")
stamp(7)
emit(g3)
if P["g3"]: a("s_barrier")
emit(trl(WA, 256, range(8), vTR2))
gfinish(g3, [GD + 2 * k for k in range(8)], cnt=0x100, grp=True)
stamp(8)
for i in range(4): V("v_lshlrev_b32 v%d, 20, v%d", GL + i, GD + 4 * i + 1); V("v_lshlrev_b32 v%d, 8, v%d", GL + 4 + i, GD + 4 * i + 3)
for i in range(4): V("v_bfi_b32 v%d, s%d, v%d, v%d", GL + i, st2, GL + 4 + i, GL + i)
V("v_max_f32 v%d, v%d, v%d", GL + 4, GL, GL + 1); V("v_max3_f32 v%d, v%d, v%d, v%d", GL + 4, GL + 4, GL + 2, GL + 3)
rowred(GL + 4, GL + 5, "v_max_f32")
for i in range(4): V("v_sub_f32 v%d, v%d, v%d", GL + i, GL + i, GL + 4)
for i in range(4): V("v_exp_f32 v%d, v%d", GL + i, GL + i)
for e in range(4): V("v_mul_f32 v%d, v%d, v%d", GD + e, GD + e, GL)
V("v_add_f32 v%d, v%d, v%d", GL + 4, GL, GL + 1); V("v_add_f32 v%d, v%d, v%d", GL + 5, GL + 2, GL + 3); V("v_add_f32 v%d, v%d, v%d", GL + 4, GL + 4, GL + 5)
for e in range(4): V("v_fmac_f32 v%d, v%d, v%d", GD + e, GD + 4 + e, GL + 1)
V("v_mov_b32 v%d, v%d", GL + 5, GL + 4)
for e in range(4): V("v_fmac_f32 v%d, v%d, v%d", GD + e, GD + 8 + e, GL + 2)
V("v_permlane16_swap_b32 v%d, v%d", GL + 4, GL + 5); V("v_add_f32 v%d, v%d, v%d", GL + 4, GL + 4, GL + 5); V("v_mov_b32 v%d, v%d", GL + 5, GL + 4)
for e in range(4): V("v_fmac_f32 v%d, v%d, v%d", GD + e, GD + 12 + e, GL + 3)
V("v_permlane32_swap_b32 v%d, v%d", GL + 4, GL + 5); V("v_add_f32 v%d, v%d, v%d", GL + 4, GL + 4, GL + 5)
V("v_permlane32_swap_b32 v%d, v%d", GD, GD + 2); V("v_permlane32_swap_b32 v%d, v%d", GD + 1, GD + 3)
V("v_add_f32 v%d, v%d, v%d", GD, GD, GD + 2); V("v_add_f32 v%d, v%d, v%d", GD + 1, GD + 1, GD + 3)
V("v_rcp_f32 v%d, v%d", GL + 4, GL + 4)
V("v_permlane16_swap_b32 v%d, v%d", GD, GD + 1); V("v_add_f32 v%d, v%d, v%d", GD, GD, GD + 1)
V("v_mul_f32 v%d, v%d, v%d", GD, GD, GL + 4); pack(GD)
V("ds_write_b16 v%d, v%d offset:%d", vW4, GD, A_Y)
hbar(afr(vAF, A_Y, 4))
gemv1(WA, 4)
pub32(ACC, vPUB, sB4)
stamp(9)
a("s_barrier")
V("s_cmp_ge_u32 s%d, 14", sz); a("s_cbranch_scc1 L_fin")
vG8b, vGS, vP6, vF2 = TMP + 9, TMP + 10, TMP + 11, TMP + 12
NH = 2 if LOC else 1; GV = WB
wsb(sB, [(16384 if LOC else 8192, sRB)], O_S5U); base(sB2, sB, None, O_S5V - O_S5U); base(sB3, sB, None, O_S5T - O_S5U)
V("s_lshr_b32 s%d, s%d, %d", st1, sRB, 0 if LOC else 1); wsb(sB4, [(1024, st1)], O_S5S)
V("v_add_u32 v%d, 8192, v%d", vG8b, vG8)
V("v_and_b32 v%d, 0x38, v%d", vGS, vL); V("v_lshlrev_b32 v%d, 4, v%d", vGS, vGS); V("v_and_b32 v%d, 4, v%d", TMP + 4, vL); V("v_lshl_add_u32 v%d, v%d, 2, v%d", vGS, TMP + 4, vGS)
if LOC:
    lin(st0, [(14 * 1024, sC6), (1024, sRB)], O_S6); V("v_add_u32 v%d, s%d, v%d", vP6, st0, vPUB); base(sB5, sWS, None, O_S6L - O_S6)
    V("v_add_u32 v%d, %d, v%d", vF2, SL1, vTR2)
else:
    V("v_lshrrev_b32 v%d, 5, v%d", vP6, vL); V("v_mul_u32_u24 v%d, %d, v%d", vP6, 28 * 1024, vP6); lin(st0, [(56 * 1024, sC6), (1024, sRB)], O_S6); V("v_add3_u32 v%d, v%d, v%d, s%d", vP6, vP6, vPUB, st0)
    V("v_add_u32 v%d, %d, v%d", vF2, SL1, vTR5)
zacc()
gu = [gl(GL, vGS, sB4)] + [gl(GD + 4 * h, (vG8, vG8b)[h], sB) for h in range(NH)]
gv = [gl(GV + 8 * k + 4 * h, (vG8, vG8b)[h], (sB2, sB3)[k]) for k in range(2) for h in range(NH)]
gvr = [r for k in range(2) for h in range(NH) for r in R(GV + 8 * k + 4 * h)]
a("s_barrier")
if VT: emit(gv)
if not LH5:
    stamp(10); emit(gu)
    if not VT: emit(gv)
if P["g5"]: a("s_barrier")
if LOC: emit(trl(WA, 256, range(8), vF2))
else: tr2(WA, vF2, 0, vF2, 256)
if LH5:
    a("s_barrier"); stamp(10); emit(gu)
    if not VT: emit(gv)
if VT:
    gfinish(gv, gvr, cnt=0x1000000, nyoung=len(gu)); swapred([GV + 8 * k + 4 * h for k in range(2) for h in range(NH)]); stamp(13)
    gfinish(gu, R(GD, 4 * NH), [GL + 1, GL + 3], cnt=0x10000)
else:
    gfinish(gu + gv, R(GD, 4 * NH) + gvr, [GL + 1, GL + 3], cnt=0x10000)
stamp(11)
US = [GD + 4 * h for h in range(NH)] if VT else []
V("v_permlane32_swap_b32 v%d, v%d", GL, GL + 2)
for d in US: V("v_permlane32_swap_b32 v%d, v%d", d, d + 2); V("v_permlane32_swap_b32 v%d, v%d", d + 1, d + 3)
V("v_add_f32 v%d, v%d, v%d", GL, GL, GL + 2)
for d in US: V("v_add_f32 v%d, v%d, v%d", d, d, d + 2); V("v_add_f32 v%d, v%d, v%d", d + 1, d + 1, d + 3)
dpp("v_add_f32", GL, GL, GL, "row_ror:8")
V("v_mov_b32 v%d, v%d", GL + 1, GL)
for d in US: V("v_permlane16_swap_b32 v%d, v%d", d, d + 1); V("v_add_f32 v%d, v%d, v%d", d, d, d + 1)
V("v_permlane16_swap_b32 v%d, v%d", GL, GL + 1); V("v_add_f32 v%d, v%d, v%d", GL, GL, GL + 1)
V("v_mov_b32 v%d, v%d", GL + 2, GL)
for d in US: dpp("v_add_f32", d, d, d, "row_ror:8")
V("v_permlane32_swap_b32 v%d, v%d", GL, GL + 2)
lnstats(GL, GL + 2)
ne = 1 if VT else 4
for h in range(NH):
    for e in range(ne): V("v_fma_f32 v%d, -v%d, v%d, v%d", GD + 4 * h + e, GL, GV + 4 * h + e, GD + 4 * h + e)
for h in range(NH):
    for e in range(ne): V("v_fma_f32 v%d, v%d, v%d, v%d", GD + 4 * h + e, GD + 4 * h + e, GL + 2, GV + 8 + 4 * h + e)
if not VT: swapred([GD + 4 * h for h in range(NH)])
for h in range(NH): V("v_max_f32 v%d, 0, v%d", GD + 4 * h, GD + 4 * h)
V("v_cvt_pk_bf16_f32 v%d, v%d, v%d", GD, GD, GD + 4 * (NH - 1))
V("ds_write_b16 v%d, v%d offset:%d", vWV, GD, A_Z)
if LOC: V("ds_write_b16_d16_hi v%d, v%d offset:%d", vWV, GD, A_Z + 256)
hbar(afr(vAF, A_Z, 4 if LOC else 2))
if LOC:
    gemv1(WA, 4)
    a("s_mov_b32 exec_hi, 0")
    V("global_store_dword v%d, v%d, s[%d:%d]", vP6, ACC, sB5, sB5 + 1)
    V("global_store_dword v%d, v%d, s[%d:%d] sc1", vP6, ACC, sWS, sWS + 1)
    a("s_mov_b64 exec, -1")
else:
    gemv2(WA); sel2(sHI)
    V("global_store_dword v%d, v%d, s[%d:%d] sc1", vP6, GD, sWS, sWS + 1)
stamp(12)
a.label("L_fin")
if STAMPS:
    for i in range(4): a("s_sleep 127")
    a("s_waitcnt lgkmcnt(0)")
    V("v_mov_b32 v%d, 0", TMP); a("s_mov_b64 exec, 1")
    for i in range(NST):
        V("v_mov_b32 v%d, s%d", TMP + 2, sSTMP + 2 * i); V("v_mov_b32 v%d, s%d", TMP + 3, sSTMP + 2 * i + 1)
        V("global_store_dwordx2 v%d, v[%d:%d], s[%d:%d] offset:%d", TMP, TMP + 2, TMP + 3, sSTB, sSTB + 1, i * 8)
a.label("L_end")
a("s_endpgm")
a.l = a.l + cold + ["L_codeend:"]
a.l = hazard.fix(a.l)
open(OUT, "w").write(wrap(a.text(), 256, 768, LDS, NV))
print(OUT, "LDS", LDS, "ASTR", ASTR, "lines", len(a.l))
```

```python
import sys, math, struct, copy
from asmlib import *
import hazard
args = sys.argv[1:]
OUT = [x for x in args if x.endswith(".s")][0]
P = dict(stamps=0, light=0, amp=-1, ampb=0, nt=1, pf=1, prio=2, cprio=3, lsleep=1, rsleep=0,
         ma=0, rb=128, g1=3, g2=2, g3=0, g4=3, g5=0,
         wm=5, wk=6, wv=8, wq=6, wo=6, wf=6, wf2=7, f1pre=6, f2pre=0, kb=0, wbl=3,
         loc6=1, rot=1, rmul=3, rmx=1, vpos=2, vt=0, lh5=0, m5=0)
for x in args:
    if "=" in x:
        k, v = x.split("="); assert k in P, k; P[k] = int(v)
STAMPS = P["stamps"]; NT = " nt" if P["nt"] else ""; AMP = P["amp"]; LOC = P["loc6"]; MA = P["ma"]; VT = P["vt"]; LH5 = P["lh5"]
NST = 16; TAGM = 0xfff
O_S1 = 0x1000; O_S2 = O_S1 + 0x40000; O_S3 = O_S2 + 0x40000; O_S4 = O_S3 + 0x80000; O_SM = O_S4 + 0x20000
O_S5U = O_SM + 0x40000; O_S5V = O_S5U + 0x38000; O_S5T = O_S5V + 0x38000; O_S6 = O_S5T + 0x38000; O_S6L = O_S6 + 0x38000; O_S5S = O_S6L + 0x38000; O_H5 = O_S5S + 0x4000
SL0, SL1, SLA = 0, 65536, 131072
LS = 147456
F_LAND = 0; F_BAR = 16
B_P1A, B_C2, B_MF = range(3)
A_ST1 = 128; A_ST2 = A_ST1 + 256; A_MX = A_ST2 + 512; A_LS = A_MX + 256
ASTR = 640
A_C1 = A_LS + 8 * 272; A_C2 = A_C1 + 2 * ASTR; A_X = A_C2 + 2 * ASTR; A_Y = A_X + 2 * ASTR; A_Z = A_C2
A_Q = A_X + 6 * ASTR; PSTR = 544; A_P = A_C1
A_P = A_Q + 8 * 288
LDS = LS + A_P + 8 * PSTR
if LDS > 163840:
    ASTR = 576
    A_C1 = A_LS + 8 * 272; A_C2 = A_C1 + 2 * ASTR; A_X = A_C2 + 2 * ASTR; A_Y = A_X + 2 * ASTR; A_Z = A_C2
    A_Q = A_X + 6 * ASTR; A_P = A_Q + 8 * 288; LDS = LS + A_P + 8 * PSTR
assert LDS <= 163840, LDS
RB = P["rb"]; assert RB % 64 == 0 and 0 < RB < 256
NM = (16 - RB // 16, RB // 16); NP6 = 14 if LOC else 28
EA_M = 4 + NM[0] if MA else 36 + NM[0]; EA_K = 20 + (NM[0] if MA else 0); EB_M = 20 + NM[1]
SLM_A = SL1 if MA else SL0
sJ = 3
sX, sK, sV, sWQ, sWO, sW1, sW2, sC, sWM, sOUT, sDBG, sWS = 4, 6, 8, 10, 12, 16, 18, 20, 22, 24, 26, 28
sx, sy, sz, sT, sTM, sTO, sTW = 30, 31, 14, 32, 33, 34, 35
sONES = 36; sHI = 54
sB, sB2, sB3, sB4, sB5, sB6 = 38, 40, 56, 58, 98, 100
st0, st1, st2, st3 = 42, 43, 44, 45
sHP, sCB, sRB, sC6 = 46, 47, 51, 15
sMOD, sMCB, sMRB, sMR0 = 94, 95, 96, 97
sSTB = 48; sEP = 50; sMSK = 52; sSTMP = 60; sLD = 93; sALT = 92
vL, vG, vC, vT, vTW, vJQ, vPUB, vZ, vIX, vFL, vTR5, vTR2, vAF, vX, vXD = range(1, 16)
vWV = 0
vA = 16; WA = 48; WB = 80; GD = 112; GL = 128; ACC = 136; TMP = 144
vGA, vCB, vXS = 164, 165, 166
NV = 168
a = Asm(); cold = []
class Cold:
    def __enter__(self): self.sv = a.l; a.l = []
    def __exit__(self, *x): cold.extend(a.l); a.l = self.sv
def V(fmt, *x): a(fmt % x)
def stamp(i):
    if STAMPS or (AMP >= 0 and i in (0, AMP)) or (P["light"] and i == 0): V("s_memrealtime s[%d:%d]", sSTMP + 2 * i, sSTMP + 2 * i + 1)
def base(dst, src, off=None, imm=0):
    if off is not None: V("s_add_u32 s%d, s%d, s%d", dst, src, off)
    else: V("s_add_u32 s%d, s%d, %d", dst, src, imm)
    V("s_addc_u32 s%d, s%d, 0", dst + 1, src + 1)
def lin(dst, terms, imm=0):
    first = True
    for coef, r in terms:
        t = dst if first else st3
        if coef & (coef - 1) == 0: V("s_lshl_b32 s%d, s%d, %d", t, r, coef.bit_length() - 1)
        else: V("s_mul_i32 s%d, s%d, %d", t, r, coef)
        if not first: V("s_add_u32 s%d, s%d, s%d", dst, dst, t)
        first = False
    if imm: V("s_add_u32 s%d, s%d, %d", dst, dst, imm)
def wsb(dst, terms, off): lin(st0, terms, off); base(dst, sWS, st0)
def R(r, n=4): return list(range(r, r + n))
def dpp(op, d, s0, s1, ctl, extra="row_mask:0xf bank_mask:0xf"): a("%s_dpp v%d, v%d, v%d %s %s" % (op, d, s0, s1, ctl, extra))
def allred(rs, steps, op="v_add_f32"):
    for ctl in ("quad_perm:[1,0,3,2]", "quad_perm:[2,3,0,1]", "row_half_mirror", "row_mirror")[:steps]:
        for r in rs: dpp(op, r, r, r, ctl)
def swapred(ds, ror=True):
    for d in ds: V("v_permlane32_swap_b32 v%d, v%d", d, d + 2); V("v_permlane32_swap_b32 v%d, v%d", d + 1, d + 3)
    for d in ds: V("v_add_f32 v%d, v%d, v%d", d, d, d + 2); V("v_add_f32 v%d, v%d, v%d", d + 1, d + 1, d + 3)
    for d in ds: V("v_permlane16_swap_b32 v%d, v%d", d, d + 1)
    for d in ds: V("v_add_f32 v%d, v%d, v%d", d, d, d + 1)
    if ror:
        for d in ds: dpp("v_add_f32", d, d, d, "row_ror:8")
def rowred(r, t, op):
    V("v_mov_b32 v%d, v%d", t, r); V("v_permlane16_swap_b32 v%d, v%d", r, t); V("%s v%d, v%d, v%d", op, r, r, t)
    V("v_mov_b32 v%d, v%d", t, r); V("v_permlane32_swap_b32 v%d, v%d", r, t); V("%s v%d, v%d, v%d", op, r, r, t)
def add4(d, s):
    for h in (0, 2): V("v_pk_add_f32 v[%d:%d], v[%d:%d], v[%d:%d]", d + h, d + h + 1, d + h, d + h + 1, s + h, s + h + 1)
def check(tag_regs, word_regs=(), grp=False):
    V("v_xor_b32 v%d, v%d, v%d", TMP, tag_regs[0], vT)
    for r in tag_regs[1:]: V("v_bitop3_b32 v%d, v%d, v%d, v%d bitop3:0xbe", TMP, r, vT, TMP)
    V("v_and_b32 v%d, s%d, v%d", TMP, sTM, TMP)
    for r in word_regs: V("v_bitop3_b32 v%d, v%d, v%d, v%d bitop3:0xbe", TMP, r, vTW, TMP)
    if grp: allred([TMP], 3, "v_or_b32")
    V("v_cmp_ne_u32 vcc, 0, v%d", TMP)
def gl(d, va, sb, off=0): return "global_load_dwordx4 v[%d:%d], v%d, s[%d:%d] offset:%d sc1" % (d, d + 3, va, sb, sb + 1, off)
def emit(xs):
    for x in xs: a(x)
def gfinish(loads, tag_regs, word_regs=(), cnt=None, grp=False, nyoung=0, alt=None):
    ok, lp = a.lab("Ok"), a.lab("Rp")
    a("s_waitcnt vmcnt(%d)" % nyoung)
    check(tag_regs, word_regs)
    a("s_cbranch_vccnz %s_e" % lp)
    a.label(ok)
    with Cold():
        a.label(lp + "_e")
        if grp: a("s_nop 1"); allred([TMP], 3, "v_or_b32"); V("v_cmp_ne_u32 vcc, 0, v%d", TMP)
        a.label(lp)
        a("s_mov_b64 exec, vcc")
        if P["rsleep"]: a("s_sleep %d" % P["rsleep"])
        if STAMPS and cnt is not None: V("s_add_u32 s%d, s%d, %d", sSTMP + 30, sSTMP + 30, cnt)
        if alt is not None:
            sb, delta = alt
            V("s_sub_u32 s%d, s%d, 1", sALT, sALT); V("s_cmp_eq_u32 s%d, 0", sALT); V("s_cselect_b32 s%d, %d, 0", st3, delta)
            V("s_sub_u32 s%d, s%d, s%d", sb, sb, st3); V("s_subb_u32 s%d, s%d, 0", sb + 1, sb + 1)
        emit(loads)
        a("s_waitcnt vmcnt(0)")
        check(tag_regs, word_regs, grp)
        a("s_cbranch_vccz %s_dn" % ok)
        V("s_sub_u32 s%d, s%d, 1", sTO, sTO); a("s_cbranch_scc0 %s" % lp)
        V("s_mov_b32 s%d, 0", sTO)
        a.label(ok + "_dn"); a("s_mov_b64 exec, -1"); a("s_branch %s" % ok)
def mfma(acc, A, B, first):
    a("v_mfma_f32_16x16x32_bf16 v[%d:%d], v[%d:%d], v[%d:%d], %s" % (acc, acc + 3, A, A + 3, B, B + 3, "0" if first else "v[%d:%d]" % (acc, acc + 3)))
def smf(acc, A, B): V("v_smfmac_f32_16x16x64_bf16 v[%d:%d], v[%d:%d], v[%d:%d], v%d", acc, acc + 3, A, A + 3, B, B + 7, vIX)
def zacc(n=8):
    for i in range(0, n, 2): V("v_mov_b64 v[%d:%d], 0", ACC + i, ACC + i + 1)
def pack(r, d=None): V("v_cvt_pk_bf16_f32 v%d, v%d, v%d", r if d is None else d, r, r)
def tag(rs):
    for r in rs: V("v_bfi_b32 v%d, s%d, v%d, v%d", r, sTM, vT, r)
def silu(r, t):
    V("v_mul_f32 v%d, 0xbfb8aa3b, v%d", t, r); V("v_exp_f32 v%d, v%d", t, t); V("v_add_f32 v%d, 1.0, v%d", t, t)
    V("v_rcp_f32 v%d, v%d", t, t); V("v_mul_f32 v%d, v%d, v%d", r, r, t)
def lnstats(s, q):
    V("v_mul_f32 v%d, 0x3a800000, v%d", s, s); V("v_mul_f32 v%d, 0x3a800000, v%d", q, q)
    V("v_fma_f32 v%d, -v%d, v%d, v%d", q, s, s, q); V("v_max_f32 v%d, 0, v%d", q, q)
    V("v_add_f32 v%d, 0x3727c5ac, v%d", q, q); V("v_rsq_f32 v%d, v%d", q, q)
def arrive(k): V("v_mov_b32 v%d, 1", TMP + 2); V("ds_write_b8 v%d, v%d offset:%d", vFL, TMP + 2, F_BAR + 8 * k)
def waitloop(body, sleep):
    l, ok = a.lab("Sp"), a.lab("So")
    a.label(l); body()
    a("s_cbranch_vccnz %s_r" % l)
    a.label(ok)
    with Cold():
        a.label(l + "_r")
        if sleep: a("s_sleep %d" % sleep)
        V("s_sub_u32 s%d, s%d, 1", sTO, sTO); a("s_cbranch_scc0 %s" % l)
        V("s_mov_b32 s%d, 0", sTO); a("s_branch %s" % ok)
def spin(k, sleep=0):
    def body():
        V("ds_read_b64 v[%d:%d], v%d offset:%d", TMP + 2, TMP + 3, vZ, F_BAR + 8 * k); a("s_waitcnt lgkmcnt(0)")
        V("v_cmp_ne_u64 vcc, s[%d:%d], v[%d:%d]", sONES, sONES + 1, TMP + 2, TMP + 3)
    waitloop(body, sleep)
def landed(thr):
    def body():
        V("ds_read_b128 v[%d:%d], v%d offset:%d", TMP + 4, TMP + 7, vZ, F_LAND); a("s_waitcnt lgkmcnt(0)")
        V("v_min_u32 v%d, v%d, v%d", TMP + 4, TMP + 4, TMP + 5); V("v_min3_u32 v%d, v%d, v%d, v%d", TMP + 4, TMP + 4, TMP + 6, TMP + 7)
        V("v_cmp_gt_u32 vcc, %d, v%d", thr, TMP + 4)
    waitloop(body, P["lsleep"])
def hbar(reads=()):
    a("s_waitcnt lgkmcnt(0)"); a("s_barrier"); emit(reads)
def trl(W, RS, steps, r, o=0):
    return ["ds_read_b64_tr_b16 v[%d:%d], v%d offset:%d" % (W + 4 * s + 2 * hh, W + 4 * s + 2 * hh + 1, r, s * 32 * RS + hh * 8 * RS + o) for s in steps for hh in range(2)]
def tr2(W, r0, o0, r1, o1):
    for d in range(2): emit(trl(W, 512, (2 * d, 2 * d + 1), r0, o0)); emit(trl(W + 16, 512, (2 * d, 2 * d + 1), r1, o1))
def afr(va, off, n, d=vA, st=128): return ["ds_read_b128 v[%d:%d], v%d offset:%d" % (d + 4 * s, d + 4 * s + 3, va, off + s * st) for s in range(n)]
def swapbits(d, s, t, lo, hi):
    V("v_lshrrev_b32 v%d, %d, v%d", t, hi - lo, s); V("v_xor_b32 v%d, v%d, v%d", t, t, s); V("v_and_b32 v%d, %d, v%d", t, 1 << lo, t)
    V("v_mul_u32_u24 v%d, %d, v%d", t, 1 + (1 << (hi - lo)), t); V("v_xor_b32 v%d, v%d, v%d", d, s, t)
def pub32(r, va, sb, fl="sc1"):
    a("s_mov_b32 exec_hi, 0"); V("global_store_dword v%d, v%d, s[%d:%d] %s", va, r, sb, sb + 1, fl); a("s_mov_b64 exec, -1")
def gemv1(W, nd, nafter=0):
    for d in range(nd):
        a("s_waitcnt lgkmcnt(%d)" % (nafter(d) if callable(nafter) else nd - 1 - d)); smf(ACC, vA + 4 * d, W + 8 * d)
    V("v_add_f32 v%d, v%d, v%d", ACC, ACC, ACC + 1); tag([ACC])
def gemv2(W):
    for d in range(2):
        a("s_waitcnt lgkmcnt(%d)" % (1 - d))
        for h in range(2): smf(ACC + 4 * h, vA + 4 * d, W + 16 * h + 8 * d)
def mtile(grp):
    V("s_and_b32 s%d, s%d, 3", sMOD, sx); V("s_lshr_b32 s%d, s%d, 2", sMRB, sx)
    if grp == 0:
        V("s_and_b32 s%d, s%d, 7", sMCB, sz); V("s_lshr_b32 s%d, s%d, 3", st0, sz)
    else:
        V("s_lshr_b32 s%d, s%d, 1", sMCB, sz); V("s_xor_b32 s%d, s%d, 1", sMCB, sMCB); V("s_and_b32 s%d, s%d, 1", st0, sz)
    V("s_lshl_b32 s%d, s%d, 1", st0, st0); V("s_add_u32 s%d, s%d, s%d", sMRB, sMRB, st0)
    V("s_lshl_b32 s%d, s%d, 8", sMR0, sMRB)
    if grp == 0: V("s_add_u32 s%d, s%d, %d", sMR0, sMR0, RB); V("s_add_u32 s%d, s%d, 4", sMRB, sMRB)
def p6map():
    V("s_min_u32 s%d, s%d, 13", sRB, sz)
    if LOC: V("s_mov_b32 s%d, s%d", sC6, sx)
    else:
        V("s_mul_i32 s%d, s%d, 14", st0, sx); V("s_add_u32 s%d, s%d, s%d", sRB, sRB, st0); V("s_and_b32 s%d, s%d, 3", sC6, sRB); V("s_lshr_b32 s%d, s%d, 2", sRB, sRB)

a("s_load_dwordx8 s[20:27], s[0:1], 64")
a("s_load_dwordx16 s[4:19], s[0:1], 0")
a("s_load_dwordx2 s[28:29], s[0:1], 96")
a("s_cmp_ge_u32 s2, 256"); a("s_cbranch_scc1 L_end")
stamp(0)
a("v_lshrrev_b32 v2, 6, v0"); a("v_and_b32 v1, 63, v0"); V("v_readfirstlane_b32 s%d, v2", sLD)
V("v_lshrrev_b32 v%d, 4, v%d", vG, vL); V("v_and_b32 v%d, 15, v%d", vC, vL)
V("s_and_b32 s%d, s2, 7", sx); V("s_lshr_b32 s%d, s2, 3", sy)
V("s_mov_b32 s%d, 400000", sTO); V("v_mov_b32 v%d, %d", vZ, LS)
V("s_mov_b32 s%d, 0x01010101", sONES); V("s_mov_b32 s%d, 0x01010101", sONES + 1)
V("v_lshrrev_b32 v%d, 5, v%d", TMP, vL)
if STAMPS:
    for i in range(1, NST): V("s_mov_b64 s[%d:%d], 0", sSTMP + 2 * i, sSTMP + 2 * i + 1)
if P["pf"]:
    V("s_and_b32 s%d, s%d, 14", st0, sLD); V("s_cmp_lg_u32 s%d, 4", st0); a("s_cbranch_scc1 L_nopf")
    V("s_getpc_b64 s[%d:%d]", sB, sB + 1); a.label("L_pc")
    V("v_and_b32 v%d, 127, v0", TMP + 1); V("v_lshlrev_b32 v%d, 7, v%d", TMP + 1, TMP + 1); V("v_min_u32 v%d, L_codeend-L_pc-4, v%d", TMP + 1, TMP + 1)
    V("global_load_dword v%d, v%d, s[%d:%d]", ACC, TMP + 1, sB, sB + 1)
    a.label("L_nopf")
V("s_cmp_ge_u32 s%d, 4", sLD); a("s_cbranch_scc1 L_comp")
vS5, vS2, vO, vCN, vLA = 16, 17, 18, 19, 20
sIDX, sCNT, sISS, sPUB, sM0, sROT = 46, 47, 52, 53, 54, 55
if P["prio"]: a("s_setprio %d" % P["prio"])
V("s_lshl_b32 s%d, s%d, 2", st0, sLD); V("v_lshl_add_u32 v%d, v%d, 1, s%d", TMP + 1, TMP, st0); V("v_xor_b32 v%d, v%d, v%d", vS5, vC, TMP + 1); V("v_lshlrev_b32 v%d, 4, v%d", vS5, vS5)
V("v_add_u32 v%d, s%d, v%d", vLA, st0, vZ)
V("v_and_b32 v%d, 1, v%d", TMP + 8, vG)
V("v_mul_u32_u24 v%d, 12288, v%d", vO, TMP); V("v_lshl_add_u32 v%d, v%d, 11, v%d", vO, TMP + 8, vO); V("v_add_u32 v%d, v%d, v%d", vO, vO, vS5)
V("v_lshl_add_u32 v%d, v%d, 8, v%d", vS5, TMP + 8, vS5)
V("s_and_b32 s%d, s%d, 1", st0, sLD); V("s_lshl_b32 s%d, s%d, 3", st0, st0); V("v_lshl_add_u32 v%d, v%d, 1, s%d", TMP + 1, vG, st0); V("v_xor_b32 v%d, v%d, v%d", vS2, vC, TMP + 1); V("v_lshlrev_b32 v%d, 4, v%d", vS2, vS2)
lin(st2, [(32 * 12288, sy), (2 * 12288, sLD), (256, sx)])
V("s_lshl_b32 s%d, s%d, 10", sJ, sLD)
V("s_mov_b32 s%d, 4", sISS); V("s_mov_b32 s%d, 0", sPUB)
if P["rot"]: lin(sROT, [(P["rmul"], sy), (P["rmx"], sx)])
else: V("s_mov_b32 s%d, -1", sROT)
a("s_waitcnt lgkmcnt(0)")
base(sB, sWM, st2)
stamp(8)
for i in range(4):
    V("s_add_u32 m0, s%d, %d", sJ, SLA + i * 4096)
    V("global_load_lds_dwordx4 v%d, s[%d:%d]%s", vO, sB, sB + 1, NT)
    if i != 3: base(sB, sB, None, 8 * 12288)
V("s_load_dword s%d, s[%d:%d], 0", sEP, sWS, sWS + 1)
V("s_and_b32 s%d, s%d, 15", sz, sy)
if STAMPS: wsb(sSTB, [(NST * 8 * 12, 2), (NST * 8, sLD)], 128 << 20)
def off5(stride): V("v_mul_u32_u24 v%d, %d, v%d", vO, stride, TMP); V("v_add_u32 v%d, v%d, v%d", vO, vO, vS5)
def off2(stride): V("v_mul_u32_u24 v%d, %d, v%d", vO, stride, vG); V("v_add_u32 v%d, v%d, v%d", vO, vO, vS2)
def begin(ptr, slot, rot=True):
    base(sB2, ptr, st0); V("s_add_u32 s%d, s%d, %d", sM0, sJ, slot)
    if rot: V("s_mov_b32 s%d, s%d", sIDX, sROT)
    else: V("s_mov_b32 s%d, -1", sIDX)
def run(n, step, W, pub=False):
    if n <= 0: return
    l = a.lab("Ld")
    V("s_mov_b32 s%d, %d", sCNT, n - 1)
    a.label(l)
    V("s_add_u32 s%d, s%d, 1", sIDX, sIDX); V("s_and_b32 s%d, s%d, 15", sIDX, sIDX); V("s_mul_i32 s%d, s%d, %d", st3, sIDX, step)
    base(sB, sB2, st3)
    V("s_lshl_b32 s%d, s%d, 12", st3, sIDX); V("s_add_u32 m0, s%d, s%d", st3, sM0)
    a("s_waitcnt vmcnt(%d)" % (W - 1))
    V("global_load_lds_dwordx4 v%d, s[%d:%d]%s", vO, sB, sB + 1, NT)
    if pub:
        V("s_sub_i32 s%d, s%d, %d", st3, sISS, W - 1); V("s_max_i32 s%d, s%d, s%d", sPUB, sPUB, st3); V("s_add_u32 s%d, s%d, 1", sISS, sISS)
        V("v_mov_b32 v%d, s%d", vCN, sPUB); V("ds_write_b32 v%d, v%d offset:%d", vLA, vCN, F_LAND)
    V("s_sub_u32 s%d, s%d, 1", sCNT, sCNT); a("s_cbranch_scc0 %s" % l)
    if not pub: V("s_add_u32 s%d, s%d, %d", sISS, sISS, n)
def tail(n, st=None):
    a("s_waitcnt vmcnt(%d)" % n); a("s_barrier")
    if n: a("s_waitcnt vmcnt(0)")
    if st is not None: stamp(st)
    if n: a("s_barrier")
def mbegin(grp, slot):
    mtile(grp); off2(12288); lin(st0, [(12288, sMR0), (4 * 12288, sLD), (2048, sMOD), (256, sMCB)], 4096); begin(sWM, slot, False)
a("s_cmp_ge_u32 s2, 128"); a("s_cbranch_scc1 L_ldB")
def kbegin():
    V("s_lshl_b32 s%d, s%d, 2", st0, sLD); V("v_add_u32 v%d, s%d, v%d", TMP + 1, st0, vG); V("v_xor_b32 v%d, v%d, v%d", vO, vC, TMP + 1); V("v_lshlrev_b32 v%d, 4, v%d", vO, vO); V("v_lshl_add_u32 v%d, v%d, 8, v%d", vO, vG, vO)
    lin(st0, [(1 << 23, sx), (1 << 16, sz), (1024, sLD)], 28672 * 256); begin(sK, SL0)
if MA:
    mbegin(0, SLM_A); a("s_barrier"); run(NM[0], 16 * 12288, P["wm"], True); kbegin()
else:
    kbegin(); a("s_barrier")
run(16, 4096, P["wk"], True); stamp(1)
off2(256); begin(sV, SL1)
if MA: spin(B_MF, sleep=1)
run(16, 4096, P["wv"], True); stamp(2)
def f1begin(): off5(7168); V("s_min_u32 s%d, s%d, 13", st1, sz); lin(st0, [(128 * 7168, sx), (2 * 7168, sLD), (512, st1)]); begin(sW1, SL0 if MA else SL1)
if MA: f1begin()
else: mbegin(0, SLM_A)
a("s_waitcnt vmcnt(%d)" % P["g2"]); a("s_barrier"); a("s_waitcnt vmcnt(0)"); stamp(3)
a("s_barrier")
pre = min(P["f1pre"], 16 if MA else NM[0], P["wf"])
if MA:
    V("s_cmp_ge_u32 s%d, 14", sz); a("s_cbranch_scc1 L_bar3")
    run(pre, 8 * 7168, 16)
    for i in range(3): a("s_barrier")
    stamp(4)
    run(16 - pre, 8 * 7168, P["wf"])
else:
    run(pre, 16 * 12288, 16)
    for i in range(3): a("s_barrier")
    stamp(4)
    run(NM[0] - pre, 16 * 12288, P["wf"])
    V("s_cmp_ge_u32 s%d, 14", sz); a("s_cbranch_scc1 L_mdone")
    f1begin(); run(16, 8 * 7168, P["wf"], True)
a("s_waitcnt lgkmcnt(0)")
V("s_add_u32 s%d, s%d, 0x9e5", sT, sEP); V("s_and_b32 s%d, s%d, 0x%x", sT, sT, TAGM); V("s_mul_i32 s%d, s%d, 0x00100101", sTW, sT); V("s_xor_b32 s%d, s%d, 0x5a5a0000", sTW, sTW)
wsb(sB, [(1024, sz), (128, sx)], O_S5S)
V("v_lshl_add_u32 v%d, v%d, 3, v%d", vO, vL, vZ); V("v_lshlrev_b32 v%d, 4, v%d", vCN, TMP)
V("v_mov_b32 v%d, s%d", GD + 5, sTW); V("v_mov_b32 v%d, s%d", GD + 7, sTW)
if LH5: wsb(sB3, [(1024, sz), (128, sx)], O_H5); V("v_mov_b32 v%d, 0", TMP + 1)
tail(P["g4"], 5)
if VT: a("s_barrier")
a("s_barrier")
if LH5:
    V("s_cmp_lg_u32 s%d, 1", sLD); a("s_cbranch_scc1 L_nh5")
    a("s_mov_b64 exec, 1"); V("global_store_dword v%d, v%d, s[%d:%d]", TMP + 1, GD + 5, sB3, sB3 + 1); a("s_mov_b64 exec, -1")
    a.label("L_nh5")
V("s_cmp_lg_u32 s%d, 0", sLD); a("s_cbranch_scc1 L_fin")
V("ds_read_b64 v[%d:%d], v%d offset:%d", GD, GD + 1, vO, A_ST2)
a("s_waitcnt lgkmcnt(0)")
allred([GD, GD + 1], 4)
V("v_mov_b32 v%d, v%d", GD + 2, GD); V("v_mov_b32 v%d, v%d", GD + 3, GD + 1)
V("v_permlane16_swap_b32 v%d, v%d", GD, GD + 2); V("v_permlane16_swap_b32 v%d, v%d", GD + 1, GD + 3)
V("v_add_f32 v%d, v%d, v%d", GD + 4, GD, GD + 2); V("v_add_f32 v%d, v%d, v%d", GD + 6, GD + 1, GD + 3)
a("s_mov_b32 exec_lo, 1"); a("s_mov_b32 exec_hi, 1")
V("global_store_dwordx4 v%d, v[%d:%d], s[%d:%d] sc1", vCN, GD + 4, GD + 7, sB, sB + 1)
a("s_mov_b64 exec, -1")
stamp(6)
a("s_branch L_fin")
if MA:
    a.label("L_bar3"); a("s_barrier"); a("s_barrier"); a("s_barrier"); a("s_branch L_fin")
else:
    a.label("L_mdone"); a("s_waitcnt vmcnt(0)"); V("v_mov_b32 v%d, 99", vCN); V("ds_write_b32 v%d, v%d offset:%d", vLA, vCN, F_LAND); a("s_branch L_fin")
a.label("L_ldB")
off5(8192); lin(st0, [(128 * 8192, sx), (2 * 8192, sLD), (512, sz)]); begin(sWQ, SL0)
a("s_barrier")
run(16, 8 * 8192, P["wq"], True); stamp(1)
mbegin(1, SL1)
tail(P["g1"], 7); a("s_barrier"); a("s_barrier")
kb = min(P["kb"], NM[1])
run(kb, 16 * 12288, P["wbl"]); run(NM[1] - kb, 16 * 12288, P["wo"]); stamp(2)
off2(2048); V("s_and_b32 s%d, s%d, 1", st1, sz); V("s_lshr_b32 s%d, s%d, 1", st2, sz)
lin(st0, [(512 * 2048, sx), (256 * 2048, st1), (4 * 2048, sLD), (256, st2)]); begin(sWO, SL0)
run(16, 16 * 2048, P["wo"], True); stamp(3)
p6map()
if LOC: lin(st0, [(256 * 2048, sRB), (4 * 2048, sLD), (256, sC6)]); F2S = 16 * 2048
else: off5(2048); lin(st0, [(128 * 2048, sRB), (2 * 2048, sLD), (512, sC6)]); F2S = 8 * 2048
begin(sW2, SL1)
if P["f2pre"]:
    V("s_cmp_ge_u32 s%d, 14", sz); a("s_cbranch_scc1 L_nf2p")
    spin(B_MF, sleep=1); run(P["f2pre"], F2S, P["wo"])
    a.label("L_nf2p")
tail(P["g3"], 4); a("s_barrier"); a("s_barrier"); stamp(5)
V("s_cmp_ge_u32 s%d, 14", sz); a("s_cbranch_scc1 L_fin")
run(16 - P["f2pre"], F2S, P["wf2"])
if LH5:
    a("s_waitcnt lgkmcnt(0)")
    V("s_add_u32 s%d, s%d, 0x9e5", sT, sEP); V("s_and_b32 s%d, s%d, 0x%x", sT, sT, TAGM); V("s_mul_i32 s%d, s%d, 0x00100101", sTW, sT); V("s_xor_b32 s%d, s%d, 0x5a5a0000", sTW, sTW)
    wsb(sB3, [(1024, sz), (128, sx)], O_H5); V("v_mov_b32 v%d, 0", TMP + 1); V("s_mov_b32 s%d, 40", sCNT)
tail(P["g5"], 6)
if LH5:
    V("s_cmp_lg_u32 s%d, 0", sLD); a("s_cbranch_scc1 L_h5d")
    a("s_mov_b64 exec, 1")
    a.label("L_h5")
    V("global_load_dword v%d, v%d, s[%d:%d] sc1", vCN, TMP + 1, sB3, sB3 + 1); a("s_waitcnt vmcnt(0)")
    V("v_cmp_ne_u32 vcc, s%d, v%d", sTW, vCN); a("s_cbranch_vccz L_h5o")
    V("s_sub_u32 s%d, s%d, 1", sCNT, sCNT); a("s_cbranch_scc0 L_h5")
    a.label("L_h5o"); a("s_mov_b64 exec, -1")
    if P["m5"]: a("s_sleep %d" % P["m5"])
    a.label("L_h5d")
    a("s_barrier")
a("s_barrier")
a("s_branch L_fin")
a.label("L_comp")
V("s_sub_u32 s%d, s%d, 4", sJ, sLD)
if P["cprio"]: a("s_setprio %d" % P["cprio"])
V("v_lshlrev_b32 v%d, 11, v%d", TMP + 1, TMP); V("v_and_b32 v%d, 31, v%d", TMP + 2, vL)
V("v_lshl_add_u32 v%d, v%d, 1, v%d", TMP + 3, TMP + 2, TMP + 1)
V("s_lshl_b32 s%d, s%d, 6", st0, sy); V("v_add_u32 v%d, s%d, v%d", TMP + 4, st0, TMP + 3)
V("v_lshl_add_u32 v%d, v%d, 3, v%d", TMP + 5, TMP + 2, TMP + 1); V("s_lshl_b32 s%d, s%d, 8", st0, sJ); V("v_add_u32 v%d, s%d, v%d", TMP + 5, st0, TMP + 5)
lin(st1, [(256, sx), (32, sJ)])
V("v_and_b32 v%d, 1, v%d", TMP + 6, vG); V("v_lshlrev_b32 v%d, 11, v%d", TMP + 6, TMP + 6); V("v_lshl_add_u32 v%d, v%d, 1, v%d", TMP + 6, vC, TMP + 6); V("v_add_u32 v%d, s%d, v%d", TMP + 6, st1, TMP + 6)
V("v_mov_b32 v%d, 0", TMP + 8); V("v_lshl_add_u32 v%d, v%d, 2, v%d", TMP + 9, TMP + 2, vZ)
V("ds_write_b32 v%d, v%d", TMP + 9, TMP + 8)
a("s_waitcnt lgkmcnt(0)")
V("global_load_dwordx2 v[%d:%d], v%d, s[%d:%d]", vXS, vXS + 1, TMP + 5, sX, sX + 1)
V("global_load_ushort v%d, v%d, s[%d:%d]", GL, TMP + 4, sC, sC + 1)
V("global_load_ushort v%d, v%d, s[%d:%d]", vXD, TMP + 6, sX, sX + 1)
V("s_load_dword s%d, s[%d:%d], 0", sEP, sWS, sWS + 1)
a("s_barrier")
V("s_and_b32 s%d, s%d, 15", sz, sy)
V("s_mov_b32 s%d, 0x%x", sTM, TAGM); V("s_mov_b32 s%d, 0", sHI); V("s_mov_b32 s%d, -1", sHI + 1)
V("v_add_u32 v%d, s%d, v%d", vFL, sJ, vZ)
V("s_lshl_b32 s%d, s%d, 7", st0, sJ); V("v_and_b32 v%d, 7, v%d", TMP + 4, vL); V("v_lshl_add_u32 v%d, v%d, 4, s%d", vJQ, TMP + 4, st0)
V("v_lshl_add_u32 v%d, v%d, 2, s%d", vPUB, TMP + 2, st0)
V("v_bfe_u32 v%d, v%d, 2, 3", TMP + 16, vL); V("v_lshl_add_u32 v%d, v%d, 4, v%d", TMP + 17, TMP, TMP + 16)
V("v_xor_b32 v%d, s%d, v%d", TMP + 4, sJ, TMP + 16); V("v_lshlrev_b32 v%d, 5, v%d", TMP + 4, TMP + 4); V("v_and_b32 v%d, 3, v%d", TMP + 5, vL); V("v_lshl_add_u32 v%d, v%d, 3, v%d", TMP + 4, TMP + 5, TMP + 4)
V("v_lshl_add_u32 v%d, v%d, 9, v%d", vTR5, TMP + 17, TMP + 4); V("v_lshl_add_u32 v%d, v%d, 8, v%d", vTR2, TMP + 17, TMP + 4)
vGH = TMP + 14
V("v_bfe_u32 v%d, v%d, 2, 1", TMP + 4, vL); V("v_mul_u32_u24 v%d, %d, v%d", TMP + 7, ASTR, TMP + 4); V("v_lshl_add_u32 v%d, v%d, 4, v%d", TMP + 4, vG, TMP + 7); V("v_add_u32 v%d, v%d, v%d", TMP + 13, TMP + 4, vZ)
V("v_and_b32 v%d, 1, v%d", TMP + 4, vL); V("v_mul_u32_u24 v%d, 0xaaaa, v%d", vIX, TMP + 4); V("v_add_u32 v%d, 0x4444, v%d", vIX, vIX)
V("v_lshl_add_u32 v%d, v%d, 4, v%d", vGH, TMP + 4, vZ); V("v_lshl_add_u32 v%d, v%d, 5, v%d", vGH, vG, vGH); V("v_add_u32 v%d, v%d, v%d", vAF, vGH, TMP + 7)
vW32 = TMP + 18
swapbits(TMP + 4, TMP + 2, TMP + 5, 2, 3); V("v_mul_u32_u24 v%d, %d, v%d", TMP + 5, ASTR, TMP); V("v_lshl_add_u32 v%d, v%d, 1, v%d", TMP + 4, TMP + 4, TMP + 5); V("v_add_u32 v%d, v%d, v%d", vW32, TMP + 4, vZ)
V("v_and_b32 v%d, 3, v%d", TMP + 4, vL); V("v_lshl_add_u32 v%d, v%d, 2, v%d", TMP + 4, TMP + 4, vG); V("s_lshl_b32 s%d, s%d, 4", st0, sJ); V("v_add_u32 v%d, s%d, v%d", TMP + 4, st0, TMP + 4)
swapbits(TMP + 4, TMP + 4, TMP + 5, 1, 3); V("v_lshl_add_u32 v%d, v%d, 1, v%d", TMP + 4, TMP + 4, TMP + 7); V("v_add_u32 v%d, v%d, v%d", vWV, TMP + 4, vZ)
V("v_and_b32 v%d, 1, v%d", TMP + 4, vG); V("v_lshlrev_b32 v%d, 7, v%d", TMP + 10, TMP); V("v_lshl_add_u32 v%d, v%d, 3, v%d", TMP + 10, TMP + 4, TMP + 10); V("v_add3_u32 v%d, v%d, v%d, s%d", TMP + 10, TMP + 10, vZ, st0)
V("v_lshlrev_b32 v%d, 7, v%d", TMP + 11, TMP + 4); V("v_lshl_add_u32 v%d, v%d, 3, v%d", TMP + 11, vC, TMP + 11); V("v_add_u32 v%d, v%d, v%d", TMP + 11, TMP + 11, vZ)
V("v_add_u32 v%d, %d, v%d", TMP + 12, SLA, vTR5)
wsb(sB, [(32768, sx), (1024, sy)], O_S1)
if STAMPS: wsb(sSTB, [(NST * 8 * 12, 2), (NST * 8, sLD)], 128 << 20)
V("s_mov_b32 s%d, 0x3f803f80", st0)
V("s_cmp_eq_u32 s%d, 0", sy); V("s_cselect_b32 s%d, 1.0, 0", st2)
a("s_waitcnt vmcnt(0)")
V("v_dot2_f32_bf16 v%d, v%d, s%d, 0", GD, vXS, st0); V("v_dot2_f32_bf16 v%d, v%d, v%d, 0", GD + 1, vXS, vXS)
V("v_dot2_f32_bf16 v%d, v%d, s%d, v%d", GD, vXS + 1, st0, GD); V("v_dot2_f32_bf16 v%d, v%d, v%d, v%d", GD + 1, vXS + 1, vXS + 1, GD + 1)
V("v_lshlrev_b32 v%d, 16, v%d", GL, GL)
V("v_mul_f32 v%d, 0xbfb8aa3b, v%d", GL + 2, GL); V("v_exp_f32 v%d, v%d", GL + 2, GL + 2)
allred([GD, GD + 1], 2)
V("v_add_f32 v%d, 1.0, v%d", GL + 2, GL + 2); V("v_rcp_f32 v%d, v%d", GL + 2, GL + 2)
for r in (GD, GD + 1): dpp("v_add_f32", r, r, r, "row_half_mirror")
V("v_mul_f32 v%d, v%d, v%d", GL, GL, GL + 2); pack(GL)
for r in (GD, GD + 1): dpp("v_add_f32", r, r, r, "row_mirror")
V("ds_write_b16 v%d, v%d offset:%d", vW32, GL, A_C1)
V("ds_write_b64 v%d, v[%d:%d] offset:%d", TMP + 10, GD, GD + 1, A_ST1)
arrive(B_P1A)
V("v_lshlrev_b32 v%d, 16, v%d", vXD, vXD)
a("s_waitcnt lgkmcnt(0)")
V("s_add_u32 s%d, s%d, 0x9e5", sT, sEP); V("s_and_b32 s%d, s%d, s%d", sT, sT, sTM); V("v_mov_b32 v%d, s%d", vT, sT)
V("s_mul_i32 s%d, s%d, 0x00100101", sTW, sT); V("s_xor_b32 s%d, s%d, 0x5a5a0000", sTW, sTW); V("v_mov_b32 v%d, s%d", vTW, sTW)
spin(B_P1A)
V("ds_read_b64 v[%d:%d], v%d offset:%d", GD, GD + 1, TMP + 11, A_ST1); emit(afr(TMP + 13, A_C1, 1))
a("s_waitcnt lgkmcnt(0)")
allred([GD, GD + 1], 4); lnstats(GD, GD + 1)
V("v_sub_f32 v%d, v%d, v%d", vXD, vXD, GD); V("v_mul_f32 v%d, v%d, v%d", vXD, vXD, GD + 1)
landed(4)
stamp(1)
emit(trl(WA, 512, (0,), TMP + 12, 0)); emit(trl(WA + 4, 512, (0,), TMP + 12, 256))
a("s_waitcnt lgkmcnt(0)")
mfma(ACC + 4, vA, WA + 4, True); mfma(ACC, vA, WA, True)
V("v_add_f32 v%d, s%d, v%d", ACC + 4, st2, ACC + 4); V("v_fmac_f32 v%d, v%d, v%d", ACC, vXD, ACC + 4); tag([ACC])
pub32(ACC, vPUB, sB)
stamp(2)
def late(grp):
    mtile(grp)
    V("v_and_b32 v%d, 4, v%d", TMP + 5, vL); V("v_lshlrev_b32 v%d, 9, v%d", TMP + 5, TMP + 5); V("v_and_b32 v%d, 3, v%d", TMP + 6, vL)
    V("v_lshl_add_u32 v%d, v%d, 3, v%d", TMP + 5, TMP + 6, TMP + 5); V("v_lshl_add_u32 v%d, v%d, 1, v%d", TMP + 19, vG, TMP + 5)
    lin(st0, [(2, sMR0), (32, sJ)]); V("v_add_u32 v%d, s%d, v%d", TMP + 6, st0, TMP + 19); V("v_min_u32 v%d, 4094, v%d", TMP + 7, TMP + 6)
    V("global_load_ushort v%d, v%d, s[%d:%d]", vGA, TMP + 7, sC, sC + 1)
    if NM[grp] > 8:
        V("v_add_u32 v%d, 256, v%d", TMP + 6, TMP + 6); V("v_min_u32 v%d, 4094, v%d", TMP + 6, TMP + 6)
        V("global_load_ushort v%d, v%d, s[%d:%d]", GL + 7, TMP + 6, sC, sC + 1)
    if grp == 0:
        lin(st0, [(256, sx), (32, sJ)]); V("v_add_u32 v%d, s%d, v%d", TMP + 19, st0, TMP + 19)
        V("global_load_ushort v%d, v%d, s[%d:%d]", vX, TMP + 19, sX, sX + 1)
def late_use(grp, ny=0):
    a("s_waitcnt vmcnt(%d)" % ny)
    V("v_lshlrev_b32 v%d, 16, v%d", vGA, vGA); silu(vGA, vCB); pack(vGA)
    V("ds_write_b16 v%d, v%d offset:%d", vWV, vGA, A_C2)
    if NM[grp] > 8:
        V("v_lshlrev_b32 v%d, 16, v%d", GL + 7, GL + 7); silu(GL + 7, vCB); pack(GL + 7)
        V("ds_write_b16 v%d, v%d offset:%d", vWV, GL + 7, A_C2 + 256)
    if grp == 0: V("v_lshlrev_b32 v%d, 16, v%d", vX, vX)
def p1b(grp, slot, thr, front):
    if front: arrive(B_C2); spin(B_C2, sleep=1)
    nd = NM[grp] // 4
    emit(afr(vAF, A_C2, nd)); zacc(4)
    V("v_add_u32 v%d, %d, v%d", TMP + 1, slot, vTR2)
    wsb(sB6, [(32768, sMCB), (8192, sMOD), (1024, sMRB)], O_SM)
    landed(thr)
    emit(trl(WA, 256, range(2 * nd), TMP + 1))
    arrive(B_MF)
    gemv1(WA, nd, lambda d: 4 * (nd - 1 - d) + 1)
    pub32(ACC, vPUB, sB6)
vG8 = TMP + 8
a("s_cmp_ge_u32 s2, 128"); a("s_cbranch_scc1 L_B")
late(0)
vL16, vQW, vQA, vMW, vPW, vPA, vVB, vLW, vLR, vMR, vS3, vH2, vSH = TMP + 8, TMP + 9, TMP + 10, TMP + 11, TMP + 12, TMP + 13, TMP + 15, TMP + 16, TMP + 17, TMP + 18, vXS, vXS + 1, vXD
vVA = TMP + 1
wsb(sB, [(32768, sx), (4096, sJ)], O_S2)
V("v_lshlrev_b32 v%d, 4, v%d", vL16, vL)
V("v_and_b32 v%d, 31, v%d", vQW, vL); V("v_lshlrev_b32 v%d, 3, v%d", vQW, vQW); V("v_lshrrev_b32 v%d, 5, v%d", TMP + 4, vL); V("v_lshl_add_u32 v%d, v%d, 2, v%d", vQW, TMP + 4, vQW)
V("s_mul_i32 s%d, s%d, 288", st0, sJ); V("v_add3_u32 v%d, v%d, v%d, s%d", vQW, vQW, vZ, st0)
V("v_lshlrev_b32 v%d, 5, v%d", vPW, TMP + 4); V("v_bfe_u32 v%d, v%d, 3, 2", TMP + 5, vL); V("v_lshl_add_u32 v%d, v%d, 2, v%d", vPW, TMP + 5, vPW)
V("v_and_b32 v%d, 7, v%d", TMP + 4, vL)
V("v_mul_u32_u24 v%d, %d, v%d", TMP + 5, PSTR, TMP + 4); V("s_lshl_b32 s%d, s%d, 6", st0, sJ); V("s_add_u32 s%d, s%d, %d", st0, st0, LS + A_P); V("v_add3_u32 v%d, v%d, v%d, s%d", vPW, vPW, TMP + 5, st0)
V("v_bfe_u32 v%d, v%d, 1, 3", TMP + 5, vL); V("v_mul_u32_u24 v%d, %d, v%d", vPA, PSTR, TMP + 5); V("v_add_u32 v%d, v%d, v%d", vPA, vPA, vGH)
V("v_mul_u32_u24 v%d, 288, v%d", vQA, TMP + 4); V("v_lshl_add_u32 v%d, v%d, 4, v%d", vQA, vG, vQA); V("v_add_u32 v%d, v%d, v%d", vQA, vQA, vZ)
V("v_lshl_add_u32 v%d, v%d, 5, v%d", vMR, TMP + 4, vZ); V("s_lshl_b32 s%d, s%d, 2", st0, sJ); V("v_add_u32 v%d, s%d, v%d", vMW, st0, vMR)
V("v_mul_u32_u24 v%d, 272, v%d", vLW, TMP + 4); V("v_lshrrev_b32 v%d, 3, v%d", TMP + 6, vL); V("v_lshl_add_u32 v%d, v%d, 2, v%d", vLW, TMP + 6, vLW)
V("s_lshl_b32 s%d, s%d, 5", st0, sJ); V("v_add3_u32 v%d, v%d, v%d, s%d", vLW, vLW, vZ, st0)
V("v_mul_u32_u24 v%d, 272, v%d", vLR, TMP + 6); V("v_lshl_add_u32 v%d, v%d, 5, v%d", vLR, TMP + 4, vLR); V("v_add_u32 v%d, v%d, v%d", vLR, vLR, vZ)
V("v_lshl_add_u32 v%d, v%d, 2, v%d", vH2, vL, vZ)
V("v_xor_b32 v%d, v%d, v%d", GL, TMP + 4, vG); V("v_lshlrev_b32 v%d, 4, v%d", GL, GL); V("v_lshl_add_u32 v%d, v%d, 8, v%d", GL, TMP + 4, GL)
V("v_and_b32 v%d, 8, v%d", TMP + 4, vL); V("v_lshl_add_u32 v%d, v%d, 9, v%d", GL, TMP + 4, GL)
V("s_lshl_b32 s%d, s%d, 13", st0, sJ); V("v_add_u32 v%d, s%d, v%d", GL, st0, GL)
for s in range(1, 4): V("v_xor_b32 v%d, %d, v%d", GL + s, s << 6, GL)
V("s_mov_b32 s%d, 0xff00ff00", sMSK); V("s_mov_b32 s%d, 0xff00ff00", sMSK + 1)
V("v_lshlrev_b32 v%d, 15, v%d", vS3, vG); V("v_lshl_add_u32 v%d, v%d, 3, v%d", vS3, vC, vS3)
V("v_and_b32 v%d, 1, v%d", vSH, vL); V("v_mul_u32_u24 v%d, 12, v%d", vSH, vSH); V("v_sub_u32 v%d, 20, v%d", vSH, vSH)
V("s_lshl_b32 s%d, s%d, 1", st0, sJ); V("s_and_b32 s%d, s%d, 7", st0, st0); V("s_xor_b32 s%d, s%d, s%d", st0, st0, sJ); V("s_lshl_b32 s%d, s%d, 5", st0, st0); V("s_xor_b32 s%d, s%d, 32", st0, st0)
V("v_xor_b32 v%d, s%d, v%d", vVB, st0, vTR2); V("v_add_u32 v%d, %d, v%d", vVB, SL1, vVB)
V("s_and_b32 s%d, s%d, 3", st1, sx); V("s_lshr_b32 s%d, s%d, 2", st2, sx)
wsb(sB2, [(8 * 16384, st1), (4096, sJ), (256, sz), (128, st2)], O_S3); base(sB3, sB2, None, 16384)
SC = struct.unpack("<I", struct.pack("<f", 128 ** -0.5 * math.log2(math.e)))[0]
V("s_mov_b32 s%d, 0x%08x", st1, SC)
late_use(0)
if MA: p1b(0, SLM_A, EA_M, True); stamp(13)
V("v_xor_b32 v%d, 32, v%d", vVA, vVB)
landed(EA_K)
for s in range(4):
    for t in range(2): V("ds_read_b128 v[%d:%d], v%d offset:%d", WA + 16 * t + 4 * s, WA + 16 * t + 4 * s + 3, GL + (s ^ (2 * t)), SL0 + t * 2048)
a("s_barrier")
stamp(3)
g2 = [gl(GD + 4 * i, vL16, sB, i * 1024) for i in range(4)]
emit(g2)
gfinish(g2, R(GD, 16), cnt=1)
stamp(4)
add4(GD, GD + 4); add4(GD + 8, GD + 12); add4(GD, GD + 8)
V("v_permlane32_swap_b32 v%d, v%d", GD, GD + 2); V("v_permlane32_swap_b32 v%d, v%d", GD + 1, GD + 3)
V("v_add_f32 v%d, v%d, v%d", GD, GD, GD + 2); V("v_add_f32 v%d, v%d, v%d", GD + 1, GD + 1, GD + 3)
V("v_cvt_pk_bf16_f32 v%d, v%d, v%d", GD, GD, GD + 1)
V("ds_write_b32 v%d, v%d offset:%d", vQW, GD, A_Q)
hbar(afr(vQA, A_Q, 4, GD, 64))
def pvonly(xs):
    l = a.lab("Nv"); V("s_cmp_ge_u32 s%d, 4", sJ); a("s_cbranch_scc1 %s" % l); emit(xs); a.label(l)
vall = trl(WB, 256, range(8), vVA) + trl(vA, 256, range(8), vVB)
n1 = (12, 20, 32)[P["vpos"]]
for s in range(4):
    a("s_waitcnt lgkmcnt(%d)" % (3 - s))
    for t in range(2): mfma(ACC + 4 * t, WA + 16 * t + 4 * s, GD + 4 * s, s == 0)
pvonly(vall[:n1]); a("s_nop 5")
for i in range(4): V("v_cndmask_b32 v%d, v%d, v%d, s[%d:%d]", GD + i, ACC + i, ACC + 4 + i, sMSK, sMSK + 1)
V("v_max_f32 v%d, v%d, v%d", GL, GD, GD + 1); V("v_max3_f32 v%d, v%d, v%d, v%d", GL, GL, GD + 2, GD + 3)
zacc(4)
dpp("v_max_f32", GL, GL, GL, "row_ror:8")
V("v_mov_b32 v%d, v%d", GL + 1, GL); V("v_mov_b64 v[%d:%d], 0", ACC + 4, ACC + 5); V("v_mov_b64 v[%d:%d], 0", ACC + 6, ACC + 7)
V("v_permlane16_swap_b32 v%d, v%d", GL, GL + 1); V("v_max_f32 v%d, v%d, v%d", GL, GL, GL + 1)
V("v_mov_b32 v%d, v%d", GL + 1, GL); V("v_permlane32_swap_b32 v%d, v%d", GL, GL + 1); V("v_max_f32 v%d, v%d, v%d", GL, GL, GL + 1)
a("s_mov_b64 exec, 0xff"); V("ds_write_b32 v%d, v%d offset:%d", vMW, GL, A_MX); a("s_mov_b64 exec, -1")
hbar(["ds_read_b128 v[%d:%d], v%d offset:%d" % (GL + 4 * i, GL + 4 * i + 3, vMR, A_MX + 16 * i) for i in range(2)])
a("s_waitcnt lgkmcnt(0)")
V("v_max3_f32 v%d, v%d, v%d, v%d", GL, GL, GL + 1, GL + 2); V("v_max3_f32 v%d, v%d, v%d, v%d", GL + 4, GL + 4, GL + 5, GL + 6)
V("v_max3_f32 v%d, v%d, v%d, v%d", GL, GL, GL + 3, GL + 7); V("v_max_f32 v%d, v%d, v%d", GL, GL, GL + 4)
V("v_mul_f32 v%d, s%d, v%d", GL, st1, GL)
for i in range(4): V("v_fma_f32 v%d, v%d, s%d, -v%d", GD + i, GD + i, st1, GL)
for i in range(4): V("v_exp_f32 v%d, v%d", GD + i, GD + i)
for i in range(2): V("v_cvt_pk_bf16_f32 v%d, v%d, v%d", GL + 2 + i, GD + 2 * i, GD + 2 * i + 1)
V("ds_write2_b32 v%d, v%d, v%d offset0:0 offset1:4", vPW, GL + 2, GL + 3)
V("v_add_f32 v%d, v%d, v%d", GD, GD, GD + 1); V("v_add_f32 v%d, v%d, v%d", GD + 2, GD + 2, GD + 3); V("v_add_f32 v%d, v%d, v%d", GD, GD, GD + 2)
V("ds_write_b32 v%d, v%d offset:%d", vLW, GD, A_LS)
if n1 < 32: pvonly(vall[n1:])
hbar()
V("s_cmp_ge_u32 s%d, 4", sJ); a("s_cbranch_scc1 L_nopv")
pf_ = afr(vPA, A_P, 4, WA)
emit(["ds_read_b128 v[%d:%d], v%d offset:%d" % (GD + 8 + 4 * i, GD + 11 + 4 * i, vLR, A_LS + 16 * i) for i in range(2)] + ["ds_read_b32 v%d, v%d offset:%d" % (GL + 1, vH2, A_MX)] + pf_)
for d in range(4):
    a("s_waitcnt lgkmcnt(%d)" % (3 - d))
    for t in range(2): smf(ACC + 4 * t, WA + 4 * d, (WB, vA)[t] + 8 * d)
    if d == 0:
        add4(GD + 8, GD + 12); V("v_add_f32 v%d, v%d, v%d", GD + 8, GD + 8, GD + 9); V("v_add_f32 v%d, v%d, v%d", GD + 10, GD + 10, GD + 11); V("v_add_f32 v%d, v%d, v%d", GL, GD + 8, GD + 10)
    else:
        ctl = ("quad_perm:[1,0,3,2]", "quad_perm:[2,3,0,1]", "row_half_mirror")[d - 1]
        dpp("v_max_f32", GL + 1, GL + 1, GL + 1, ctl); dpp("v_add_f32", GL, GL, GL, ctl)
V("v_log_f32 v%d, v%d", GL + 2, GL); V("v_rcp_f32 v%d, v%d", GL, GL)
V("v_fmac_f32 v%d, s%d, v%d", GL + 2, st1, GL + 1); V("v_mov_b32 v%d, v%d", GL + 1, GL)
V("v_lshrrev_b32 v%d, v%d, v%d", GL + 2, vSH, GL + 2)
for k in range(2):
    for t in range(2): V("v_add_f32 v%d, v%d, v%d", GD + 2 * k + t, ACC + 4 * t + 2 * k, ACC + 4 * t + 2 * k + 1)
V("v_mov_b32_dpp v%d, v%d row_ror:8 row_mask:0xf bank_mask:0x3", GL + 1, GL); V("v_mov_b32 v%d, v%d", GL + 3, GL + 2)
V("v_mov_b32_dpp v%d, v%d row_ror:8 row_mask:0xf bank_mask:0xc", GL, GL)
V("v_mov_b32_dpp v%d, v%d row_ror:8 row_mask:0xf bank_mask:0x3", GL + 3, GL + 2); V("v_mov_b32_dpp v%d, v%d row_ror:8 row_mask:0xf bank_mask:0xc", GL + 2, GL + 2)
for k in range(2):
    for t in range(2): V("v_mul_f32 v%d, v%d, v%d", GD + 2 * k + t, GD + 2 * k + t, GL + k)
    V("v_bfi_b32 v%d, s%d, v%d, v%d", GD + 2 * k, sTM, vT, GD + 2 * k); V("v_bfi_b32 v%d, s%d, v%d, v%d", GD + 2 * k + 1, sTM, GL + 2 + k, GD + 2 * k + 1)
    V("global_store_dwordx2 v%d, v[%d:%d], s[%d:%d] sc1", vS3, GD + 2 * k, GD + 2 * k + 1, (sB2, sB3)[k], (sB2, sB3)[k] + 1)
a.label("L_nopv")
stamp(5)
a("s_barrier")
if not MA: p1b(0, SLM_A, EA_M, False); stamp(13)
V("s_cmp_ge_u32 s%d, 14", sz); a("s_cbranch_scc1 L_fin")
vG4, vP5, vA5, vS2W, vF1, vP5U, vG6, vGB = TMP + 9, TMP + 10, TMP + 11, TMP + 12, TMP + 13, TMP + 15, TMP + 16, TMP + 17
GM = WB
V("v_lshrrev_b32 v%d, 3, v%d", vG4, vL); V("v_lshl_add_u32 v%d, v%d, 10, v%d", vG8, vG4, vJQ)
wsb(sB, [(32768, sx)], O_SM); base(sB2, sB, None, 8192); base(sB3, sB, None, 16384); base(sB4, sB, None, 24576)
wsb(sB5, [(16384, sx)], O_S4)
V("v_add_u32 v%d, %d, v%d", vF1, SL0 if MA else SL1, vTR5)
V("v_cmp_gt_u32 s[%d:%d], 7, v%d", sMSK, sMSK + 1, vG4); V("v_min_u32 v%d, 6, v%d", vG6, vG4)
V("v_lshl_add_u32 v%d, v%d, %d, v%d", vG6, vG6, 11 if LOC else 12, vJQ); V("v_lshl_add_u32 v%d, v%d, 11, v%d", vG4, vG4, vJQ)
V("v_lshrrev_b32 v%d, 5, v%d", vP5, vL); V("v_mul_u32_u24 v%d, %d, v%d", vP5U, O_S5T - O_S5U, vP5); V("v_add_u32 v%d, v%d, v%d", vP5U, vP5U, vPUB); V("v_lshl_add_u32 v%d, v%d, 13, v%d", vP5, vP5, vPUB)
if VT: V("v_mov_b32 v%d, 2", vA5)
else: V("v_bfe_u32 v%d, v%d, 3, 1", vA5, vL); V("v_lshlrev_b32 v%d, 1, v%d", vA5, vA5)
V("v_and_b32 v%d, 2, v%d", TMP + 4, vL); V("v_cmp_ne_u32 vcc, 0, v%d", TMP + 4); V("v_cndmask_b32 v%d, v%d, 1, vcc", vA5, vA5)
V("v_mul_u32_u24 v%d, %d, v%d", vA5, 2 * ASTR, vA5); V("v_add_u32 v%d, v%d, v%d", vA5, vA5, vAF)
V("v_and_b32 v%d, 4, v%d", vS2W, vL); V("v_lshlrev_b32 v%d, 6, v%d", vS2W, vS2W); V("v_lshl_add_u32 v%d, v%d, 3, v%d", vS2W, vG, vS2W); V("s_lshl_b32 s%d, s%d, 5", st0, sJ); V("v_add3_u32 v%d, v%d, v%d, s%d", vS2W, vS2W, vZ, st0)
zacc()
gm = [gl(GM + 4 * i, vG8, (sB, sB2, sB3, sB4)[i]) for i in range(4)]
g4 = [gl(GD + 4 * i, vG4, sB5, i * 1024) for i in range(2)]
a("s_barrier")
stamp(7)
emit(gm); emit(g4)
if P["g4"]: a("s_barrier")
tr2(WA, vF1, 0, vF1, 256)
gfinish(gm, R(GM, 16), cnt=0x100, nyoung=2)
stamp(6)
swapred([GM, GM + 4, GM + 8, GM + 12])
V("v_mov_b32 v%d, v%d", vGA, GM); V("v_add_f32 v%d, 1.0, v%d", vCB, GM + 8); V("v_mov_b32 v%d, v%d", vGB, GM + 12); pack(GM + 4); pack(vCB, GM + 2)
V("ds_write_b16 v%d, v%d offset:%d", vWV, GM + 2, A_X + 2 * ASTR); V("ds_write_b16 v%d, v%d offset:%d", vWV, GM + 4, A_X + 4 * ASTR)
wsb(sB3, [(16384, sz), (1024, sx)], O_S5U); base(sB, sB3, None, O_S5V - O_S5U); base(sB2, sB3, None, O_S5T - O_S5U if VT else 8192)
if VT:
    hbar(afr(vA5, A_X, 2))
    gemv2(WA)
    for h in range(2):
        V("v_add_f32 v%d, v%d, v%d", GL + h, ACC + 4 * h, ACC + 4 * h + 1); V("v_add_f32 v%d, v%d, v%d", GL + 2 + h, ACC + 4 * h + 2, ACC + 4 * h + 3)
    zacc()
    for k in range(2):
        V("v_cndmask_b32 v%d, v%d, v%d, s[%d:%d]", GL + 2 * k, GL + 2 * k, GL + 2 * k + 1, sHI, sHI + 1); tag([GL + 2 * k])
        V("global_store_dword v%d, v%d, s[%d:%d] sc1", vP5, GL + 2 * k, (sB2, sB)[k], (sB2, sB)[k] + 1)
    stamp(14)
gfinish(g4, R(GD, 8), cnt=0x10000, nyoung=2 if VT else 0)
stamp(8)
add4(GD, GD + 4); swapred([GD])
V("v_fmac_f32 v%d, v%d, v%d", vX, vGA, GD)
V("v_mul_f32 v%d, v%d, v%d", GD, vX, vCB); V("v_mul_f32 v%d, v%d, v%d", GD + 3, vX, vX); pack(GD)
dpp("v_add_f32", GD + 2, vX, vX, "quad_perm:[1,0,3,2]"); dpp("v_add_f32", GD + 3, GD + 3, GD + 3, "quad_perm:[1,0,3,2]")
V("ds_write_b16 v%d, v%d offset:%d", vWV, GD, A_X)
dpp("v_add_f32", GD + 2, GD + 2, GD + 2, "quad_perm:[2,3,0,1]"); dpp("v_add_f32", GD + 3, GD + 3, GD + 3, "quad_perm:[2,3,0,1]")
V("ds_write_b64 v%d, v[%d:%d] offset:%d", vS2W, GD + 2, GD + 3, A_ST2)
hbar(afr(vAF if VT else vA5, A_X, 2))
gemv2(WA)
def sel2(mask):
    for h in range(2): V("v_add_f32 v%d, v%d, v%d", GD + h, ACC + 4 * h, ACC + 4 * h + 1)
    V("v_cndmask_b32 v%d, v%d, v%d, s[%d:%d]", GD, GD, GD + 1, mask, mask + 1); tag([GD])
if VT:
    sel2(sHI); V("global_store_dword v%d, v%d, s[%d:%d] sc1", vP5, GD, sB3, sB3 + 1)
else:
    for h in range(2):
        V("v_add_f32 v%d, v%d, v%d", GD + h, ACC + 4 * h, ACC + 4 * h + 1); tag([GD + h])
        V("global_store_dword v%d, v%d, s[%d:%d] sc1", vP5U, GD + h, (sB3, sB2)[h], (sB3, sB2)[h] + 1)
    for h in range(2): V("v_add_f32 v%d, v%d, v%d", GD + 2 + h, ACC + 4 * h + 2, ACC + 4 * h + 3)
    V("v_cndmask_b32 v%d, v%d, v%d, s[%d:%d]", GD + 2, GD + 2, GD + 3, sHI, sHI + 1); tag([GD + 2])
    V("global_store_dword v%d, v%d, s[%d:%d] sc1", vP5, GD + 2, sB, sB + 1)
stamp(9)
V("s_cmp_lg_u32 s%d, s%d", sz, sJ); a("s_cbranch_scc1 L_fin")
wsb(sB6, [(NP6 * 1024, sx)], O_S6L if LOC else O_S6); V("s_mov_b32 s%d, 60", sALT)
g6 = [gl(GD + 4 * i, vG6, sB6, i * 1024) for i in range(2 if LOC else 4)]
emit(g6); gfinish(g6, R(GD, 8 if LOC else 16), cnt=0x1000000, alt=(sB6, O_S6L - O_S6) if LOC else None)
add4(GD, GD + 4)
if not LOC: add4(GD + 8, GD + 12); add4(GD, GD + 8)
for i in range(4): V("v_cndmask_b32 v%d, 0, v%d, s[%d:%d]", GD + i, GD + i, sMSK, sMSK + 1)
swapred([GD])
V("v_fmac_f32 v%d, v%d, v%d", vX, vGB, GD); pack(vX)
a("s_mov_b32 exec_lo, 0x00ff00ff"); a("s_mov_b32 exec_hi, 0x00ff00ff")
V("global_store_short v%d, v%d, s[%d:%d]", TMP + 19, vX, sOUT, sOUT + 1)
a("s_mov_b64 exec, -1")
stamp(10)
if P["light"]:
    V("s_memrealtime s[%d:%d]", sSTMP + 2, sSTMP + 3)
    wsb(sSTB, [(16, 2)], 128 << 20)
    a("s_waitcnt lgkmcnt(0)"); V("v_mov_b32 v%d, 0", TMP)
    for i in range(4): V("v_mov_b32 v%d, s%d", TMP + 4 + i, sSTMP + i)
    a("s_mov_b64 exec, 1"); V("global_store_dwordx4 v%d, v[%d:%d], s[%d:%d]", TMP, TMP + 4, TMP + 7, sSTB, sSTB + 1); a("s_mov_b64 exec, -1")
a("s_cmp_lg_u32 s2, 0"); a("s_cbranch_scc1 L_fin")
V("v_mov_b32 v%d, 0", TMP); a("s_mov_b64 exec, 1")
V("global_store_dword v%d, v%d, s[%d:%d] sc1", TMP, vT, sWS, sWS + 1)
a("s_mov_b64 exec, -1")
def amplify():
    V("s_memrealtime s[%d:%d]", sB, sB + 1); a("s_waitcnt lgkmcnt(0)")
    V("s_sub_u32 s%d, s%d, s%d", st0, sSTMP + 2 * AMP, sSTMP); V("s_mul_i32 s%d, s%d, 10", st0, st0); V("s_min_u32 s%d, s%d, 100000", st0, st0)
    a.label("L_amp")
    V("s_memrealtime s[%d:%d]", sB2, sB2 + 1); a("s_waitcnt lgkmcnt(0)")
    V("s_sub_u32 s%d, s%d, s%d", st1, sB2, sB); V("s_cmp_lt_u32 s%d, s%d", st1, st0); a("s_cbranch_scc1 L_amp")
if AMP >= 0 and not P["ampb"]: amplify()
a("s_branch L_fin")
a.label("L_B")
late(1)
vG1, vQ0, vQ1, vA2, vP2, vL16, vW4 = TMP + 9, TMP + 10, TMP + 11, TMP + 12, TMP + 13, TMP + 16, TMP + 17
p6map()
wsb(sB, [(32768, sx)], O_S1)
V("v_lshrrev_b32 v%d, 3, v%d", vG1, vL); V("v_lshl_add_u32 v%d, v%d, 10, v%d", vG8, vG1, vJQ); V("v_lshl_add_u32 v%d, v%d, 12, v%d", vG1, vG1, vJQ)
V("s_lshl_b32 s%d, s%d, 1", st0, sJ); V("s_and_b32 s%d, s%d, 7", st0, st0); V("s_xor_b32 s%d, s%d, s%d", st0, st0, sJ); V("s_lshl_b32 s%d, s%d, 5", st0, st0)
V("s_lshr_b32 s%d, s%d, 2", st1, sJ); V("s_lshl_b32 s%d, s%d, 8", st2, st1)
V("v_xor_b32 v%d, s%d, v%d", vQ0, st0, vTR5); V("v_add_u32 v%d, s%d, v%d", vQ0, st2, vQ0); V("v_xor_b32 v%d, 32, v%d", vQ1, vQ0)
V("v_bfe_u32 v%d, v%d, 3, 1", TMP + 7, vL); V("v_mul_u32_u24 v%d, %d, v%d", TMP + 7, ASTR, TMP + 7); V("v_add_u32 v%d, v%d, v%d", vA2, vGH, TMP + 7)
V("v_lshrrev_b32 v%d, 5, v%d", vP2, vL); V("v_lshl_add_u32 v%d, v%d, 17, v%d", vP2, vP2, vPUB)
wsb(sB2, [(4096 - 512, st1), (8192, sz), (512, sx)], O_S2)
V("s_mov_b32 s%d, 0xffff0000", sMSK); V("s_mov_b32 s%d, 0xffff0000", sMSK + 1)
V("s_and_b32 s%d, s%d, 1", st0, sz); V("s_lshl_b32 s%d, s%d, 1", sHP, sx); V("s_add_u32 s%d, s%d, s%d", sHP, sHP, st0); V("s_lshr_b32 s%d, s%d, 1", sCB, sz)
wsb(sB3, [(32768, sHP), (4096, sJ)], O_S3); wsb(sB4, [(16384, sCB), (1024, sHP)], O_S4)
V("v_lshlrev_b32 v%d, 4, v%d", vL16, vL)
V("v_and_b32 v%d, 1, v%d", TMP + 4, vG); V("v_lshlrev_b32 v%d, 4, v%d", TMP + 4, TMP + 4); V("v_and_b32 v%d, 7, v%d", TMP + 5, vL); V("v_lshl_add_u32 v%d, v%d, 1, v%d", TMP + 4, TMP + 5, TMP + 4)
V("v_lshrrev_b32 v%d, 5, v%d", TMP + 5, vL); V("v_add_u32 v%d, v%d, v%d", TMP + 4, TMP + 4, TMP + 5)
swapbits(TMP + 4, TMP + 4, TMP + 5, 1, 3)
V("v_lshl_add_u32 v%d, v%d, 1, v%d", TMP + 4, TMP + 4, TMP + 7); V("s_lshl_b32 s%d, s%d, 6", st0, sJ); V("v_add3_u32 v%d, v%d, v%d, s%d", vW4, TMP + 4, vZ, st0)
zacc()
g1 = [gl(GD + 4 * i, vG1, sB, i * 1024) for i in range(4)]
a("s_barrier")
stamp(3)
emit(g1)
late_use(1, 4)
if P["g1"]: a("s_barrier")
tr2(WA, vQ0, 0, vQ1, 0)
gfinish(g1, R(GD, 16), cnt=1)
stamp(4)
add4(GD, GD + 4); add4(GD + 8, GD + 12); add4(GD, GD + 8); swapred([GD]); pack(GD)
V("ds_write_b16 v%d, v%d offset:%d", vWV, GD, A_X)
hbar(afr(vA2, A_X, 2))
gemv2(WA)
sel2(sMSK)
V("global_store_dword v%d, v%d, s[%d:%d] sc1", vP2, GD, sB2, sB2 + 1)
stamp(5)
a("s_barrier")
p1b(1, SL1, EB_M, False); stamp(6)
V("s_mov_b32 s%d, 0x000fff00", st2)
zacc(4)
g3 = [gl(GD + 4 * k, vL16, sB3, k * 1024) for k in range(4)]
a("s_barrier")
stamp(7)
emit(g3)
if P["g3"]: a("s_barrier")
emit(trl(WA, 256, range(8), vTR2))
gfinish(g3, [GD + 2 * k for k in range(8)], cnt=0x100, grp=True)
stamp(8)
for i in range(4): V("v_lshlrev_b32 v%d, 20, v%d", GL + i, GD + 4 * i + 1); V("v_lshlrev_b32 v%d, 8, v%d", GL + 4 + i, GD + 4 * i + 3)
for i in range(4): V("v_bfi_b32 v%d, s%d, v%d, v%d", GL + i, st2, GL + 4 + i, GL + i)
V("v_max_f32 v%d, v%d, v%d", GL + 4, GL, GL + 1); V("v_max3_f32 v%d, v%d, v%d, v%d", GL + 4, GL + 4, GL + 2, GL + 3)
rowred(GL + 4, GL + 5, "v_max_f32")
for i in range(4): V("v_sub_f32 v%d, v%d, v%d", GL + i, GL + i, GL + 4)
for i in range(4): V("v_exp_f32 v%d, v%d", GL + i, GL + i)
for e in range(4): V("v_mul_f32 v%d, v%d, v%d", GD + e, GD + e, GL)
V("v_add_f32 v%d, v%d, v%d", GL + 4, GL, GL + 1); V("v_add_f32 v%d, v%d, v%d", GL + 5, GL + 2, GL + 3); V("v_add_f32 v%d, v%d, v%d", GL + 4, GL + 4, GL + 5)
for e in range(4): V("v_fmac_f32 v%d, v%d, v%d", GD + e, GD + 4 + e, GL + 1)
V("v_mov_b32 v%d, v%d", GL + 5, GL + 4)
for e in range(4): V("v_fmac_f32 v%d, v%d, v%d", GD + e, GD + 8 + e, GL + 2)
V("v_permlane16_swap_b32 v%d, v%d", GL + 4, GL + 5); V("v_add_f32 v%d, v%d, v%d", GL + 4, GL + 4, GL + 5); V("v_mov_b32 v%d, v%d", GL + 5, GL + 4)
for e in range(4): V("v_fmac_f32 v%d, v%d, v%d", GD + e, GD + 12 + e, GL + 3)
V("v_permlane32_swap_b32 v%d, v%d", GL + 4, GL + 5); V("v_add_f32 v%d, v%d, v%d", GL + 4, GL + 4, GL + 5)
V("v_permlane32_swap_b32 v%d, v%d", GD, GD + 2); V("v_permlane32_swap_b32 v%d, v%d", GD + 1, GD + 3)
V("v_add_f32 v%d, v%d, v%d", GD, GD, GD + 2); V("v_add_f32 v%d, v%d, v%d", GD + 1, GD + 1, GD + 3)
V("v_rcp_f32 v%d, v%d", GL + 4, GL + 4)
V("v_permlane16_swap_b32 v%d, v%d", GD, GD + 1); V("v_add_f32 v%d, v%d, v%d", GD, GD, GD + 1)
V("v_mul_f32 v%d, v%d, v%d", GD, GD, GL + 4); pack(GD)
V("ds_write_b16 v%d, v%d offset:%d", vW4, GD, A_Y)
hbar(afr(vAF, A_Y, 4))
gemv1(WA, 4)
pub32(ACC, vPUB, sB4)
stamp(9)
a("s_barrier")
V("s_cmp_ge_u32 s%d, 14", sz); a("s_cbranch_scc1 L_fin")
vG8b, vGS, vP6, vF2 = TMP + 9, TMP + 10, TMP + 11, TMP + 12
NH = 2 if LOC else 1; GV = WB
wsb(sB, [(16384 if LOC else 8192, sRB)], O_S5U); base(sB2, sB, None, O_S5V - O_S5U); base(sB3, sB, None, O_S5T - O_S5U)
V("s_lshr_b32 s%d, s%d, %d", st1, sRB, 0 if LOC else 1); wsb(sB4, [(1024, st1)], O_S5S)
V("v_add_u32 v%d, 8192, v%d", vG8b, vG8)
V("v_and_b32 v%d, 0x38, v%d", vGS, vL); V("v_lshlrev_b32 v%d, 4, v%d", vGS, vGS); V("v_and_b32 v%d, 4, v%d", TMP + 4, vL); V("v_lshl_add_u32 v%d, v%d, 2, v%d", vGS, TMP + 4, vGS)
if LOC:
    lin(st0, [(14 * 1024, sC6), (1024, sRB)], O_S6); V("v_add_u32 v%d, s%d, v%d", vP6, st0, vPUB); base(sB5, sWS, None, O_S6L - O_S6)
    V("v_add_u32 v%d, %d, v%d", vF2, SL1, vTR2)
else:
    V("v_lshrrev_b32 v%d, 5, v%d", vP6, vL); V("v_mul_u32_u24 v%d, %d, v%d", vP6, 28 * 1024, vP6); lin(st0, [(56 * 1024, sC6), (1024, sRB)], O_S6); V("v_add3_u32 v%d, v%d, v%d, s%d", vP6, vP6, vPUB, st0)
    V("v_add_u32 v%d, %d, v%d", vF2, SL1, vTR5)
zacc()
gu = [gl(GL, vGS, sB4)] + [gl(GD + 4 * h, (vG8, vG8b)[h], sB) for h in range(NH)]
gv = [gl(GV + 8 * k + 4 * h, (vG8, vG8b)[h], (sB2, sB3)[k]) for k in range(2) for h in range(NH)]
gvr = [r for k in range(2) for h in range(NH) for r in R(GV + 8 * k + 4 * h)]
a("s_barrier")
if VT: emit(gv)
if not LH5:
    stamp(10); emit(gu)
    if not VT: emit(gv)
if P["g5"]: a("s_barrier")
if LOC: emit(trl(WA, 256, range(8), vF2))
else: tr2(WA, vF2, 0, vF2, 256)
if LH5:
    a("s_barrier"); stamp(10); emit(gu)
    if not VT: emit(gv)
if VT:
    gfinish(gv, gvr, cnt=0x1000000, nyoung=len(gu)); swapred([GV + 8 * k + 4 * h for k in range(2) for h in range(NH)]); stamp(13)
    gfinish(gu, R(GD, 4 * NH), [GL + 1, GL + 3], cnt=0x10000)
else:
    gfinish(gu + gv, R(GD, 4 * NH) + gvr, [GL + 1, GL + 3], cnt=0x10000)
stamp(11)
US = [GD + 4 * h for h in range(NH)] if VT else []
V("v_permlane32_swap_b32 v%d, v%d", GL, GL + 2)
for d in US: V("v_permlane32_swap_b32 v%d, v%d", d, d + 2); V("v_permlane32_swap_b32 v%d, v%d", d + 1, d + 3)
V("v_add_f32 v%d, v%d, v%d", GL, GL, GL + 2)
for d in US: V("v_add_f32 v%d, v%d, v%d", d, d, d + 2); V("v_add_f32 v%d, v%d, v%d", d + 1, d + 1, d + 3)
dpp("v_add_f32", GL, GL, GL, "row_ror:8")
V("v_mov_b32 v%d, v%d", GL + 1, GL)
for d in US: V("v_permlane16_swap_b32 v%d, v%d", d, d + 1); V("v_add_f32 v%d, v%d, v%d", d, d, d + 1)
V("v_permlane16_swap_b32 v%d, v%d", GL, GL + 1); V("v_add_f32 v%d, v%d, v%d", GL, GL, GL + 1)
V("v_mov_b32 v%d, v%d", GL + 2, GL)
for d in US: dpp("v_add_f32", d, d, d, "row_ror:8")
V("v_permlane32_swap_b32 v%d, v%d", GL, GL + 2)
lnstats(GL, GL + 2)
ne = 1 if VT else 4
for h in range(NH):
    for e in range(ne): V("v_fma_f32 v%d, -v%d, v%d, v%d", GD + 4 * h + e, GL, GV + 4 * h + e, GD + 4 * h + e)
for h in range(NH):
    for e in range(ne): V("v_fma_f32 v%d, v%d, v%d, v%d", GD + 4 * h + e, GD + 4 * h + e, GL + 2, GV + 8 + 4 * h + e)
if not VT: swapred([GD + 4 * h for h in range(NH)])
for h in range(NH): V("v_max_f32 v%d, 0, v%d", GD + 4 * h, GD + 4 * h)
V("v_cvt_pk_bf16_f32 v%d, v%d, v%d", GD, GD, GD + 4 * (NH - 1))
V("ds_write_b16 v%d, v%d offset:%d", vWV, GD, A_Z)
if LOC: V("ds_write_b16_d16_hi v%d, v%d offset:%d", vWV, GD, A_Z + 256)
hbar(afr(vAF, A_Z, 4 if LOC else 2))
if LOC:
    gemv1(WA, 4)
    a("s_mov_b32 exec_hi, 0")
    V("global_store_dword v%d, v%d, s[%d:%d]", vP6, ACC, sB5, sB5 + 1)
    V("global_store_dword v%d, v%d, s[%d:%d] sc1", vP6, ACC, sWS, sWS + 1)
    a("s_mov_b64 exec, -1")
else:
    gemv2(WA); sel2(sHI)
    V("global_store_dword v%d, v%d, s[%d:%d] sc1", vP6, GD, sWS, sWS + 1)
stamp(12)
if AMP >= 0 and P["ampb"]:
    V("s_cmp_lg_u32 s2, %d", P["ampb"]); a("s_cbranch_scc1 L_fin"); V("s_cmp_lg_u32 s%d, 0", sJ); a("s_cbranch_scc1 L_fin"); amplify()
a.label("L_fin")
if STAMPS:
    for i in range(4): a("s_sleep 127")
    a("s_waitcnt lgkmcnt(0)")
    V("v_mov_b32 v%d, 0", TMP); a("s_mov_b64 exec, 1")
    for i in range(NST):
        V("v_mov_b32 v%d, s%d", TMP + 2, sSTMP + 2 * i); V("v_mov_b32 v%d, s%d", TMP + 3, sSTMP + 2 * i + 1)
        V("global_store_dwordx2 v%d, v[%d:%d], s[%d:%d] offset:%d", TMP, TMP + 2, TMP + 3, sSTB, sSTB + 1, i * 8)
a.label("L_end")
a("s_endpgm")
a.l = a.l + cold + ["L_codeend:"]
a.l = hazard.fix(a.l)
open(OUT, "w").write(wrap(a.text(), 256, 768, LDS, NV))
print(OUT, "LDS", LDS, "ASTR", ASTR, "lines", len(a.l))
```

```python
import sys, math, struct, copy
from asmlib import *
import hazard
args = sys.argv[1:]
OUT = [x for x in args if x.endswith(".s")][0]
P = dict(stamps=0, light=0, amp=-1, ampb=0, nt=1, pf=1, prio=2, cprio=3, lsleep=1, rsleep=0,
         ma=0, rb=128, g1=3, g2=1, g3=0, g4=3, g5=3, kvi=1, kz=1, kx=0, vo=0,
         wm=5, wk=7, wv=9, wq=7, wo=5, wf=6, wf2=9, f1pre=6, f2pre=0, kb=0, wbl=3,
         loc6=1, rot=1, rmul=0, rmx=5, vpos=2, vt=0, lh5=1, m5=0, gj=0, gvl=0, bpre=3, apre=0, cpre=0, kf=16, wfb=9, ko=16, wob=9, lh3=0, k3=7, n3=16, lh4=0, k4=7, n4=1, pre=0, pt5=0)
for x in args:
    if "=" in x:
        k, v = x.split("="); assert k in P, k; P[k] = int(v)
STAMPS = P["stamps"]; NT = " nt" if P["nt"] else ""; AMP = P["amp"]; LOC = P["loc6"]; MA = P["ma"]; VT = P["vt"]; LH5 = P["lh5"]
NST = 16; TAGM = 0xfff
O_S1 = 0x1000; O_S2 = O_S1 + 0x40000; O_S3 = O_S2 + 0x40000; O_S4 = O_S3 + 0x80000; O_SM = O_S4 + 0x20000
O_S5U = O_SM + 0x40000; O_S5V = O_S5U + 0x38000; O_S5T = O_S5V + 0x38000; O_S6 = O_S5T + 0x38000; O_S6L = O_S6 + 0x38000; O_S5S = O_S6L + 0x38000; O_H5 = O_S5S + 0x4000; O_H3 = O_H5 + 0x4000; O_H4 = O_H3 + 0x4000
SL0, SL1, SLA = 0, 65536, 131072
LS = 147456
F_LAND = 0; F_BAR = 16; F_H4 = 96
B_P1A, B_C2, B_MF = range(3)
A_ST1 = 128; A_ST2 = A_ST1 + 256; A_MX = A_ST2 + 512; A_LS = A_MX + 256
ASTR = 640
A_C1 = A_LS + 8 * 272; A_C2 = A_C1 + 2 * ASTR; A_X = A_C2 + 2 * ASTR; A_Y = A_X + 2 * ASTR; A_Z = A_C2
A_Q = A_X + 6 * ASTR; PSTR = 544; A_P = A_C1
A_P = A_Q + 8 * 288
LDS = LS + A_P + 8 * PSTR
if LDS > 163840:
    ASTR = 576
    A_C1 = A_LS + 8 * 272; A_C2 = A_C1 + 2 * ASTR; A_X = A_C2 + 2 * ASTR; A_Y = A_X + 2 * ASTR; A_Z = A_C2
    A_Q = A_X + 6 * ASTR; A_P = A_Q + 8 * 288; LDS = LS + A_P + 8 * PSTR
assert LDS <= 163840, LDS
RB = P["rb"]; assert RB % 64 == 0 and 0 < RB < 256
NM = (16 - RB // 16, RB // 16); NP6 = 14 if LOC else 28
EA_M = 4 + NM[0] if MA else 36 + NM[0]; EA_K = 20 + (NM[0] if MA else 0); EB_M = 20 + NM[1]
SLM_A = SL1 if MA else SL0
sJ = 3
sX, sK, sV, sWQ, sWO, sW1, sW2, sC, sWM, sOUT, sDBG, sWS = 4, 6, 8, 10, 12, 16, 18, 20, 22, 24, 26, 28
sx, sy, sz, sT, sTM, sTO, sTW = 30, 31, 14, 32, 33, 34, 35
sONES = 36; sHI = 54
sB, sB2, sB3, sB4, sB5, sB6 = 38, 40, 56, 58, 98, 100
st0, st1, st2, st3 = 42, 43, 44, 45
sHP, sCB, sRB, sC6 = 46, 47, 51, 15
sMOD, sMCB, sMRB, sMR0 = 94, 95, 96, 97
sSTB = 48; sEP = 50; sMSK = 52; sSTMP = 60; sLD = 93; sALT = 92
vL, vG, vC, vT, vTW, vJQ, vPUB, vZ, vIX, vFL, vTR5, vTR2, vAF, vX, vXD = range(1, 16)
vWV = 0
vA = 16; WA = 48; WB = 80; GD = 112; GL = 128; ACC = 136; TMP = 144
vGA, vCB, vXS = 164, 165, 166
NV = 168
a = Asm(); cold = []
class Cold:
    def __enter__(self): self.sv = a.l; a.l = []
    def __exit__(self, *x): cold.extend(a.l); a.l = self.sv
def V(fmt, *x): a(fmt % x)
def stamp(i):
    if STAMPS or (AMP >= 0 and i in (0, AMP)) or (P["light"] and i == 0): V("s_memrealtime s[%d:%d]", sSTMP + 2 * i, sSTMP + 2 * i + 1)
def base(dst, src, off=None, imm=0):
    if off is not None: V("s_add_u32 s%d, s%d, s%d", dst, src, off)
    else: V("s_add_u32 s%d, s%d, %d", dst, src, imm)
    V("s_addc_u32 s%d, s%d, 0", dst + 1, src + 1)
def lin(dst, terms, imm=0):
    first = True
    for coef, r in terms:
        t = dst if first else st3
        if coef and coef & (coef - 1) == 0: V("s_lshl_b32 s%d, s%d, %d", t, r, coef.bit_length() - 1)
        else: V("s_mul_i32 s%d, s%d, %d", t, r, coef)
        if not first: V("s_add_u32 s%d, s%d, s%d", dst, dst, t)
        first = False
    if imm: V("s_add_u32 s%d, s%d, %d", dst, dst, imm)
def wsb(dst, terms, off): lin(st0, terms, off); base(dst, sWS, st0)
def R(r, n=4): return list(range(r, r + n))
def dpp(op, d, s0, s1, ctl, extra="row_mask:0xf bank_mask:0xf"): a("%s_dpp v%d, v%d, v%d %s %s" % (op, d, s0, s1, ctl, extra))
def allred(rs, steps, op="v_add_f32"):
    for ctl in ("quad_perm:[1,0,3,2]", "quad_perm:[2,3,0,1]", "row_half_mirror", "row_mirror")[:steps]:
        for r in rs: dpp(op, r, r, r, ctl)
def swapred(ds, ror=True):
    for d in ds: V("v_permlane32_swap_b32 v%d, v%d", d, d + 2); V("v_permlane32_swap_b32 v%d, v%d", d + 1, d + 3)
    for d in ds: V("v_add_f32 v%d, v%d, v%d", d, d, d + 2); V("v_add_f32 v%d, v%d, v%d", d + 1, d + 1, d + 3)
    for d in ds: V("v_permlane16_swap_b32 v%d, v%d", d, d + 1)
    for d in ds: V("v_add_f32 v%d, v%d, v%d", d, d, d + 1)
    if ror:
        for d in ds: dpp("v_add_f32", d, d, d, "row_ror:8")
def rowred(r, t, op):
    V("v_mov_b32 v%d, v%d", t, r); V("v_permlane16_swap_b32 v%d, v%d", r, t); V("%s v%d, v%d, v%d", op, r, r, t)
    V("v_mov_b32 v%d, v%d", t, r); V("v_permlane32_swap_b32 v%d, v%d", r, t); V("%s v%d, v%d, v%d", op, r, r, t)
def add4(d, s):
    for h in (0, 2): V("v_pk_add_f32 v[%d:%d], v[%d:%d], v[%d:%d]", d + h, d + h + 1, d + h, d + h + 1, s + h, s + h + 1)
def check(tag_regs, word_regs=(), grp=False):
    V("v_xor_b32 v%d, v%d, v%d", TMP, tag_regs[0], vT)
    for r in tag_regs[1:]: V("v_bitop3_b32 v%d, v%d, v%d, v%d bitop3:0xbe", TMP, r, vT, TMP)
    V("v_and_b32 v%d, s%d, v%d", TMP, sTM, TMP)
    for r in word_regs: V("v_bitop3_b32 v%d, v%d, v%d, v%d bitop3:0xbe", TMP, r, vTW, TMP)
    if grp: allred([TMP], 3, "v_or_b32")
    V("v_cmp_ne_u32 vcc, 0, v%d", TMP)
def gl(d, va, sb, off=0): return "global_load_dwordx4 v[%d:%d], v%d, s[%d:%d] offset:%d sc1" % (d, d + 3, va, sb, sb + 1, off)
def emit(xs):
    for x in xs: a(x)
def gfinish(loads, tag_regs, word_regs=(), cnt=None, grp=False, nyoung=0, alt=None):
    ok, lp = a.lab("Ok"), a.lab("Rp")
    a("s_waitcnt vmcnt(%d)" % nyoung)
    check(tag_regs, word_regs)
    a("s_cbranch_vccnz %s_e" % lp)
    a.label(ok)
    with Cold():
        a.label(lp + "_e")
        if grp: a("s_nop 1"); allred([TMP], 3, "v_or_b32"); V("v_cmp_ne_u32 vcc, 0, v%d", TMP)
        a.label(lp)
        a("s_mov_b64 exec, vcc")
        if P["rsleep"]: a("s_sleep %d" % P["rsleep"])
        if STAMPS and cnt is not None: V("s_add_u32 s%d, s%d, %d", sSTMP + 30, sSTMP + 30, cnt)
        if alt is not None:
            sb, delta = alt
            V("s_sub_u32 s%d, s%d, 1", sALT, sALT); V("s_cmp_eq_u32 s%d, 0", sALT); V("s_cselect_b32 s%d, %d, 0", st3, delta)
            V("s_sub_u32 s%d, s%d, s%d", sb, sb, st3); V("s_subb_u32 s%d, s%d, 0", sb + 1, sb + 1)
        emit(loads)
        a("s_waitcnt vmcnt(0)")
        check(tag_regs, word_regs, grp)
        a("s_cbranch_vccz %s_dn" % ok)
        V("s_sub_u32 s%d, s%d, 1", sTO, sTO); a("s_cbranch_scc0 %s" % lp)
        V("s_mov_b32 s%d, 0", sTO)
        a.label(ok + "_dn"); a("s_mov_b64 exec, -1"); a("s_branch %s" % ok)
def mfma(acc, A, B, first):
    a("v_mfma_f32_16x16x32_bf16 v[%d:%d], v[%d:%d], v[%d:%d], %s" % (acc, acc + 3, A, A + 3, B, B + 3, "0" if first else "v[%d:%d]" % (acc, acc + 3)))
def smf(acc, A, B): V("v_smfmac_f32_16x16x64_bf16 v[%d:%d], v[%d:%d], v[%d:%d], v%d", acc, acc + 3, A, A + 3, B, B + 7, vIX)
def zacc(n=8):
    for i in range(0, n, 2): V("v_mov_b64 v[%d:%d], 0", ACC + i, ACC + i + 1)
def pack(r, d=None): V("v_cvt_pk_bf16_f32 v%d, v%d, v%d", r if d is None else d, r, r)
def tag(rs):
    for r in rs: V("v_bfi_b32 v%d, s%d, v%d, v%d", r, sTM, vT, r)
def silu(r, t):
    V("v_mul_f32 v%d, 0xbfb8aa3b, v%d", t, r); V("v_exp_f32 v%d, v%d", t, t); V("v_add_f32 v%d, 1.0, v%d", t, t)
    V("v_rcp_f32 v%d, v%d", t, t); V("v_mul_f32 v%d, v%d, v%d", r, r, t)
def lnstats(s, q):
    V("v_mul_f32 v%d, 0x3a800000, v%d", s, s); V("v_mul_f32 v%d, 0x3a800000, v%d", q, q)
    V("v_fma_f32 v%d, -v%d, v%d, v%d", q, s, s, q); V("v_max_f32 v%d, 0, v%d", q, q)
    V("v_add_f32 v%d, 0x3727c5ac, v%d", q, q); V("v_rsq_f32 v%d, v%d", q, q)
def arrive(k): V("v_mov_b32 v%d, 1", TMP + 2); V("ds_write_b8 v%d, v%d offset:%d", vFL, TMP + 2, F_BAR + 8 * k)
def waitloop(body, sleep):
    l, ok = a.lab("Sp"), a.lab("So")
    a.label(l); body()
    a("s_cbranch_vccnz %s_r" % l)
    a.label(ok)
    with Cold():
        a.label(l + "_r")
        if sleep: a("s_sleep %d" % sleep)
        V("s_sub_u32 s%d, s%d, 1", sTO, sTO); a("s_cbranch_scc0 %s" % l)
        V("s_mov_b32 s%d, 0", sTO); a("s_branch %s" % ok)
def spin(k, sleep=0):
    def body():
        V("ds_read_b64 v[%d:%d], v%d offset:%d", TMP + 2, TMP + 3, vZ, F_BAR + 8 * k); a("s_waitcnt lgkmcnt(0)")
        V("v_cmp_ne_u64 vcc, s[%d:%d], v[%d:%d]", sONES, sONES + 1, TMP + 2, TMP + 3)
    waitloop(body, sleep)
def landed(thr):
    def body():
        V("ds_read_b128 v[%d:%d], v%d offset:%d", TMP + 4, TMP + 7, vZ, F_LAND); a("s_waitcnt lgkmcnt(0)")
        V("v_min_u32 v%d, v%d, v%d", TMP + 4, TMP + 4, TMP + 5); V("v_min3_u32 v%d, v%d, v%d, v%d", TMP + 4, TMP + 4, TMP + 6, TMP + 7)
        V("v_cmp_gt_u32 vcc, %d, v%d", thr, TMP + 4)
    waitloop(body, P["lsleep"])
def hbar(reads=()):
    a("s_waitcnt lgkmcnt(0)"); a("s_barrier"); emit(reads)
def trl(W, RS, steps, r, o=0):
    return ["ds_read_b64_tr_b16 v[%d:%d], v%d offset:%d" % (W + 4 * s + 2 * hh, W + 4 * s + 2 * hh + 1, r, s * 32 * RS + hh * 8 * RS + o) for s in steps for hh in range(2)]
def tr2(W, r0, o0, r1, o1):
    for d in range(2): emit(trl(W, 512, (2 * d, 2 * d + 1), r0, o0)); emit(trl(W + 16, 512, (2 * d, 2 * d + 1), r1, o1))
def afr(va, off, n, d=vA, st=128): return ["ds_read_b128 v[%d:%d], v%d offset:%d" % (d + 4 * s, d + 4 * s + 3, va, off + s * st) for s in range(n)]
def swapbits(d, s, t, lo, hi):
    V("v_lshrrev_b32 v%d, %d, v%d", t, hi - lo, s); V("v_xor_b32 v%d, v%d, v%d", t, t, s); V("v_and_b32 v%d, %d, v%d", t, 1 << lo, t)
    V("v_mul_u32_u24 v%d, %d, v%d", t, 1 + (1 << (hi - lo)), t); V("v_xor_b32 v%d, v%d, v%d", d, s, t)
def pub32(r, va, sb, fl="sc1"):
    a("s_mov_b32 exec_hi, 0"); V("global_store_dword v%d, v%d, s[%d:%d] %s", va, r, sb, sb + 1, fl); a("s_mov_b64 exec, -1")
def gemv1(W, nd, nafter=0):
    for d in range(nd):
        a("s_waitcnt lgkmcnt(%d)" % (nafter(d) if callable(nafter) else nd - 1 - d)); smf(ACC, vA + 4 * d, W + 8 * d)
    V("v_add_f32 v%d, v%d, v%d", ACC, ACC, ACC + 1); tag([ACC])
def gemv2(W):
    for d in range(2):
        a("s_waitcnt lgkmcnt(%d)" % (1 - d))
        for h in range(2): smf(ACC + 4 * h, vA + 4 * d, W + 16 * h + 8 * d)
def mtile(grp):
    V("s_and_b32 s%d, s%d, 3", sMOD, sx); V("s_lshr_b32 s%d, s%d, 2", sMRB, sx)
    if grp == 0:
        V("s_and_b32 s%d, s%d, 7", sMCB, sz); V("s_lshr_b32 s%d, s%d, 3", st0, sz)
    else:
        V("s_lshr_b32 s%d, s%d, 1", sMCB, sz); V("s_xor_b32 s%d, s%d, 1", sMCB, sMCB); V("s_and_b32 s%d, s%d, 1", st0, sz)
    V("s_lshl_b32 s%d, s%d, 1", st0, st0); V("s_add_u32 s%d, s%d, s%d", sMRB, sMRB, st0)
    V("s_lshl_b32 s%d, s%d, 8", sMR0, sMRB)
    if grp == 0: V("s_add_u32 s%d, s%d, %d", sMR0, sMR0, RB); V("s_add_u32 s%d, s%d, 4", sMRB, sMRB)
def p6map():
    V("s_min_u32 s%d, s%d, 13", sRB, sz)
    if LOC: V("s_mov_b32 s%d, s%d", sC6, sx)
    else:
        V("s_mul_i32 s%d, s%d, 14", st0, sx); V("s_add_u32 s%d, s%d, s%d", sRB, sRB, st0); V("s_and_b32 s%d, s%d, 3", sC6, sRB); V("s_lshr_b32 s%d, s%d, 2", sRB, sRB)

a("s_load_dwordx8 s[20:27], s[0:1], 64")
a("s_load_dwordx16 s[4:19], s[0:1], 0")
a("s_load_dwordx2 s[28:29], s[0:1], 96")
a("s_cmp_ge_u32 s2, 256"); a("s_cbranch_scc1 L_end")
stamp(0)
a("v_lshrrev_b32 v2, 6, v0"); a("v_and_b32 v1, 63, v0"); V("v_readfirstlane_b32 s%d, v2", sLD)
V("v_lshrrev_b32 v%d, 4, v%d", vG, vL); V("v_and_b32 v%d, 15, v%d", vC, vL)
V("s_and_b32 s%d, s2, 7", sx); V("s_lshr_b32 s%d, s2, 3", sy)
V("s_mov_b32 s%d, 400000", sTO); V("v_mov_b32 v%d, %d", vZ, LS)
V("s_mov_b32 s%d, 0x01010101", sONES); V("s_mov_b32 s%d, 0x01010101", sONES + 1)
V("v_lshrrev_b32 v%d, 5, v%d", TMP, vL)
if STAMPS:
    for i in range(1, NST): V("s_mov_b64 s[%d:%d], 0", sSTMP + 2 * i, sSTMP + 2 * i + 1)
if P["pf"]:
    V("s_and_b32 s%d, s%d, 14", st0, sLD); V("s_cmp_lg_u32 s%d, 4", st0); a("s_cbranch_scc1 L_nopf")
    V("s_getpc_b64 s[%d:%d]", sB, sB + 1); a.label("L_pc")
    V("v_and_b32 v%d, 127, v0", TMP + 1); V("v_lshlrev_b32 v%d, 7, v%d", TMP + 1, TMP + 1); V("v_min_u32 v%d, L_codeend-L_pc-4, v%d", TMP + 1, TMP + 1)
    V("global_load_dword v%d, v%d, s[%d:%d]", ACC, TMP + 1, sB, sB + 1)
    a.label("L_nopf")
V("s_cmp_ge_u32 s%d, 4", sLD); a("s_cbranch_scc1 L_comp")
vS5, vS2, vO, vCN, vLA, vZR, vHA, vHD = 16, 17, 18, 19, 20, 21, 22, 23
sIDX, sCNT, sISS, sPUB, sM0, sROT = 46, 47, 52, 53, 54, 55
if P["prio"]: a("s_setprio %d" % P["prio"])
V("s_lshl_b32 s%d, s%d, 2", st0, sLD); V("v_lshl_add_u32 v%d, v%d, 1, s%d", TMP + 1, TMP, st0); V("v_xor_b32 v%d, v%d, v%d", vS5, vC, TMP + 1); V("v_lshlrev_b32 v%d, 4, v%d", vS5, vS5)
V("v_add_u32 v%d, s%d, v%d", vLA, st0, vZ)
V("v_and_b32 v%d, 1, v%d", TMP + 8, vG)
V("v_mul_u32_u24 v%d, 12288, v%d", vO, TMP); V("v_lshl_add_u32 v%d, v%d, 11, v%d", vO, TMP + 8, vO); V("v_add_u32 v%d, v%d, v%d", vO, vO, vS5)
V("v_lshl_add_u32 v%d, v%d, 8, v%d", vS5, TMP + 8, vS5)
V("s_and_b32 s%d, s%d, 1", st0, sLD); V("s_lshl_b32 s%d, s%d, 3", st0, st0); V("v_lshl_add_u32 v%d, v%d, 1, s%d", TMP + 1, vG, st0); V("v_xor_b32 v%d, v%d, v%d", vS2, vC, TMP + 1); V("v_lshlrev_b32 v%d, 4, v%d", vS2, vS2)
lin(st2, [(32 * 12288, sy), (2 * 12288, sLD), (256, sx)])
V("s_lshl_b32 s%d, s%d, 10", sJ, sLD)
V("s_mov_b32 s%d, 4", sISS); V("s_mov_b32 s%d, 0", sPUB)
if P["rot"]: lin(sROT, [(P["rmul"], sy), (P["rmx"], sx)])
else: V("s_mov_b32 s%d, -1", sROT)
a("s_waitcnt lgkmcnt(0)")
base(sB, sWM, st2)
stamp(8)
for i in range(4):
    V("s_add_u32 m0, s%d, %d", sJ, SLA + i * 4096)
    V("global_load_lds_dwordx4 v%d, s[%d:%d]%s", vO, sB, sB + 1, NT)
    if i != 3: base(sB, sB, None, 8 * 12288)
V("s_load_dword s%d, s[%d:%d], 0", sEP, sWS, sWS + 1)
V("s_and_b32 s%d, s%d, 15", sz, sy)
if STAMPS: wsb(sSTB, [(NST * 8 * 12, 2), (NST * 8, sLD)], 128 << 20)
def ltag():
    a("s_waitcnt lgkmcnt(0)")
    V("s_add_u32 s%d, s%d, 0x9e5", sT, sEP); V("s_and_b32 s%d, s%d, 0x%x", sT, sT, TAGM); V("s_mul_i32 s%d, s%d, 0x00100101", sTW, sT); V("s_xor_b32 s%d, s%d, 0x5a5a0000", sTW, sTW)
    V("v_mov_b32 v%d, s%d", vTW, sTW); V("v_mov_b32 v%d, 0", vZR)
def hsend(off):
    l = a.lab("Hs"); V("s_cmp_lg_u32 s%d, 1", sLD); a("s_cbranch_scc1 %s" % l)
    wsb(sB3, [(2048, sx), (128, sz)], off)
    a("s_mov_b64 exec, 1"); V("global_store_dword v%d, v%d, s[%d:%d]", vZR, vTW, sB3, sB3 + 1); a("s_mov_b64 exec, -1")
    a.label(l)
def hpoll(off, n):
    l = a.lab("Hp"); V("s_cmp_lg_u32 s%d, 0", sLD); a("s_cbranch_scc1 %s" % l)
    wsb(sB3, [(2048, sx)], off)
    V("v_lshrrev_b32 v%d, 2, v%d", vHA, vL); V("v_and_b32 v%d, %d, v%d", vHA, n - 1, vHA); V("v_add_u32 v%d, s%d, v%d", vHA, sz, vHA); V("v_and_b32 v%d, 15, v%d", vHA, vHA); V("v_lshlrev_b32 v%d, 7, v%d", vHA, vHA)
    V("global_load_dword v%d, v%d, s[%d:%d] sc1", vHD, vHA, sB3, sB3 + 1)
    a.label(l)
def off5(stride): V("v_mul_u32_u24 v%d, %d, v%d", vO, stride, TMP); V("v_add_u32 v%d, v%d, v%d", vO, vO, vS5)
def off2(stride): V("v_mul_u32_u24 v%d, %d, v%d", vO, stride, vG); V("v_add_u32 v%d, v%d, v%d", vO, vO, vS2)
def begin(ptr, slot, rot=True):
    base(sB2, ptr, st0); V("s_add_u32 s%d, s%d, %d", sM0, sJ, slot)
    if rot: V("s_mov_b32 s%d, s%d", sIDX, sROT)
    else: V("s_mov_b32 s%d, -1", sIDX)
def run(n, step, W, pub=False):
    if n <= 0: return
    l = a.lab("Ld")
    V("s_mov_b32 s%d, %d", sCNT, n - 1)
    a.label(l)
    V("s_add_u32 s%d, s%d, 1", sIDX, sIDX); V("s_and_b32 s%d, s%d, 15", sIDX, sIDX); V("s_mul_i32 s%d, s%d, %d", st3, sIDX, step)
    base(sB, sB2, st3)
    V("s_lshl_b32 s%d, s%d, 12", st3, sIDX); V("s_add_u32 m0, s%d, s%d", st3, sM0)
    a("s_waitcnt vmcnt(%d)" % (W - 1))
    V("global_load_lds_dwordx4 v%d, s[%d:%d]%s", vO, sB, sB + 1, NT)
    if pub:
        V("s_sub_i32 s%d, s%d, %d", st3, sISS, W - 1); V("s_max_i32 s%d, s%d, s%d", sPUB, sPUB, st3); V("s_add_u32 s%d, s%d, 1", sISS, sISS)
        V("v_mov_b32 v%d, s%d", vCN, sPUB); V("ds_write_b32 v%d, v%d offset:%d", vLA, vCN, F_LAND)
    V("s_sub_u32 s%d, s%d, 1", sCNT, sCNT); a("s_cbranch_scc0 %s" % l)
    if not pub: V("s_add_u32 s%d, s%d, %d", sISS, sISS, n)
def tail(n, st=None, two=False):
    a("s_waitcnt vmcnt(%d)" % n); a("s_barrier")
    if n: a("s_waitcnt vmcnt(0)")
    if st is not None: stamp(st)
    if n or two: a("s_barrier")
def mbegin(grp, slot):
    mtile(grp); off2(12288); lin(st0, [(12288, sMR0), (4 * 12288, sLD), (2048, sMOD), (256, sMCB)], 4096); begin(sWM, slot, False)
a("s_cmp_ge_u32 s2, 128"); a("s_cbranch_scc1 L_ldB")
def kbegin():
    V("s_lshl_b32 s%d, s%d, 2", st0, sLD); V("v_add_u32 v%d, s%d, v%d", TMP + 1, st0, vG); V("v_xor_b32 v%d, v%d, v%d", vO, vC, TMP + 1); V("v_lshlrev_b32 v%d, 4, v%d", vO, vO); V("v_lshl_add_u32 v%d, v%d, 8, v%d", vO, vG, vO)
    lin(st0, [(1 << 23, sx), (4096 if P["kvi"] else 65536, sz), (1024, sLD)], 28672 * 256); begin(sK, SL0)
    lin(sIDX, [(P["kz"], sz), (P["kx"], sx)])
if MA:
    mbegin(0, SLM_A); a("s_barrier"); run(NM[0], 16 * 12288, P["wm"], True); kbegin()
else:
    kbegin(); run(P["pre"], 65536 if P["kvi"] else 4096, 16); a("s_barrier")
KVS = 65536 if P["kvi"] else 4096
run(16 - (0 if MA else P["pre"]), KVS, P["wk"], True); stamp(1)
off2(256); begin(sV, SL1); lin(sIDX, [(P["kz"], sz), (P["kx"], sx)], P["vo"])
if MA: spin(B_MF, sleep=1)
run(16, KVS, P["wv"], True); stamp(2)
def f1begin(): off5(7168); V("s_min_u32 s%d, s%d, 13", st1, sz); lin(st0, [(128 * 7168, sx), (2 * 7168, sLD), (512, st1)]); begin(sW1, SL0 if MA else SL1)
if MA: f1begin()
else: mbegin(0, SLM_A)
ltag()
a("s_waitcnt vmcnt(%d)" % P["g2"]); a("s_barrier"); a("s_waitcnt vmcnt(0)"); stamp(3)
ap = P["apre"]
if ap:
    assert not MA
    a("s_barrier"); run(ap, 16 * 12288, 16)
a("s_barrier")
pre = min(P["f1pre"], 16 if MA else NM[0])
if MA:
    V("s_cmp_ge_u32 s%d, 14", sz); a("s_cbranch_scc1 L_bar3")
    run(pre, 8 * 7168, 16)
    for i in range(3): a("s_barrier")
    stamp(4)
    run(16 - pre, 8 * 7168, P["wf"])
else:
    pre = max(pre, ap)
    run(pre - ap, 16 * 12288, 16)
    for i in range(3): a("s_barrier")
    if P["lh3"]: hsend(O_H3)
    stamp(4)
    run(NM[0] - pre, 16 * 12288, P["wf"])
    V("s_cmp_ge_u32 s%d, 14", sz); a("s_cbranch_scc1 L_mdone")
    f1begin()
    if P["lh4"]:
        assert P["k4"] >= P["wf"]
        run(16 - P["k4"], 8 * 7168, P["wf"], True); V("v_mov_b32 v%d, 0", vHD); hpoll(O_H4, P["n4"]); run(P["k4"], 8 * 7168, P["wf"], True)
        V("v_cmp_ne_u32 vcc, v%d, v%d", vHD, vTW); a("s_cbranch_vccnz L_nh4"); V("ds_write_b32 v%d, v%d offset:%d", vZ, vTW, F_H4); a("s_waitcnt lgkmcnt(0)"); a.label("L_nh4")
    else:
        run(P["kf"], 8 * 7168, P["wf"], True); run(16 - P["kf"], 8 * 7168, P["wfb"], True)
wsb(sB, [(1024, sz), (128, sx)], O_S5S)
V("v_lshl_add_u32 v%d, v%d, 3, v%d", vO, vL, vZ); V("v_lshlrev_b32 v%d, 4, v%d", vCN, TMP)
V("v_mov_b32 v%d, s%d", GD + 5, sTW); V("v_mov_b32 v%d, s%d", GD + 7, sTW)
tail(P["g4"], 5)
if VT: a("s_barrier")
a("s_barrier")
if LH5: hsend(O_H5)
V("s_cmp_lg_u32 s%d, 0", sLD); a("s_cbranch_scc1 L_fin")
V("ds_read_b64 v[%d:%d], v%d offset:%d", GD, GD + 1, vO, A_ST2)
a("s_waitcnt lgkmcnt(0)")
allred([GD, GD + 1], 4)
V("v_mov_b32 v%d, v%d", GD + 2, GD); V("v_mov_b32 v%d, v%d", GD + 3, GD + 1)
V("v_permlane16_swap_b32 v%d, v%d", GD, GD + 2); V("v_permlane16_swap_b32 v%d, v%d", GD + 1, GD + 3)
V("v_add_f32 v%d, v%d, v%d", GD + 4, GD, GD + 2); V("v_add_f32 v%d, v%d, v%d", GD + 6, GD + 1, GD + 3)
a("s_mov_b32 exec_lo, 1"); a("s_mov_b32 exec_hi, 1")
V("global_store_dwordx4 v%d, v[%d:%d], s[%d:%d] sc1", vCN, GD + 4, GD + 7, sB, sB + 1)
a("s_mov_b64 exec, -1")
stamp(6)
a("s_branch L_fin")
if MA:
    a.label("L_bar3"); a("s_barrier"); a("s_barrier"); a("s_barrier"); a("s_branch L_fin")
else:
    a.label("L_mdone"); a("s_waitcnt vmcnt(0)"); V("v_mov_b32 v%d, 99", vCN); V("ds_write_b32 v%d, v%d offset:%d", vLA, vCN, F_LAND); a("s_branch L_fin")
a.label("L_ldB")
off5(8192); lin(st0, [(128 * 8192, sx), (2 * 8192, sLD), (512, sz)]); begin(sWQ, SL0)
run(P["pre"], 8 * 8192, 16); a("s_barrier")
run(16 - P["pre"], 8 * 8192, P["wq"], True); stamp(1)
mbegin(1, SL1)
ltag()
tail(P["g1"], 7, P["bpre"]); run(P["bpre"], 16 * 12288, 16); a("s_barrier"); a("s_barrier")
kb = min(P["kb"], NM[1] - P["bpre"])
run(kb, 16 * 12288, P["wbl"]); run(NM[1] - kb - P["bpre"], 16 * 12288, P["wo"]); stamp(2)
off2(2048); V("s_and_b32 s%d, s%d, 1", st1, sz); V("s_lshr_b32 s%d, s%d, 1", st2, sz)
lin(st0, [(512 * 2048, sx), (256 * 2048, st1), (4 * 2048, sLD), (256, st2)]); begin(sWO, SL0)
if P["lh3"]:
    assert P["k3"] >= P["wo"] and not P["f2pre"]
    run(16 - P["k3"], 16 * 2048, P["wo"], True); V("v_mov_b32 v%d, v%d", vHD, vTW); hpoll(O_H3, P["n3"]); run(P["k3"], 16 * 2048, P["wo"], True)
else:
    run(16 - P["ko"], 16 * 2048, P["wob"], True); run(P["ko"], 16 * 2048, P["wo"], True)
stamp(3)
p6map()
if LOC: lin(st0, [(256 * 2048, sRB), (4 * 2048, sLD), (256, sC6)]); F2S = 16 * 2048
else: off5(2048); lin(st0, [(128 * 2048, sRB), (2 * 2048, sLD), (512, sC6)]); F2S = 8 * 2048
begin(sW2, SL1)
if P["f2pre"]:
    V("s_cmp_ge_u32 s%d, 14", sz); a("s_cbranch_scc1 L_nf2p")
    spin(B_MF, sleep=1); run(P["f2pre"], F2S, P["wo"])
    a.label("L_nf2p")
if P["lh3"]:
    V("v_cmp_ne_u32 vcc, v%d, v%d", vHD, vTW); a("s_cbranch_vccz L_h3y"); a("s_waitcnt vmcnt(0)"); a.label("L_h3y")
tail(P["g3"], 4, P["cpre"])
if P["cpre"]:
    V("s_cmp_ge_u32 s%d, 14", sz); a("s_cbranch_scc1 L_ncp"); run(P["cpre"], F2S, 16); a.label("L_ncp")
a("s_barrier")
if P["lh4"]: hsend(O_H4)
a("s_barrier"); stamp(5)
V("s_cmp_ge_u32 s%d, 14", sz); a("s_cbranch_scc1 L_fin")
if P["pt5"]: hpoll(O_H5, 1)
run(16 - P["f2pre"] - P["cpre"], F2S, P["wf2"])
if LH5:
    wsb(sB3, [(2048, sx), (128, sz)], O_H5); V("v_mov_b32 v%d, 0", TMP + 1); V("s_mov_b32 s%d, 40", sCNT)
tail(P["g5"], 6)
if LH5:
    V("s_cmp_lg_u32 s%d, 0", sLD); a("s_cbranch_scc1 L_h5d")
    a("s_mov_b64 exec, 1")
    a.label("L_h5")
    V("global_load_dword v%d, v%d, s[%d:%d] sc1", vCN, TMP + 1, sB3, sB3 + 1); a("s_waitcnt vmcnt(0)")
    V("v_cmp_ne_u32 vcc, s%d, v%d", sTW, vCN); a("s_cbranch_vccz L_h5o")
    V("s_sub_u32 s%d, s%d, 1", sCNT, sCNT); a("s_cbranch_scc0 L_h5")
    a.label("L_h5o"); a("s_mov_b64 exec, -1")
    if P["m5"]: a("s_sleep %d" % P["m5"])
    a.label("L_h5d")
    a("s_barrier")
a("s_barrier")
a("s_branch L_fin")
a.label("L_comp")
V("s_sub_u32 s%d, s%d, 4", sJ, sLD)
if P["cprio"]: a("s_setprio %d" % P["cprio"])
V("v_lshlrev_b32 v%d, 11, v%d", TMP + 1, TMP); V("v_and_b32 v%d, 31, v%d", TMP + 2, vL)
V("v_lshl_add_u32 v%d, v%d, 1, v%d", TMP + 3, TMP + 2, TMP + 1)
V("s_lshl_b32 s%d, s%d, 6", st0, sy); V("v_add_u32 v%d, s%d, v%d", TMP + 4, st0, TMP + 3)
V("v_lshl_add_u32 v%d, v%d, 3, v%d", TMP + 5, TMP + 2, TMP + 1); V("s_lshl_b32 s%d, s%d, 8", st0, sJ); V("v_add_u32 v%d, s%d, v%d", TMP + 5, st0, TMP + 5)
lin(st1, [(256, sx), (32, sJ)])
V("v_and_b32 v%d, 1, v%d", TMP + 6, vG); V("v_lshlrev_b32 v%d, 11, v%d", TMP + 6, TMP + 6); V("v_lshl_add_u32 v%d, v%d, 1, v%d", TMP + 6, vC, TMP + 6); V("v_add_u32 v%d, s%d, v%d", TMP + 6, st1, TMP + 6)
V("v_mov_b32 v%d, 0", TMP + 8); V("v_lshl_add_u32 v%d, v%d, 2, v%d", TMP + 9, TMP + 2, vZ)
V("ds_write_b32 v%d, v%d", TMP + 9, TMP + 8)
a("s_waitcnt lgkmcnt(0)")
V("global_load_dwordx2 v[%d:%d], v%d, s[%d:%d]", vXS, vXS + 1, TMP + 5, sX, sX + 1)
V("global_load_ushort v%d, v%d, s[%d:%d]", GL, TMP + 4, sC, sC + 1)
V("global_load_ushort v%d, v%d, s[%d:%d]", vXD, TMP + 6, sX, sX + 1)
V("s_load_dword s%d, s[%d:%d], 0", sEP, sWS, sWS + 1)
a("s_barrier")
V("s_and_b32 s%d, s%d, 15", sz, sy)
V("s_mov_b32 s%d, 0x%x", sTM, TAGM); V("s_mov_b32 s%d, 0", sHI); V("s_mov_b32 s%d, -1", sHI + 1)
V("v_add_u32 v%d, s%d, v%d", vFL, sJ, vZ)
V("s_lshl_b32 s%d, s%d, 7", st0, sJ); V("v_and_b32 v%d, 7, v%d", TMP + 4, vL); V("v_lshl_add_u32 v%d, v%d, 4, s%d", vJQ, TMP + 4, st0)
V("v_lshl_add_u32 v%d, v%d, 2, s%d", vPUB, TMP + 2, st0)
V("v_bfe_u32 v%d, v%d, 2, 3", TMP + 16, vL); V("v_lshl_add_u32 v%d, v%d, 4, v%d", TMP + 17, TMP, TMP + 16)
V("v_xor_b32 v%d, s%d, v%d", TMP + 4, sJ, TMP + 16); V("v_lshlrev_b32 v%d, 5, v%d", TMP + 4, TMP + 4); V("v_and_b32 v%d, 3, v%d", TMP + 5, vL); V("v_lshl_add_u32 v%d, v%d, 3, v%d", TMP + 4, TMP + 5, TMP + 4)
V("v_lshl_add_u32 v%d, v%d, 9, v%d", vTR5, TMP + 17, TMP + 4); V("v_lshl_add_u32 v%d, v%d, 8, v%d", vTR2, TMP + 17, TMP + 4)
vGH = TMP + 14
V("v_bfe_u32 v%d, v%d, 2, 1", TMP + 4, vL); V("v_mul_u32_u24 v%d, %d, v%d", TMP + 7, ASTR, TMP + 4); V("v_lshl_add_u32 v%d, v%d, 4, v%d", TMP + 4, vG, TMP + 7); V("v_add_u32 v%d, v%d, v%d", TMP + 13, TMP + 4, vZ)
V("v_and_b32 v%d, 1, v%d", TMP + 4, vL); V("v_mul_u32_u24 v%d, 0xaaaa, v%d", vIX, TMP + 4); V("v_add_u32 v%d, 0x4444, v%d", vIX, vIX)
V("v_lshl_add_u32 v%d, v%d, 4, v%d", vGH, TMP + 4, vZ); V("v_lshl_add_u32 v%d, v%d, 5, v%d", vGH, vG, vGH); V("v_add_u32 v%d, v%d, v%d", vAF, vGH, TMP + 7)
vW32 = TMP + 18
swapbits(TMP + 4, TMP + 2, TMP + 5, 2, 3); V("v_mul_u32_u24 v%d, %d, v%d", TMP + 5, ASTR, TMP); V("v_lshl_add_u32 v%d, v%d, 1, v%d", TMP + 4, TMP + 4, TMP + 5); V("v_add_u32 v%d, v%d, v%d", vW32, TMP + 4, vZ)
V("v_and_b32 v%d, 3, v%d", TMP + 4, vL); V("v_lshl_add_u32 v%d, v%d, 2, v%d", TMP + 4, TMP + 4, vG); V("s_lshl_b32 s%d, s%d, 4", st0, sJ); V("v_add_u32 v%d, s%d, v%d", TMP + 4, st0, TMP + 4)
swapbits(TMP + 4, TMP + 4, TMP + 5, 1, 3); V("v_lshl_add_u32 v%d, v%d, 1, v%d", TMP + 4, TMP + 4, TMP + 7); V("v_add_u32 v%d, v%d, v%d", vWV, TMP + 4, vZ)
V("v_and_b32 v%d, 1, v%d", TMP + 4, vG); V("v_lshlrev_b32 v%d, 7, v%d", TMP + 10, TMP); V("v_lshl_add_u32 v%d, v%d, 3, v%d", TMP + 10, TMP + 4, TMP + 10); V("v_add3_u32 v%d, v%d, v%d, s%d", TMP + 10, TMP + 10, vZ, st0)
V("v_lshlrev_b32 v%d, 7, v%d", TMP + 11, TMP + 4); V("v_lshl_add_u32 v%d, v%d, 3, v%d", TMP + 11, vC, TMP + 11); V("v_add_u32 v%d, v%d, v%d", TMP + 11, TMP + 11, vZ)
V("v_add_u32 v%d, %d, v%d", TMP + 12, SLA, vTR5)
wsb(sB, [(32768, sx), (1024, sy)], O_S1)
if STAMPS: wsb(sSTB, [(NST * 8 * 12, 2), (NST * 8, sLD)], 128 << 20)
V("s_mov_b32 s%d, 0x3f803f80", st0)
V("s_cmp_eq_u32 s%d, 0", sy); V("s_cselect_b32 s%d, 1.0, 0", st2)
a("s_waitcnt vmcnt(0)")
V("v_dot2_f32_bf16 v%d, v%d, s%d, 0", GD, vXS, st0); V("v_dot2_f32_bf16 v%d, v%d, v%d, 0", GD + 1, vXS, vXS)
V("v_dot2_f32_bf16 v%d, v%d, s%d, v%d", GD, vXS + 1, st0, GD); V("v_dot2_f32_bf16 v%d, v%d, v%d, v%d", GD + 1, vXS + 1, vXS + 1, GD + 1)
V("v_lshlrev_b32 v%d, 16, v%d", GL, GL)
V("v_mul_f32 v%d, 0xbfb8aa3b, v%d", GL + 2, GL); V("v_exp_f32 v%d, v%d", GL + 2, GL + 2)
allred([GD, GD + 1], 2)
V("v_add_f32 v%d, 1.0, v%d", GL + 2, GL + 2); V("v_rcp_f32 v%d, v%d", GL + 2, GL + 2)
for r in (GD, GD + 1): dpp("v_add_f32", r, r, r, "row_half_mirror")
V("v_mul_f32 v%d, v%d, v%d", GL, GL, GL + 2); pack(GL)
for r in (GD, GD + 1): dpp("v_add_f32", r, r, r, "row_mirror")
V("ds_write_b16 v%d, v%d offset:%d", vW32, GL, A_C1)
V("ds_write_b64 v%d, v[%d:%d] offset:%d", TMP + 10, GD, GD + 1, A_ST1)
arrive(B_P1A)
V("v_lshlrev_b32 v%d, 16, v%d", vXD, vXD)
a("s_waitcnt lgkmcnt(0)")
V("s_add_u32 s%d, s%d, 0x9e5", sT, sEP); V("s_and_b32 s%d, s%d, s%d", sT, sT, sTM); V("v_mov_b32 v%d, s%d", vT, sT)
V("s_mul_i32 s%d, s%d, 0x00100101", sTW, sT); V("s_xor_b32 s%d, s%d, 0x5a5a0000", sTW, sTW); V("v_mov_b32 v%d, s%d", vTW, sTW)
spin(B_P1A)
V("ds_read_b64 v[%d:%d], v%d offset:%d", GD, GD + 1, TMP + 11, A_ST1); emit(afr(TMP + 13, A_C1, 1))
a("s_waitcnt lgkmcnt(0)")
allred([GD, GD + 1], 4); lnstats(GD, GD + 1)
V("v_sub_f32 v%d, v%d, v%d", vXD, vXD, GD); V("v_mul_f32 v%d, v%d, v%d", vXD, vXD, GD + 1)
landed(4)
stamp(1)
emit(trl(WA, 512, (0,), TMP + 12, 0)); emit(trl(WA + 4, 512, (0,), TMP + 12, 256))
a("s_waitcnt lgkmcnt(0)")
mfma(ACC + 4, vA, WA + 4, True); mfma(ACC, vA, WA, True)
V("v_add_f32 v%d, s%d, v%d", ACC + 4, st2, ACC + 4); V("v_fmac_f32 v%d, v%d, v%d", ACC, vXD, ACC + 4); tag([ACC])
pub32(ACC, vPUB, sB)
stamp(2)
def late(grp):
    mtile(grp)
    V("v_and_b32 v%d, 4, v%d", TMP + 5, vL); V("v_lshlrev_b32 v%d, 9, v%d", TMP + 5, TMP + 5); V("v_and_b32 v%d, 3, v%d", TMP + 6, vL)
    V("v_lshl_add_u32 v%d, v%d, 3, v%d", TMP + 5, TMP + 6, TMP + 5); V("v_lshl_add_u32 v%d, v%d, 1, v%d", TMP + 19, vG, TMP + 5)
    lin(st0, [(2, sMR0), (32, sJ)]); V("v_add_u32 v%d, s%d, v%d", TMP + 6, st0, TMP + 19); V("v_min_u32 v%d, 4094, v%d", TMP + 7, TMP + 6)
    V("global_load_ushort v%d, v%d, s[%d:%d]", vGA, TMP + 7, sC, sC + 1)
    if NM[grp] > 8:
        V("v_add_u32 v%d, 256, v%d", TMP + 6, TMP + 6); V("v_min_u32 v%d, 4094, v%d", TMP + 6, TMP + 6)
        V("global_load_ushort v%d, v%d, s[%d:%d]", GL + 7, TMP + 6, sC, sC + 1)
    if grp == 0:
        lin(st0, [(256, sx), (32, sJ)]); V("v_add_u32 v%d, s%d, v%d", TMP + 19, st0, TMP + 19)
        V("global_load_ushort v%d, v%d, s[%d:%d]", vX, TMP + 19, sX, sX + 1)
def late_use(grp, ny=0):
    a("s_waitcnt vmcnt(%d)" % ny)
    V("v_lshlrev_b32 v%d, 16, v%d", vGA, vGA); silu(vGA, vCB); pack(vGA)
    V("ds_write_b16 v%d, v%d offset:%d", vWV, vGA, A_C2)
    if NM[grp] > 8:
        V("v_lshlrev_b32 v%d, 16, v%d", GL + 7, GL + 7); silu(GL + 7, vCB); pack(GL + 7)
        V("ds_write_b16 v%d, v%d offset:%d", vWV, GL + 7, A_C2 + 256)
    if grp == 0: V("v_lshlrev_b32 v%d, 16, v%d", vX, vX)
def p1b(grp, slot, thr, front):
    if front: arrive(B_C2); spin(B_C2, sleep=1)
    nd = NM[grp] // 4
    emit(afr(vAF, A_C2, nd)); zacc(4)
    V("v_add_u32 v%d, %d, v%d", TMP + 1, slot, vTR2)
    wsb(sB6, [(32768, sMCB), (8192, sMOD), (1024, sMRB)], O_SM)
    landed(thr)
    emit(trl(WA, 256, range(2 * nd), TMP + 1))
    arrive(B_MF)
    gemv1(WA, nd, lambda d: 4 * (nd - 1 - d) + 1)
    pub32(ACC, vPUB, sB6)
vG8 = TMP + 8
a("s_cmp_ge_u32 s2, 128"); a("s_cbranch_scc1 L_B")
late(0)
vL16, vQW, vQA, vMW, vPW, vPA, vVB, vLW, vLR, vMR, vS3, vH2, vSH = TMP + 8, TMP + 9, TMP + 10, TMP + 11, TMP + 12, TMP + 13, TMP + 15, TMP + 16, TMP + 17, TMP + 18, vXS, vXS + 1, vXD
vVA = TMP + 1
wsb(sB, [(32768, sx), (4096, sJ)], O_S2)
V("v_lshlrev_b32 v%d, 4, v%d", vL16, vL)
V("v_and_b32 v%d, 31, v%d", vQW, vL); V("v_lshlrev_b32 v%d, 3, v%d", vQW, vQW); V("v_lshrrev_b32 v%d, 5, v%d", TMP + 4, vL); V("v_lshl_add_u32 v%d, v%d, 2, v%d", vQW, TMP + 4, vQW)
V("s_mul_i32 s%d, s%d, 288", st0, sJ); V("v_add3_u32 v%d, v%d, v%d, s%d", vQW, vQW, vZ, st0)
V("v_lshlrev_b32 v%d, 5, v%d", vPW, TMP + 4); V("v_bfe_u32 v%d, v%d, 3, 2", TMP + 5, vL); V("v_lshl_add_u32 v%d, v%d, 2, v%d", vPW, TMP + 5, vPW)
V("v_and_b32 v%d, 7, v%d", TMP + 4, vL)
V("v_mul_u32_u24 v%d, %d, v%d", TMP + 5, PSTR, TMP + 4); V("s_lshl_b32 s%d, s%d, 6", st0, sJ); V("s_add_u32 s%d, s%d, %d", st0, st0, LS + A_P); V("v_add3_u32 v%d, v%d, v%d, s%d", vPW, vPW, TMP + 5, st0)
V("v_bfe_u32 v%d, v%d, 1, 3", TMP + 5, vL); V("v_mul_u32_u24 v%d, %d, v%d", vPA, PSTR, TMP + 5); V("v_add_u32 v%d, v%d, v%d", vPA, vPA, vGH)
V("v_mul_u32_u24 v%d, 288, v%d", vQA, TMP + 4); V("v_lshl_add_u32 v%d, v%d, 4, v%d", vQA, vG, vQA); V("v_add_u32 v%d, v%d, v%d", vQA, vQA, vZ)
V("v_lshl_add_u32 v%d, v%d, 5, v%d", vMR, TMP + 4, vZ); V("s_lshl_b32 s%d, s%d, 2", st0, sJ); V("v_add_u32 v%d, s%d, v%d", vMW, st0, vMR)
V("v_mul_u32_u24 v%d, 272, v%d", vLW, TMP + 4); V("v_lshrrev_b32 v%d, 3, v%d", TMP + 6, vL); V("v_lshl_add_u32 v%d, v%d, 2, v%d", vLW, TMP + 6, vLW)
V("s_lshl_b32 s%d, s%d, 5", st0, sJ); V("v_add3_u32 v%d, v%d, v%d, s%d", vLW, vLW, vZ, st0)
V("v_mul_u32_u24 v%d, 272, v%d", vLR, TMP + 6); V("v_lshl_add_u32 v%d, v%d, 5, v%d", vLR, TMP + 4, vLR); V("v_add_u32 v%d, v%d, v%d", vLR, vLR, vZ)
V("v_lshl_add_u32 v%d, v%d, 2, v%d", vH2, vL, vZ)
V("v_xor_b32 v%d, v%d, v%d", GL, TMP + 4, vG); V("v_lshlrev_b32 v%d, 4, v%d", GL, GL); V("v_lshl_add_u32 v%d, v%d, 8, v%d", GL, TMP + 4, GL)
V("v_and_b32 v%d, 8, v%d", TMP + 4, vL); V("v_lshl_add_u32 v%d, v%d, 9, v%d", GL, TMP + 4, GL)
V("s_lshl_b32 s%d, s%d, 13", st0, sJ); V("v_add_u32 v%d, s%d, v%d", GL, st0, GL)
for s in range(1, 4): V("v_xor_b32 v%d, %d, v%d", GL + s, s << 6, GL)
V("s_mov_b32 s%d, 0xff00ff00", sMSK); V("s_mov_b32 s%d, 0xff00ff00", sMSK + 1)
V("v_lshlrev_b32 v%d, 15, v%d", vS3, vG); V("v_lshl_add_u32 v%d, v%d, 3, v%d", vS3, vC, vS3)
V("v_and_b32 v%d, 1, v%d", vSH, vL); V("v_mul_u32_u24 v%d, 12, v%d", vSH, vSH); V("v_sub_u32 v%d, 20, v%d", vSH, vSH)
V("s_lshl_b32 s%d, s%d, 1", st0, sJ); V("s_and_b32 s%d, s%d, 7", st0, st0); V("s_xor_b32 s%d, s%d, s%d", st0, st0, sJ); V("s_lshl_b32 s%d, s%d, 5", st0, st0); V("s_xor_b32 s%d, s%d, 32", st0, st0)
V("v_xor_b32 v%d, s%d, v%d", vVB, st0, vTR2); V("v_add_u32 v%d, %d, v%d", vVB, SL1, vVB)
V("s_and_b32 s%d, s%d, 3", st1, sx); V("s_lshr_b32 s%d, s%d, 2", st2, sx)
wsb(sB2, [(8 * 16384, st1), (4096, sJ), (256, sz), (128, st2)], O_S3); base(sB3, sB2, None, 16384)
SC = struct.unpack("<I", struct.pack("<f", 128 ** -0.5 * math.log2(math.e)))[0]
V("s_mov_b32 s%d, 0x%08x", st1, SC)
late_use(0)
if MA: p1b(0, SLM_A, EA_M, True); stamp(13)
V("v_xor_b32 v%d, 32, v%d", vVA, vVB)
landed(EA_K)
for s in range(4):
    for t in range(2): V("ds_read_b128 v[%d:%d], v%d offset:%d", WA + 16 * t + 4 * s, WA + 16 * t + 4 * s + 3, GL + (s ^ (2 * t)), SL0 + t * 2048)
a("s_barrier")
stamp(3)
g2 = [gl(GD + 4 * i, vL16, sB, i * 1024) for i in range(4)]
emit(g2)
if P["apre"]: a("s_waitcnt lgkmcnt(0)"); a("s_barrier")
gfinish(g2, R(GD, 16), cnt=1)
stamp(4)
add4(GD, GD + 4); add4(GD + 8, GD + 12); add4(GD, GD + 8)
V("v_permlane32_swap_b32 v%d, v%d", GD, GD + 2); V("v_permlane32_swap_b32 v%d, v%d", GD + 1, GD + 3)
V("v_add_f32 v%d, v%d, v%d", GD, GD, GD + 2); V("v_add_f32 v%d, v%d, v%d", GD + 1, GD + 1, GD + 3)
V("v_cvt_pk_bf16_f32 v%d, v%d, v%d", GD, GD, GD + 1)
V("ds_write_b32 v%d, v%d offset:%d", vQW, GD, A_Q)
hbar(afr(vQA, A_Q, 4, GD, 64))
def pvonly(xs):
    l = a.lab("Nv"); V("s_cmp_ge_u32 s%d, 4", sJ); a("s_cbranch_scc1 %s" % l); emit(xs); a.label(l)
vall = trl(WB, 256, range(8), vVA) + trl(vA, 256, range(8), vVB)
n1 = (12, 20, 32)[P["vpos"]]
for s in range(4):
    a("s_waitcnt lgkmcnt(%d)" % (3 - s))
    for t in range(2): mfma(ACC + 4 * t, WA + 16 * t + 4 * s, GD + 4 * s, s == 0)
pvonly(vall[:n1]); a("s_nop 5")
for i in range(4): V("v_cndmask_b32 v%d, v%d, v%d, s[%d:%d]", GD + i, ACC + i, ACC + 4 + i, sMSK, sMSK + 1)
V("v_max_f32 v%d, v%d, v%d", GL, GD, GD + 1); V("v_max3_f32 v%d, v%d, v%d, v%d", GL, GL, GD + 2, GD + 3)
zacc(4)
dpp("v_max_f32", GL, GL, GL, "row_ror:8")
V("v_mov_b32 v%d, v%d", GL + 1, GL); V("v_mov_b64 v[%d:%d], 0", ACC + 4, ACC + 5); V("v_mov_b64 v[%d:%d], 0", ACC + 6, ACC + 7)
V("v_permlane16_swap_b32 v%d, v%d", GL, GL + 1); V("v_max_f32 v%d, v%d, v%d", GL, GL, GL + 1)
V("v_mov_b32 v%d, v%d", GL + 1, GL); V("v_permlane32_swap_b32 v%d, v%d", GL, GL + 1); V("v_max_f32 v%d, v%d, v%d", GL, GL, GL + 1)
a("s_mov_b64 exec, 0xff"); V("ds_write_b32 v%d, v%d offset:%d", vMW, GL, A_MX); a("s_mov_b64 exec, -1")
hbar(["ds_read_b128 v[%d:%d], v%d offset:%d" % (GL + 4 * i, GL + 4 * i + 3, vMR, A_MX + 16 * i) for i in range(2)])
a("s_waitcnt lgkmcnt(0)")
V("v_max3_f32 v%d, v%d, v%d, v%d", GL, GL, GL + 1, GL + 2); V("v_max3_f32 v%d, v%d, v%d, v%d", GL + 4, GL + 4, GL + 5, GL + 6)
V("v_max3_f32 v%d, v%d, v%d, v%d", GL, GL, GL + 3, GL + 7); V("v_max_f32 v%d, v%d, v%d", GL, GL, GL + 4)
V("v_mul_f32 v%d, s%d, v%d", GL, st1, GL)
for i in range(4): V("v_fma_f32 v%d, v%d, s%d, -v%d", GD + i, GD + i, st1, GL)
for i in range(4): V("v_exp_f32 v%d, v%d", GD + i, GD + i)
for i in range(2): V("v_cvt_pk_bf16_f32 v%d, v%d, v%d", GL + 2 + i, GD + 2 * i, GD + 2 * i + 1)
V("ds_write2_b32 v%d, v%d, v%d offset0:0 offset1:4", vPW, GL + 2, GL + 3)
V("v_add_f32 v%d, v%d, v%d", GD, GD, GD + 1); V("v_add_f32 v%d, v%d, v%d", GD + 2, GD + 2, GD + 3); V("v_add_f32 v%d, v%d, v%d", GD, GD, GD + 2)
V("ds_write_b32 v%d, v%d offset:%d", vLW, GD, A_LS)
if n1 < 32: pvonly(vall[n1:])
hbar()
V("s_cmp_ge_u32 s%d, 4", sJ); a("s_cbranch_scc1 L_nopv")
pf_ = afr(vPA, A_P, 4, WA)
emit(["ds_read_b128 v[%d:%d], v%d offset:%d" % (GD + 8 + 4 * i, GD + 11 + 4 * i, vLR, A_LS + 16 * i) for i in range(2)] + ["ds_read_b32 v%d, v%d offset:%d" % (GL + 1, vH2, A_MX)] + pf_)
for d in range(4):
    a("s_waitcnt lgkmcnt(%d)" % (3 - d))
    for t in range(2): smf(ACC + 4 * t, WA + 4 * d, (WB, vA)[t] + 8 * d)
    if d == 0:
        add4(GD + 8, GD + 12); V("v_add_f32 v%d, v%d, v%d", GD + 8, GD + 8, GD + 9); V("v_add_f32 v%d, v%d, v%d", GD + 10, GD + 10, GD + 11); V("v_add_f32 v%d, v%d, v%d", GL, GD + 8, GD + 10)
    else:
        ctl = ("quad_perm:[1,0,3,2]", "quad_perm:[2,3,0,1]", "row_half_mirror")[d - 1]
        dpp("v_max_f32", GL + 1, GL + 1, GL + 1, ctl); dpp("v_add_f32", GL, GL, GL, ctl)
V("v_log_f32 v%d, v%d", GL + 2, GL); V("v_rcp_f32 v%d, v%d", GL, GL)
V("v_fmac_f32 v%d, s%d, v%d", GL + 2, st1, GL + 1); V("v_mov_b32 v%d, v%d", GL + 1, GL)
V("v_lshrrev_b32 v%d, v%d, v%d", GL + 2, vSH, GL + 2)
for k in range(2):
    for t in range(2): V("v_add_f32 v%d, v%d, v%d", GD + 2 * k + t, ACC + 4 * t + 2 * k, ACC + 4 * t + 2 * k + 1)
V("v_mov_b32_dpp v%d, v%d row_ror:8 row_mask:0xf bank_mask:0x3", GL + 1, GL); V("v_mov_b32 v%d, v%d", GL + 3, GL + 2)
V("v_mov_b32_dpp v%d, v%d row_ror:8 row_mask:0xf bank_mask:0xc", GL, GL)
V("v_mov_b32_dpp v%d, v%d row_ror:8 row_mask:0xf bank_mask:0x3", GL + 3, GL + 2); V("v_mov_b32_dpp v%d, v%d row_ror:8 row_mask:0xf bank_mask:0xc", GL + 2, GL + 2)
for k in range(2):
    for t in range(2): V("v_mul_f32 v%d, v%d, v%d", GD + 2 * k + t, GD + 2 * k + t, GL + k)
    V("v_bfi_b32 v%d, s%d, v%d, v%d", GD + 2 * k, sTM, vT, GD + 2 * k); V("v_bfi_b32 v%d, s%d, v%d, v%d", GD + 2 * k + 1, sTM, GL + 2 + k, GD + 2 * k + 1)
    V("global_store_dwordx2 v%d, v[%d:%d], s[%d:%d] sc1", vS3, GD + 2 * k, GD + 2 * k + 1, (sB2, sB3)[k], (sB2, sB3)[k] + 1)
a.label("L_nopv")
stamp(5)
a("s_barrier")
if not MA: p1b(0, SLM_A, EA_M, False); stamp(13)
V("s_cmp_ge_u32 s%d, 14", sz); a("s_cbranch_scc1 L_fin")
vG4, vP5, vA5, vS2W, vF1, vP5U, vG6, vGB = TMP + 9, TMP + 10, TMP + 11, TMP + 12, TMP + 13, TMP + 15, TMP + 16, TMP + 17
GM = WB
V("v_lshrrev_b32 v%d, 3, v%d", vG4, vL); V("v_lshl_add_u32 v%d, v%d, 10, v%d", vG8, vG4, vJQ)
wsb(sB, [(32768, sx)], O_SM); base(sB2, sB, None, 8192); base(sB3, sB, None, 16384); base(sB4, sB, None, 24576)
wsb(sB5, [(16384, sx)], O_S4)
V("v_add_u32 v%d, %d, v%d", vF1, SL0 if MA else SL1, vTR5)
V("v_cmp_gt_u32 s[%d:%d], 7, v%d", sMSK, sMSK + 1, vG4); V("v_min_u32 v%d, 6, v%d", vG6, vG4)
V("v_lshl_add_u32 v%d, v%d, %d, v%d", vG6, vG6, 11 if LOC else 12, vJQ); V("v_lshl_add_u32 v%d, v%d, 11, v%d", vG4, vG4, vJQ)
V("v_lshrrev_b32 v%d, 5, v%d", vP5, vL); V("v_mul_u32_u24 v%d, %d, v%d", vP5U, O_S5T - O_S5U, vP5); V("v_add_u32 v%d, v%d, v%d", vP5U, vP5U, vPUB); V("v_lshl_add_u32 v%d, v%d, 13, v%d", vP5, vP5, vPUB)
if VT: V("v_mov_b32 v%d, 2", vA5)
else: V("v_bfe_u32 v%d, v%d, 3, 1", vA5, vL); V("v_lshlrev_b32 v%d, 1, v%d", vA5, vA5)
V("v_and_b32 v%d, 2, v%d", TMP + 4, vL); V("v_cmp_ne_u32 vcc, 0, v%d", TMP + 4); V("v_cndmask_b32 v%d, v%d, 1, vcc", vA5, vA5)
V("v_mul_u32_u24 v%d, %d, v%d", vA5, 2 * ASTR, vA5); V("v_add_u32 v%d, v%d, v%d", vA5, vA5, vAF)
V("v_and_b32 v%d, 4, v%d", vS2W, vL); V("v_lshlrev_b32 v%d, 6, v%d", vS2W, vS2W); V("v_lshl_add_u32 v%d, v%d, 3, v%d", vS2W, vG, vS2W); V("s_lshl_b32 s%d, s%d, 5", st0, sJ); V("v_add3_u32 v%d, v%d, v%d, s%d", vS2W, vS2W, vZ, st0)
zacc()
gm = [gl(GM + 4 * i, vG8, (sB, sB2, sB3, sB4)[i]) for i in range(4)]
g4 = [gl(GD + 4 * i, vG4, sB5, i * 1024) for i in range(2)]
a("s_barrier")
stamp(7)
emit(gm)
if P["gj"] == 1: emit(g4)
if P["lh4"]:
    assert P["gj"] == 0
    V("ds_read_b32 v%d, v%d offset:%d", TMP + 2, vZ, F_H4); a("s_waitcnt lgkmcnt(0)"); V("v_readfirstlane_b32 s%d, v%d", sALT, TMP + 2)
    V("s_cmp_eq_u32 s%d, 0", sALT); a("s_cbranch_scc1 L_g4a"); emit(g4); a.label("L_g4a")
if P["g4"]: a("s_barrier")
if P["gj"] == 2: emit(g4)
tr2(WA, vF1, 0, vF1, 256)
gfinish(gm, R(GM, 16), cnt=0x100, nyoung=2 if P["gj"] else 0)
if P["lh4"]:
    V("s_cmp_lg_u32 s%d, 0", sALT); a("s_cbranch_scc1 L_g4b"); emit(g4); a.label("L_g4b")
elif not P["gj"]: emit(g4)
stamp(6)
swapred([GM, GM + 4, GM + 8, GM + 12])
V("v_mov_b32 v%d, v%d", vGA, GM); V("v_add_f32 v%d, 1.0, v%d", vCB, GM + 8); V("v_mov_b32 v%d, v%d", vGB, GM + 12); pack(GM + 4); pack(vCB, GM + 2)
V("ds_write_b16 v%d, v%d offset:%d", vWV, GM + 2, A_X + 2 * ASTR); V("ds_write_b16 v%d, v%d offset:%d", vWV, GM + 4, A_X + 4 * ASTR)
wsb(sB3, [(16384, sz), (1024, sx)], O_S5U); base(sB, sB3, None, O_S5V - O_S5U); base(sB2, sB3, None, O_S5T - O_S5U if VT else 8192)
if VT:
    hbar(afr(vA5, A_X, 2))
    gemv2(WA)
    for h in range(2):
        V("v_add_f32 v%d, v%d, v%d", GL + h, ACC + 4 * h, ACC + 4 * h + 1); V("v_add_f32 v%d, v%d, v%d", GL + 2 + h, ACC + 4 * h + 2, ACC + 4 * h + 3)
    zacc()
    for k in range(2):
        V("v_cndmask_b32 v%d, v%d, v%d, s[%d:%d]", GL + 2 * k, GL + 2 * k, GL + 2 * k + 1, sHI, sHI + 1); tag([GL + 2 * k])
        V("global_store_dword v%d, v%d, s[%d:%d] sc1", vP5, GL + 2 * k, (sB2, sB)[k], (sB2, sB)[k] + 1)
    stamp(14)
gfinish(g4, R(GD, 8), cnt=0x10000, nyoung=2 if VT else 0)
stamp(8)
add4(GD, GD + 4); swapred([GD])
V("v_fmac_f32 v%d, v%d, v%d", vX, vGA, GD)
V("v_mul_f32 v%d, v%d, v%d", GD, vX, vCB); V("v_mul_f32 v%d, v%d, v%d", GD + 3, vX, vX); pack(GD)
dpp("v_add_f32", GD + 2, vX, vX, "quad_perm:[1,0,3,2]"); dpp("v_add_f32", GD + 3, GD + 3, GD + 3, "quad_perm:[1,0,3,2]")
V("ds_write_b16 v%d, v%d offset:%d", vWV, GD, A_X)
dpp("v_add_f32", GD + 2, GD + 2, GD + 2, "quad_perm:[2,3,0,1]"); dpp("v_add_f32", GD + 3, GD + 3, GD + 3, "quad_perm:[2,3,0,1]")
V("ds_write_b64 v%d, v[%d:%d] offset:%d", vS2W, GD + 2, GD + 3, A_ST2)
hbar(afr(vAF if VT else vA5, A_X, 2))
gemv2(WA)
def sel2(mask):
    for h in range(2): V("v_add_f32 v%d, v%d, v%d", GD + h, ACC + 4 * h, ACC + 4 * h + 1)
    V("v_cndmask_b32 v%d, v%d, v%d, s[%d:%d]", GD, GD, GD + 1, mask, mask + 1); tag([GD])
if VT:
    sel2(sHI); V("global_store_dword v%d, v%d, s[%d:%d] sc1", vP5, GD, sB3, sB3 + 1)
else:
    for h in range(2):
        V("v_add_f32 v%d, v%d, v%d", GD + h, ACC + 4 * h, ACC + 4 * h + 1); tag([GD + h])
        V("global_store_dword v%d, v%d, s[%d:%d] sc1", vP5U, GD + h, (sB3, sB2)[h], (sB3, sB2)[h] + 1)
    for h in range(2): V("v_add_f32 v%d, v%d, v%d", GD + 2 + h, ACC + 4 * h + 2, ACC + 4 * h + 3)
    V("v_cndmask_b32 v%d, v%d, v%d, s[%d:%d]", GD + 2, GD + 2, GD + 3, sHI, sHI + 1); tag([GD + 2])
    V("global_store_dword v%d, v%d, s[%d:%d] sc1", vP5, GD + 2, sB, sB + 1)
stamp(9)
V("s_cmp_lg_u32 s%d, s%d", sz, sJ); a("s_cbranch_scc1 L_fin")
wsb(sB6, [(NP6 * 1024, sx)], O_S6L if LOC else O_S6); V("s_mov_b32 s%d, 60", sALT)
g6 = [gl(GD + 4 * i, vG6, sB6, i * 1024) for i in range(2 if LOC else 4)]
emit(g6); gfinish(g6, R(GD, 8 if LOC else 16), cnt=0x1000000, alt=(sB6, O_S6L - O_S6) if LOC else None)
add4(GD, GD + 4)
if not LOC: add4(GD + 8, GD + 12); add4(GD, GD + 8)
for i in range(4): V("v_cndmask_b32 v%d, 0, v%d, s[%d:%d]", GD + i, GD + i, sMSK, sMSK + 1)
swapred([GD])
V("v_fmac_f32 v%d, v%d, v%d", vX, vGB, GD); pack(vX)
a("s_mov_b32 exec_lo, 0x00ff00ff"); a("s_mov_b32 exec_hi, 0x00ff00ff")
V("global_store_short v%d, v%d, s[%d:%d]", TMP + 19, vX, sOUT, sOUT + 1)
a("s_mov_b64 exec, -1")
stamp(10)
if P["light"]:
    V("s_memrealtime s[%d:%d]", sSTMP + 2, sSTMP + 3)
    wsb(sSTB, [(16, 2)], 128 << 20)
    a("s_waitcnt lgkmcnt(0)"); V("v_mov_b32 v%d, 0", TMP)
    for i in range(4): V("v_mov_b32 v%d, s%d", TMP + 4 + i, sSTMP + i)
    a("s_mov_b64 exec, 1"); V("global_store_dwordx4 v%d, v[%d:%d], s[%d:%d]", TMP, TMP + 4, TMP + 7, sSTB, sSTB + 1); a("s_mov_b64 exec, -1")
a("s_cmp_lg_u32 s2, 0"); a("s_cbranch_scc1 L_fin")
V("v_mov_b32 v%d, 0", TMP); a("s_mov_b64 exec, 1")
V("global_store_dword v%d, v%d, s[%d:%d] sc1", TMP, vT, sWS, sWS + 1)
a("s_mov_b64 exec, -1")
def amplify():
    V("s_memrealtime s[%d:%d]", sB, sB + 1); a("s_waitcnt lgkmcnt(0)")
    V("s_sub_u32 s%d, s%d, s%d", st0, sSTMP + 2 * AMP, sSTMP); V("s_mul_i32 s%d, s%d, 10", st0, st0); V("s_min_u32 s%d, s%d, 100000", st0, st0)
    a.label("L_amp")
    V("s_memrealtime s[%d:%d]", sB2, sB2 + 1); a("s_waitcnt lgkmcnt(0)")
    V("s_sub_u32 s%d, s%d, s%d", st1, sB2, sB); V("s_cmp_lt_u32 s%d, s%d", st1, st0); a("s_cbranch_scc1 L_amp")
if AMP >= 0 and not P["ampb"]: amplify()
a("s_branch L_fin")
a.label("L_B")
late(1)
vG1, vQ0, vQ1, vA2, vP2, vL16, vW4 = TMP + 9, TMP + 10, TMP + 11, TMP + 12, TMP + 13, TMP + 16, TMP + 17
p6map()
wsb(sB, [(32768, sx)], O_S1)
V("v_lshrrev_b32 v%d, 3, v%d", vG1, vL); V("v_lshl_add_u32 v%d, v%d, 10, v%d", vG8, vG1, vJQ); V("v_lshl_add_u32 v%d, v%d, 12, v%d", vG1, vG1, vJQ)
V("s_lshl_b32 s%d, s%d, 1", st0, sJ); V("s_and_b32 s%d, s%d, 7", st0, st0); V("s_xor_b32 s%d, s%d, s%d", st0, st0, sJ); V("s_lshl_b32 s%d, s%d, 5", st0, st0)
V("s_lshr_b32 s%d, s%d, 2", st1, sJ); V("s_lshl_b32 s%d, s%d, 8", st2, st1)
V("v_xor_b32 v%d, s%d, v%d", vQ0, st0, vTR5); V("v_add_u32 v%d, s%d, v%d", vQ0, st2, vQ0); V("v_xor_b32 v%d, 32, v%d", vQ1, vQ0)
V("v_bfe_u32 v%d, v%d, 3, 1", TMP + 7, vL); V("v_mul_u32_u24 v%d, %d, v%d", TMP + 7, ASTR, TMP + 7); V("v_add_u32 v%d, v%d, v%d", vA2, vGH, TMP + 7)
V("v_lshrrev_b32 v%d, 5, v%d", vP2, vL); V("v_lshl_add_u32 v%d, v%d, 17, v%d", vP2, vP2, vPUB)
wsb(sB2, [(4096 - 512, st1), (8192, sz), (512, sx)], O_S2)
V("s_mov_b32 s%d, 0xffff0000", sMSK); V("s_mov_b32 s%d, 0xffff0000", sMSK + 1)
V("s_and_b32 s%d, s%d, 1", st0, sz); V("s_lshl_b32 s%d, s%d, 1", sHP, sx); V("s_add_u32 s%d, s%d, s%d", sHP, sHP, st0); V("s_lshr_b32 s%d, s%d, 1", sCB, sz)
wsb(sB3, [(32768, sHP), (4096, sJ)], O_S3); wsb(sB4, [(16384, sCB), (1024, sHP)], O_S4)
V("v_lshlrev_b32 v%d, 4, v%d", vL16, vL)
V("v_and_b32 v%d, 1, v%d", TMP + 4, vG); V("v_lshlrev_b32 v%d, 4, v%d", TMP + 4, TMP + 4); V("v_and_b32 v%d, 7, v%d", TMP + 5, vL); V("v_lshl_add_u32 v%d, v%d, 1, v%d", TMP + 4, TMP + 5, TMP + 4)
V("v_lshrrev_b32 v%d, 5, v%d", TMP + 5, vL); V("v_add_u32 v%d, v%d, v%d", TMP + 4, TMP + 4, TMP + 5)
swapbits(TMP + 4, TMP + 4, TMP + 5, 1, 3)
V("v_lshl_add_u32 v%d, v%d, 1, v%d", TMP + 4, TMP + 4, TMP + 7); V("s_lshl_b32 s%d, s%d, 6", st0, sJ); V("v_add3_u32 v%d, v%d, v%d, s%d", vW4, TMP + 4, vZ, st0)
zacc()
g1 = [gl(GD + 4 * i, vG1, sB, i * 1024) for i in range(4)]
a("s_barrier")
stamp(3)
emit(g1)
late_use(1, 4)
if P["g1"] or P["bpre"]: a("s_barrier")
tr2(WA, vQ0, 0, vQ1, 0)
gfinish(g1, R(GD, 16), cnt=1)
stamp(4)
add4(GD, GD + 4); add4(GD + 8, GD + 12); add4(GD, GD + 8); swapred([GD]); pack(GD)
V("ds_write_b16 v%d, v%d offset:%d", vWV, GD, A_X)
hbar(afr(vA2, A_X, 2))
gemv2(WA)
sel2(sMSK)
V("global_store_dword v%d, v%d, s[%d:%d] sc1", vP2, GD, sB2, sB2 + 1)
stamp(5)
a("s_barrier")
p1b(1, SL1, EB_M, False); stamp(6)
V("s_mov_b32 s%d, 0x000fff00", st2)
zacc(4)
g3 = [gl(GD + 4 * k, vL16, sB3, k * 1024) for k in range(4)]
a("s_barrier")
stamp(7)
emit(g3)
if P["g3"] or P["cpre"]: a("s_barrier")
emit(trl(WA, 256, range(8), vTR2))
gfinish(g3, [GD + 2 * k for k in range(8)], cnt=0x100, grp=True)
stamp(8)
for i in range(4): V("v_lshlrev_b32 v%d, 20, v%d", GL + i, GD + 4 * i + 1); V("v_lshlrev_b32 v%d, 8, v%d", GL + 4 + i, GD + 4 * i + 3)
for i in range(4): V("v_bfi_b32 v%d, s%d, v%d, v%d", GL + i, st2, GL + 4 + i, GL + i)
V("v_max_f32 v%d, v%d, v%d", GL + 4, GL, GL + 1); V("v_max3_f32 v%d, v%d, v%d, v%d", GL + 4, GL + 4, GL + 2, GL + 3)
rowred(GL + 4, GL + 5, "v_max_f32")
for i in range(4): V("v_sub_f32 v%d, v%d, v%d", GL + i, GL + i, GL + 4)
for i in range(4): V("v_exp_f32 v%d, v%d", GL + i, GL + i)
for e in range(4): V("v_mul_f32 v%d, v%d, v%d", GD + e, GD + e, GL)
V("v_add_f32 v%d, v%d, v%d", GL + 4, GL, GL + 1); V("v_add_f32 v%d, v%d, v%d", GL + 5, GL + 2, GL + 3); V("v_add_f32 v%d, v%d, v%d", GL + 4, GL + 4, GL + 5)
for e in range(4): V("v_fmac_f32 v%d, v%d, v%d", GD + e, GD + 4 + e, GL + 1)
V("v_mov_b32 v%d, v%d", GL + 5, GL + 4)
for e in range(4): V("v_fmac_f32 v%d, v%d, v%d", GD + e, GD + 8 + e, GL + 2)
V("v_permlane16_swap_b32 v%d, v%d", GL + 4, GL + 5); V("v_add_f32 v%d, v%d, v%d", GL + 4, GL + 4, GL + 5); V("v_mov_b32 v%d, v%d", GL + 5, GL + 4)
for e in range(4): V("v_fmac_f32 v%d, v%d, v%d", GD + e, GD + 12 + e, GL + 3)
V("v_permlane32_swap_b32 v%d, v%d", GL + 4, GL + 5); V("v_add_f32 v%d, v%d, v%d", GL + 4, GL + 4, GL + 5)
V("v_permlane32_swap_b32 v%d, v%d", GD, GD + 2); V("v_permlane32_swap_b32 v%d, v%d", GD + 1, GD + 3)
V("v_add_f32 v%d, v%d, v%d", GD, GD, GD + 2); V("v_add_f32 v%d, v%d, v%d", GD + 1, GD + 1, GD + 3)
V("v_rcp_f32 v%d, v%d", GL + 4, GL + 4)
V("v_permlane16_swap_b32 v%d, v%d", GD, GD + 1); V("v_add_f32 v%d, v%d, v%d", GD, GD, GD + 1)
V("v_mul_f32 v%d, v%d, v%d", GD, GD, GL + 4); pack(GD)
V("ds_write_b16 v%d, v%d offset:%d", vW4, GD, A_Y)
hbar(afr(vAF, A_Y, 4))
gemv1(WA, 4)
pub32(ACC, vPUB, sB4)
stamp(9)
a("s_barrier")
V("s_cmp_ge_u32 s%d, 14", sz); a("s_cbranch_scc1 L_fin")
vG8b, vGS, vP6, vF2 = TMP + 9, TMP + 10, TMP + 11, TMP + 12
NH = 2 if LOC else 1; GV = WB
wsb(sB, [(16384 if LOC else 8192, sRB)], O_S5U); base(sB2, sB, None, O_S5V - O_S5U); base(sB3, sB, None, O_S5T - O_S5U)
V("s_lshr_b32 s%d, s%d, %d", st1, sRB, 0 if LOC else 1); wsb(sB4, [(1024, st1)], O_S5S)
V("v_add_u32 v%d, 8192, v%d", vG8b, vG8)
V("v_and_b32 v%d, 0x38, v%d", vGS, vL); V("v_lshlrev_b32 v%d, 4, v%d", vGS, vGS); V("v_and_b32 v%d, 4, v%d", TMP + 4, vL); V("v_lshl_add_u32 v%d, v%d, 2, v%d", vGS, TMP + 4, vGS)
if LOC:
    lin(st0, [(14 * 1024, sC6), (1024, sRB)], O_S6); V("v_add_u32 v%d, s%d, v%d", vP6, st0, vPUB); base(sB5, sWS, None, O_S6L - O_S6)
    V("v_add_u32 v%d, %d, v%d", vF2, SL1, vTR2)
else:
    V("v_lshrrev_b32 v%d, 5, v%d", vP6, vL); V("v_mul_u32_u24 v%d, %d, v%d", vP6, 28 * 1024, vP6); lin(st0, [(56 * 1024, sC6), (1024, sRB)], O_S6); V("v_add3_u32 v%d, v%d, v%d, s%d", vP6, vP6, vPUB, st0)
    V("v_add_u32 v%d, %d, v%d", vF2, SL1, vTR5)
zacc()
gu = [gl(GL, vGS, sB4)] + [gl(GD + 4 * h, (vG8, vG8b)[h], sB) for h in range(NH)]
gv = [gl(GV + 8 * k + 4 * h, (vG8, vG8b)[h], (sB2, sB3)[k]) for k in range(2) for h in range(NH)]
gvr = [r for k in range(2) for h in range(NH) for r in R(GV + 8 * k + 4 * h)]
a("s_barrier")
if VT: emit(gv)
if not LH5:
    stamp(10); emit(gu)
    if not VT: emit(gv)
if P["g5"]: a("s_barrier")
if LOC: emit(trl(WA, 256, range(8), vF2))
else: tr2(WA, vF2, 0, vF2, 256)
if LH5:
    if VT:
        a("s_waitcnt vmcnt(0)"); check(gvr); stamp(13)
    a("s_barrier"); stamp(10)
    emit(gu)
    if VT:
        a("s_cbranch_vccz L_gvok"); a("s_mov_b64 exec, vcc"); emit(gv); a("s_mov_b64 exec, -1"); a.label("L_gvok")
    else: emit(gv)
gfinish(gu + gv, R(GD, 4 * NH) + gvr, [GL + 1, GL + 3], cnt=0x10000)
stamp(11)
US = []
V("v_permlane32_swap_b32 v%d, v%d", GL, GL + 2)
for d in US: V("v_permlane32_swap_b32 v%d, v%d", d, d + 2); V("v_permlane32_swap_b32 v%d, v%d", d + 1, d + 3)
V("v_add_f32 v%d, v%d, v%d", GL, GL, GL + 2)
for d in US: V("v_add_f32 v%d, v%d, v%d", d, d, d + 2); V("v_add_f32 v%d, v%d, v%d", d + 1, d + 1, d + 3)
dpp("v_add_f32", GL, GL, GL, "row_ror:8")
V("v_mov_b32 v%d, v%d", GL + 1, GL)
for d in US: V("v_permlane16_swap_b32 v%d, v%d", d, d + 1); V("v_add_f32 v%d, v%d, v%d", d, d, d + 1)
V("v_permlane16_swap_b32 v%d, v%d", GL, GL + 1); V("v_add_f32 v%d, v%d, v%d", GL, GL, GL + 1)
V("v_mov_b32 v%d, v%d", GL + 2, GL)
for d in US: dpp("v_add_f32", d, d, d, "row_ror:8")
V("v_permlane32_swap_b32 v%d, v%d", GL, GL + 2)
lnstats(GL, GL + 2)
ne = 4
for h in range(NH):
    for e in range(ne): V("v_fma_f32 v%d, -v%d, v%d, v%d", GD + 4 * h + e, GL, GV + 4 * h + e, GD + 4 * h + e)
for h in range(NH):
    for e in range(ne): V("v_fma_f32 v%d, v%d, v%d, v%d", GD + 4 * h + e, GD + 4 * h + e, GL + 2, GV + 8 + 4 * h + e)
swapred([GD + 4 * h for h in range(NH)])
for h in range(NH): V("v_max_f32 v%d, 0, v%d", GD + 4 * h, GD + 4 * h)
V("v_cvt_pk_bf16_f32 v%d, v%d, v%d", GD, GD, GD + 4 * (NH - 1))
V("ds_write_b16 v%d, v%d offset:%d", vWV, GD, A_Z)
if LOC: V("ds_write_b16_d16_hi v%d, v%d offset:%d", vWV, GD, A_Z + 256)
hbar(afr(vAF, A_Z, 4 if LOC else 2))
if LOC:
    gemv1(WA, 4)
    a("s_mov_b32 exec_hi, 0")
    V("global_store_dword v%d, v%d, s[%d:%d]", vP6, ACC, sB5, sB5 + 1)
    V("global_store_dword v%d, v%d, s[%d:%d] sc1", vP6, ACC, sWS, sWS + 1)
    a("s_mov_b64 exec, -1")
else:
    gemv2(WA); sel2(sHI)
    V("global_store_dword v%d, v%d, s[%d:%d] sc1", vP6, GD, sWS, sWS + 1)
stamp(12)
if AMP >= 0 and P["ampb"]:
    V("s_cmp_lg_u32 s2, %d", P["ampb"]); a("s_cbranch_scc1 L_fin"); V("s_cmp_lg_u32 s%d, 0", sJ); a("s_cbranch_scc1 L_fin"); amplify()
a.label("L_fin")
if STAMPS:
    for i in range(4): a("s_sleep 127")
    a("s_waitcnt lgkmcnt(0)")
    V("v_mov_b32 v%d, 0", TMP); a("s_mov_b64 exec, 1")
    for i in range(NST):
        V("v_mov_b32 v%d, s%d", TMP + 2, sSTMP + 2 * i); V("v_mov_b32 v%d, s%d", TMP + 3, sSTMP + 2 * i + 1)
        V("global_store_dwordx2 v%d, v[%d:%d], s[%d:%d] offset:%d", TMP, TMP + 2, TMP + 3, sSTB, sSTB + 1, i * 8)
a.label("L_end")
a("s_endpgm")
a.l = a.l + cold + ["L_codeend:"]
a.l = hazard.fix(a.l)
open(OUT, "w").write(wrap(a.text(), 256, 768, LDS, NV))
print(OUT, "LDS", LDS, "ASTR", ASTR, "lines", len(a.l))
```

```python
import sys, math, struct, copy
from asmlib import *
import hazard
args = sys.argv[1:]
OUT = [x for x in args if x.endswith(".s")][0]
P = dict(stamps=0, light=0, amp=-1, ampb=0, nt=1, pf=1, prio=3, cprio=0, lsleep=1, rsleep=0,
         rb=128, g1=3, g2=1, g3=0, g4=3, kz=1, kx=0, rmul=0, rmx=5,
         wk=7, wv=9, wq=7, wo=5, wf=6, wf2=9, f1pre=4, bpre=3, wm=6, vpos=2, m5=8, gj=0, pt5=1, fake=0, unr=2, sq=1, so=1, sw=1, kd=1, pairab=0)
for x in args:
    if "=" in x:
        k, v = x.split("="); assert k in P, k; P[k] = int(v)
STAMPS = P["stamps"]; NT = " nt" if P["nt"] else ""; AMP = P["amp"]; LOC = 1; MA = 0
NST = 16; TAGM = 0xfff
O_S1 = 0x1000; O_S2 = O_S1 + 0x40000; O_S3 = O_S2 + 0x40000; O_S4 = O_S3 + 0x80000; O_SM = O_S4 + 0x20000
O_S5 = O_SM + 0x40000; O_S6 = O_S5 + 0x70000; O_S6L = O_S6 + 0x1c000; O_S5S = O_S6L + 0x1c000; O_H5 = O_S5S + 0x4000
SL0, SL1, SLA = 0, 65536, 131072
LS = 147456
F_LAND = 0; F_BAR = 16; F_H4 = 96
B_P1A, B_C2, B_MF = range(3)
A_ST1 = 128; A_ST2 = A_ST1 + 256; A_MX = A_ST2 + 512; A_LS = A_MX + 256
ASTR = 640
A_C1 = A_LS + 8 * 272; A_C2 = A_C1 + 2 * ASTR; A_X = A_C2 + 2 * ASTR; A_Y = A_X + 2 * ASTR; A_Z = A_C2
A_Q = A_X + 6 * ASTR; PSTR = 544; A_P = A_C1
A_P = A_Q + 8 * 288
LDS = LS + A_P + 8 * PSTR
if LDS > 163840:
    ASTR = 576
    A_C1 = A_LS + 8 * 272; A_C2 = A_C1 + 2 * ASTR; A_X = A_C2 + 2 * ASTR; A_Y = A_X + 2 * ASTR; A_Z = A_C2
    A_Q = A_X + 6 * ASTR; A_P = A_Q + 8 * 288; LDS = LS + A_P + 8 * PSTR
assert LDS <= 163840, LDS
RB = P["rb"]; assert RB % 64 == 0 and 0 < RB < 256
NM = (16 - RB // 16, RB // 16); NP6 = 14 if LOC else 28
EA_M = 4 + NM[0] if MA else 36 + NM[0]; EA_K = 20 + (NM[0] if MA else 0); EB_M = 20 + NM[1]
SLM_A = SL1 if MA else SL0
sJ = 3
sX, sK, sV, sWQ, sWO, sW1, sW2, sC, sWM, sOUT, sDBG, sWS = 4, 6, 8, 10, 12, 16, 18, 20, 22, 24, 26, 28
sx, sy, sz, sT, sTM, sTO, sTW = 30, 31, 14, 32, 33, 34, 35
sONES = 36; sHI = 54
sB, sB2, sB3, sB4, sB5, sB6 = 38, 40, 56, 58, 98, 100
st0, st1, st2, st3 = 42, 43, 44, 45
sHP, sCB, sRB, sC6 = 46, 47, 51, 15
sMOD, sMCB, sMRB, sMR0 = 94, 95, 96, 97
sSTB = 48; sEP = 50; sMSK = 52; sSTMP = 60; sLD = 93; sALT = 92
vL, vG, vC, vT, vTW, vJQ, vPUB, vZ, vIX, vFL, vTR5, vTR2, vAF, vX, vXD = range(1, 16)
vWV = 0
vA = 16; WA = 48; WB = 80; GD = 112; GL = 128; ACC = 136; TMP = 144
vGA, vCB, vXS = 164, 165, 166
NV = 168
a = Asm(); cold = []
class Cold:
    def __enter__(self): self.sv = a.l; a.l = []
    def __exit__(self, *x): cold.extend(a.l); a.l = self.sv
def V(fmt, *x): a(fmt % x)
def stamp(i):
    if STAMPS or (AMP >= 0 and i in (0, AMP)) or (P["light"] and i == 0): V("s_memrealtime s[%d:%d]", sSTMP + 2 * i, sSTMP + 2 * i + 1)
def base(dst, src, off=None, imm=0):
    if off is not None: V("s_add_u32 s%d, s%d, s%d", dst, src, off)
    else: V("s_add_u32 s%d, s%d, %d", dst, src, imm)
    V("s_addc_u32 s%d, s%d, 0", dst + 1, src + 1)
def lin(dst, terms, imm=0):
    first = True
    for coef, r in terms:
        t = dst if first else st3
        if coef and coef & (coef - 1) == 0: V("s_lshl_b32 s%d, s%d, %d", t, r, coef.bit_length() - 1)
        else: V("s_mul_i32 s%d, s%d, %d", t, r, coef)
        if not first: V("s_add_u32 s%d, s%d, s%d", dst, dst, t)
        first = False
    if imm: V("s_add_u32 s%d, s%d, %d", dst, dst, imm)
def wsb(dst, terms, off): lin(st0, terms, off); base(dst, sWS, st0)
def R(r, n=4): return list(range(r, r + n))
def dpp(op, d, s0, s1, ctl, extra="row_mask:0xf bank_mask:0xf"): a("%s_dpp v%d, v%d, v%d %s %s" % (op, d, s0, s1, ctl, extra))
def allred(rs, steps, op="v_add_f32"):
    for ctl in ("quad_perm:[1,0,3,2]", "quad_perm:[2,3,0,1]", "row_half_mirror", "row_mirror")[:steps]:
        for r in rs: dpp(op, r, r, r, ctl)
def swapred(ds, ror=True):
    for d in ds: V("v_permlane32_swap_b32 v%d, v%d", d, d + 2); V("v_permlane32_swap_b32 v%d, v%d", d + 1, d + 3)
    for d in ds: V("v_add_f32 v%d, v%d, v%d", d, d, d + 2); V("v_add_f32 v%d, v%d, v%d", d + 1, d + 1, d + 3)
    for d in ds: V("v_permlane16_swap_b32 v%d, v%d", d, d + 1)
    for d in ds: V("v_add_f32 v%d, v%d, v%d", d, d, d + 1)
    if ror:
        for d in ds: dpp("v_add_f32", d, d, d, "row_ror:8")
def rowred(r, t, op):
    V("v_mov_b32 v%d, v%d", t, r); V("v_permlane16_swap_b32 v%d, v%d", r, t); V("%s v%d, v%d, v%d", op, r, r, t)
    V("v_mov_b32 v%d, v%d", t, r); V("v_permlane32_swap_b32 v%d, v%d", r, t); V("%s v%d, v%d, v%d", op, r, r, t)
def add4(d, s):
    for h in (0, 2): V("v_pk_add_f32 v[%d:%d], v[%d:%d], v[%d:%d]", d + h, d + h + 1, d + h, d + h + 1, s + h, s + h + 1)
def check(tag_regs, word_regs=(), grp=False):
    V("v_xor_b32 v%d, v%d, v%d", TMP, tag_regs[0], vT)
    for r in tag_regs[1:]: V("v_bitop3_b32 v%d, v%d, v%d, v%d bitop3:0xbe", TMP, r, vT, TMP)
    V("v_and_b32 v%d, s%d, v%d", TMP, sTM, TMP)
    for r in word_regs: V("v_bitop3_b32 v%d, v%d, v%d, v%d bitop3:0xbe", TMP, r, vTW, TMP)
    if grp: allred([TMP], 3, "v_or_b32")
    V("v_cmp_ne_u32 vcc, 0, v%d", TMP)
def gl(d, va, sb, off=0): return "global_load_dwordx4 v[%d:%d], v%d, s[%d:%d] offset:%d sc1" % (d, d + 3, va, sb, sb + 1, off)
def emit(xs):
    for x in xs: a(x)
def gfinish(loads, tag_regs, word_regs=(), cnt=None, grp=False, nyoung=0, alt=None):
    ok, lp = a.lab("Ok"), a.lab("Rp")
    a("s_waitcnt vmcnt(%d)" % nyoung)
    check(tag_regs, word_regs)
    a("s_cbranch_vccnz %s_e" % lp)
    a.label(ok)
    with Cold():
        a.label(lp + "_e")
        if grp: a("s_nop 1"); allred([TMP], 3, "v_or_b32"); V("v_cmp_ne_u32 vcc, 0, v%d", TMP)
        a.label(lp)
        a("s_mov_b64 exec, vcc")
        if P["rsleep"]: a("s_sleep %d" % P["rsleep"])
        if STAMPS and cnt is not None: V("s_add_u32 s%d, s%d, %d", sSTMP + 30, sSTMP + 30, cnt)
        if alt is not None:
            sb, delta = alt
            V("s_sub_u32 s%d, s%d, 1", sALT, sALT); V("s_cmp_eq_u32 s%d, 0", sALT); V("s_cselect_b32 s%d, %d, 0", st3, delta)
            V("s_sub_u32 s%d, s%d, s%d", sb, sb, st3); V("s_subb_u32 s%d, s%d, 0", sb + 1, sb + 1)
        emit(loads)
        a("s_waitcnt vmcnt(0)")
        check(tag_regs, word_regs, grp)
        a("s_cbranch_vccz %s_dn" % ok)
        V("s_sub_u32 s%d, s%d, 1", sTO, sTO); a("s_cbranch_scc0 %s" % lp)
        V("s_mov_b32 s%d, 0", sTO)
        a.label(ok + "_dn"); a("s_mov_b64 exec, -1"); a("s_branch %s" % ok)
def mfma(acc, A, B, first):
    a("v_mfma_f32_16x16x32_bf16 v[%d:%d], v[%d:%d], v[%d:%d], %s" % (acc, acc + 3, A, A + 3, B, B + 3, "0" if first else "v[%d:%d]" % (acc, acc + 3)))
def smf(acc, A, B): V("v_smfmac_f32_16x16x64_bf16 v[%d:%d], v[%d:%d], v[%d:%d], v%d", acc, acc + 3, A, A + 3, B, B + 7, vIX)
def zacc(n=8):
    for i in range(0, n, 2): V("v_mov_b64 v[%d:%d], 0", ACC + i, ACC + i + 1)
def pack(r, d=None): V("v_cvt_pk_bf16_f32 v%d, v%d, v%d", r if d is None else d, r, r)
def tag(rs):
    for r in rs: V("v_bfi_b32 v%d, s%d, v%d, v%d", r, sTM, vT, r)
def silu(r, t):
    V("v_mul_f32 v%d, 0xbfb8aa3b, v%d", t, r); V("v_exp_f32 v%d, v%d", t, t); V("v_add_f32 v%d, 1.0, v%d", t, t)
    V("v_rcp_f32 v%d, v%d", t, t); V("v_mul_f32 v%d, v%d, v%d", r, r, t)
def lnstats(s, q):
    V("v_mul_f32 v%d, 0x3a800000, v%d", s, s); V("v_mul_f32 v%d, 0x3a800000, v%d", q, q)
    V("v_fma_f32 v%d, -v%d, v%d, v%d", q, s, s, q); V("v_max_f32 v%d, 0, v%d", q, q)
    V("v_add_f32 v%d, 0x3727c5ac, v%d", q, q); V("v_rsq_f32 v%d, v%d", q, q)
def arrive(k): V("v_mov_b32 v%d, 1", TMP + 2); V("ds_write_b8 v%d, v%d offset:%d", vFL, TMP + 2, F_BAR + 8 * k)
def waitloop(body, sleep):
    l, ok = a.lab("Sp"), a.lab("So")
    a.label(l); body()
    a("s_cbranch_vccnz %s_r" % l)
    a.label(ok)
    with Cold():
        a.label(l + "_r")
        if sleep: a("s_sleep %d" % sleep)
        V("s_sub_u32 s%d, s%d, 1", sTO, sTO); a("s_cbranch_scc0 %s" % l)
        V("s_mov_b32 s%d, 0", sTO); a("s_branch %s" % ok)
def spin(k, sleep=0):
    def body():
        V("ds_read_b64 v[%d:%d], v%d offset:%d", TMP + 2, TMP + 3, vZ, F_BAR + 8 * k); a("s_waitcnt lgkmcnt(0)")
        V("v_cmp_ne_u64 vcc, s[%d:%d], v[%d:%d]", sONES, sONES + 1, TMP + 2, TMP + 3)
    waitloop(body, sleep)
def landed(thr):
    def body():
        V("ds_read_b128 v[%d:%d], v%d offset:%d", TMP + 4, TMP + 7, vZ, F_LAND); a("s_waitcnt lgkmcnt(0)")
        V("v_min_u32 v%d, v%d, v%d", TMP + 4, TMP + 4, TMP + 5); V("v_min3_u32 v%d, v%d, v%d, v%d", TMP + 4, TMP + 4, TMP + 6, TMP + 7)
        V("v_cmp_gt_u32 vcc, %d, v%d", thr, TMP + 4)
    waitloop(body, P["lsleep"])
def hbar(reads=()):
    a("s_waitcnt lgkmcnt(0)"); a("s_barrier"); emit(reads)
def trl(W, RS, steps, r, o=0):
    return ["ds_read_b64_tr_b16 v[%d:%d], v%d offset:%d" % (W + 4 * s + 2 * hh, W + 4 * s + 2 * hh + 1, r, s * 32 * RS + hh * 8 * RS + o) for s in steps for hh in range(2)]
def tr2(W, r0, o0, r1, o1):
    for d in range(2): emit(trl(W, 512, (2 * d, 2 * d + 1), r0, o0)); emit(trl(W + 16, 512, (2 * d, 2 * d + 1), r1, o1))
def afr(va, off, n, d=vA, st=128): return ["ds_read_b128 v[%d:%d], v%d offset:%d" % (d + 4 * s, d + 4 * s + 3, va, off + s * st) for s in range(n)]
def swapbits(d, s, t, lo, hi):
    V("v_lshrrev_b32 v%d, %d, v%d", t, hi - lo, s); V("v_xor_b32 v%d, v%d, v%d", t, t, s); V("v_and_b32 v%d, %d, v%d", t, 1 << lo, t)
    V("v_mul_u32_u24 v%d, %d, v%d", t, 1 + (1 << (hi - lo)), t); V("v_xor_b32 v%d, v%d, v%d", d, s, t)
def pub32(r, va, sb, fl="sc1"):
    a("s_mov_b32 exec_hi, 0"); V("global_store_dword v%d, v%d, s[%d:%d] %s", va, r, sb, sb + 1, fl); a("s_mov_b64 exec, -1")
def gemv1(W, nd, nafter=0):
    for d in range(nd):
        a("s_waitcnt lgkmcnt(%d)" % (nafter(d) if callable(nafter) else nd - 1 - d)); smf(ACC, vA + 4 * d, W + 8 * d)
    V("v_add_f32 v%d, v%d, v%d", ACC, ACC, ACC + 1); tag([ACC])
def gemv2(W):
    for d in range(2):
        a("s_waitcnt lgkmcnt(%d)" % (1 - d))
        for h in range(2): smf(ACC + 4 * h, vA + 4 * d, W + 16 * h + 8 * d)
def mtile(grp):
    V("s_and_b32 s%d, s%d, 3", sMOD, sx); V("s_lshr_b32 s%d, s%d, 2", sMRB, sx)
    if grp == 0:
        V("s_and_b32 s%d, s%d, 7", sMCB, sz); V("s_lshr_b32 s%d, s%d, 3", st0, sz)
    else:
        V("s_lshr_b32 s%d, s%d, 1", sMCB, sz); V("s_xor_b32 s%d, s%d, 1", sMCB, sMCB); V("s_and_b32 s%d, s%d, 1", st0, sz)
    V("s_lshl_b32 s%d, s%d, 1", st0, st0); V("s_add_u32 s%d, s%d, s%d", sMRB, sMRB, st0)
    V("s_lshl_b32 s%d, s%d, 8", sMR0, sMRB)
    if grp == 0: V("s_add_u32 s%d, s%d, %d", sMR0, sMR0, RB); V("s_add_u32 s%d, s%d, 4", sMRB, sMRB)

a("s_load_dwordx8 s[20:27], s[0:1], 64")
a("s_load_dwordx16 s[4:19], s[0:1], 0")
a("s_load_dwordx2 s[28:29], s[0:1], 96")
a("s_cmp_ge_u32 s2, 256"); a("s_cbranch_scc1 L_end")
stamp(0)
a("v_lshrrev_b32 v2, 6, v0"); a("v_and_b32 v1, 63, v0"); V("v_readfirstlane_b32 s%d, v2", sLD)
V("v_lshrrev_b32 v%d, 4, v%d", vG, vL); V("v_and_b32 v%d, 15, v%d", vC, vL)
if P["pairab"]:
    V("s_lshr_b32 s%d, s2, 2", st0); V("s_xor_b32 s%d, s%d, s2", st0, st0); V("s_and_b32 s%d, s%d, 32", st0, st0); V("s_mul_i32 s%d, s%d, 5", st0, st0); V("s_xor_b32 s2, s2, s%d", st0)
V("s_and_b32 s%d, s2, 7", sx); V("s_lshr_b32 s%d, s2, 3", sy)
V("s_mov_b32 s%d, 400000", sTO); V("v_mov_b32 v%d, %d", vZ, LS)
V("s_mov_b32 s%d, 0x01010101", sONES); V("s_mov_b32 s%d, 0x01010101", sONES + 1)
V("v_lshrrev_b32 v%d, 5, v%d", TMP, vL)
if STAMPS:
    for i in range(1, NST): V("s_mov_b64 s[%d:%d], 0", sSTMP + 2 * i, sSTMP + 2 * i + 1)
if P["pf"]:
    V("s_and_b32 s%d, s%d, 14", st0, sLD); V("s_cmp_lg_u32 s%d, 4", st0); a("s_cbranch_scc1 L_nopf")
    V("s_getpc_b64 s[%d:%d]", sB, sB + 1); a.label("L_pc")
    V("v_and_b32 v%d, 127, v0", TMP + 1); V("v_lshlrev_b32 v%d, 7, v%d", TMP + 1, TMP + 1); V("v_min_u32 v%d, L_codeend-L_pc-4, v%d", TMP + 1, TMP + 1)
    V("global_load_dword v%d, v%d, s[%d:%d]", ACC, TMP + 1, sB, sB + 1)
    a.label("L_nopf")
V("s_cmp_ge_u32 s%d, 4", sLD); a("s_cbranch_scc1 L_comp")
vS5, vS2, vO, vCN, vLA, vZR, vHD = 16, 17, 18, 19, 20, 21, 22
sIDX, sCNT, sOFF, sM0, sROT, sD = 46, 47, 52, 54, 55, 56
if P["prio"]: a("s_setprio %d" % P["prio"])
V("s_lshl_b32 s%d, s%d, 2", st0, sLD); V("v_lshl_add_u32 v%d, v%d, 1, s%d", TMP + 1, TMP, st0); V("v_xor_b32 v%d, v%d, v%d", vS5, vC, TMP + 1); V("v_lshlrev_b32 v%d, 4, v%d", vS5, vS5)
V("v_add_u32 v%d, s%d, v%d", vLA, st0, vZ)
V("v_and_b32 v%d, 1, v%d", TMP + 8, vG)
V("v_mul_u32_u24 v%d, 12288, v%d", vO, TMP); V("v_lshl_add_u32 v%d, v%d, 11, v%d", vO, TMP + 8, vO); V("v_add_u32 v%d, v%d, v%d", vO, vO, vS5)
V("v_lshl_add_u32 v%d, v%d, 8, v%d", vS5, TMP + 8, vS5)
V("s_and_b32 s%d, s%d, 1", st0, sLD); V("s_lshl_b32 s%d, s%d, 3", st0, st0); V("v_lshl_add_u32 v%d, v%d, 1, s%d", TMP + 1, vG, st0); V("v_xor_b32 v%d, v%d, v%d", vS2, vC, TMP + 1); V("v_lshlrev_b32 v%d, 4, v%d", vS2, vS2)
lin(st2, [(32 * 12288, sy), (2 * 12288, sLD), (256, sx)])
V("s_lshl_b32 s%d, s%d, 10", sJ, sLD)
lin(sROT, [(P["rmul"] * 4096, sy), (P["rmx"] * 4096, sx)])
V("s_mov_b32 s%d, 0x20000", sD + 3)
a("s_waitcnt lgkmcnt(0)")
base(sB, sWM, st2)
stamp(8)
for i in range(4):
    V("s_add_u32 m0, s%d, %d", sJ, SLA + i * 4096)
    V("global_load_lds_dwordx4 v%d, s[%d:%d]%s", vO, sB, sB + 1, NT)
    if i != 3: base(sB, sB, None, 8 * 12288)
V("s_load_dword s%d, s[%d:%d], 0", sEP, sWS, sWS + 1)
V("s_and_b32 s%d, s%d, 15", sz, sy)
if STAMPS: wsb(sSTB, [(NST * 8 * 12, 2), (NST * 8, sLD)], 128 << 20)
def ltag():
    a("s_waitcnt lgkmcnt(0)")
    V("s_add_u32 s%d, s%d, 0x9e5", sT, sEP); V("s_and_b32 s%d, s%d, 0x%x", sT, sT, TAGM); V("s_mul_i32 s%d, s%d, 0x00100101", sTW, sT); V("s_xor_b32 s%d, s%d, 0x5a5a0000", sTW, sTW)
    V("v_mov_b32 v%d, s%d", vTW, sTW); V("v_mov_b32 v%d, 0", vZR)
    wsb(sB5, [(2048, sx), (128, sz)], O_H5)
def off5(stride): V("v_mul_u32_u24 v%d, %d, v%d", vO, stride, TMP); V("v_add_u32 v%d, v%d, v%d", vO, vO, vS5)
def off2(stride): V("v_mul_u32_u24 v%d, %d, v%d", vO, stride, vG); V("v_add_u32 v%d, v%d, v%d", vO, vO, vS2)
def begin(ptr, size, slot, rot=True):
    base(sD, ptr, st0); V("s_sub_u32 s%d, %d, s%d", sD + 2, size, st0); V("s_add_u32 s%d, s%d, %d", sM0, sJ, slot)
    if rot: V("s_mov_b32 s%d, s%d", sIDX, sROT)
    else: V("s_mov_b32 s%d, 0xf000", sIDX)
FAKE = {458752: 2, 16 * 12288: 1, 16 * 2048: 2, 8 * 7168: 4, 65536: 8}
def run(n, step, W):
    if n <= 0: return
    big = None; diag = False
    if isinstance(step, tuple):
        step, big = step
        if big == "d": diag = True; big = None
    fk = P["fake"] & FAKE.get(step, 0)
    def body():
        V("s_add_u32 s%d, s%d, 0x1000", sIDX, sIDX); V("s_and_b32 s%d, s%d, 0xf000", sIDX, sIDX)
        V("s_add_u32 m0, s%d, s%d", sIDX, sM0)
        if big and not fk:
            V("s_and_b32 s%d, s%d, 0xe000", st3, sIDX); V("s_mul_i32 s%d, s%d, %d", st3, st3, big // 8192 - step // 4096); V("s_mul_i32 s%d, s%d, %d", sOFF, sIDX, step // 4096); V("s_add_u32 s%d, s%d, s%d", sOFF, sOFF, st3)
        else: V("s_mul_i32 s%d, s%d, %d", sOFF, sIDX, 0 if fk else step // 4096)
        if diag: V("s_add_u32 s%d, s%d, s%d", st3, sIDX, st1); V("s_and_b32 s%d, s%d, 0xf000", st3, st3); V("s_add_u32 s%d, s%d, s%d", sOFF, sOFF, st3)
        if W < 16: a("s_waitcnt vmcnt(%d)" % (W - 1))
        V("buffer_load_dwordx4 v%d, s[%d:%d], s%d offen%s lds", vO, sD, sD + 3, sOFF, "" if fk else NT)
    u = P["unr"]
    for _ in range(n % u): body()
    if n // u == 1:
        for _ in range(u): body()
    elif n // u > 1:
        l = a.lab("Ld"); V("s_mov_b32 s%d, %d", sCNT, n // u - 1); a.label(l)
        for _ in range(u): body()
        V("s_sub_u32 s%d, s%d, 1", sCNT, sCNT); a("s_cbranch_scc0 %s" % l)
def publish(v): V("v_mov_b32 v%d, %d", vCN, v); V("ds_write_b32 v%d, v%d offset:%d", vLA, vCN, F_LAND)
def runp(n, step, W, v):
    run(W, step, W); publish(v); run(n - W, step, W)
def tail(n, st=None, two=False):
    a("s_waitcnt vmcnt(%d)" % n); a("s_barrier")
    if n: a("s_waitcnt vmcnt(0)")
    if st is not None: stamp(st)
    if n or two: a("s_barrier")
def mbegin(grp, slot):
    mtile(grp); off2(12288); lin(st0, [(12288, sMR0), (4 * 12288, sLD), (2048, sMOD), (256, sMCB)], 4096); begin(sWM, 1024 * 12288, slot, False)
a("s_cmp_ge_u32 s2, 128"); a("s_cbranch_scc1 L_ldB")
V("s_lshl_b32 s%d, s%d, 2", st0, sLD); V("v_add_u32 v%d, s%d, v%d", TMP + 1, st0, vG); V("v_xor_b32 v%d, v%d, v%d", vO, vC, TMP + 1); V("v_lshlrev_b32 v%d, 4, v%d", vO, vO); V("v_lshl_add_u32 v%d, v%d, 8, v%d", vO, vG, vO)
lin(st0, [(1 << 23, sx), (0 if P["kd"] else 4096, sz), (1024, sLD)], 28672 * 256); begin(sK, 1 << 26, SL0)
V("s_lshl_b32 s%d, s%d, 12", st1, sz); KVS = (65536, "d") if P["kd"] else 65536
lin(sIDX, [(P["kz"] * 4096, sz), (P["kx"] * 4096, sx)])
a("s_barrier")
runp(16, KVS, P["wk"], 1); stamp(1)
off2(256); base(sD, sV, st0); V("s_add_u32 s%d, s%d, %d", sM0, sJ, SL1)
runp(16, KVS, P["wv"], 2); stamp(2)
mbegin(0, SL0)
ltag()
a("s_waitcnt vmcnt(%d)" % P["g2"]); a("s_barrier"); a("s_waitcnt vmcnt(0)"); stamp(3)
a("s_barrier")
pre = min(P["f1pre"], NM[0])
run(pre, 16 * 12288, 16)
for i in range(3): a("s_barrier")
stamp(4)
run(NM[0] - pre, 16 * 12288, P["wf"])
V("s_cmp_ge_u32 s%d, 14", sz); a("s_cbranch_scc1 L_mdone")
off5(7168); lin(st0, [(16 * 7168, sx), (2 * 7168, sLD), (512, sz)]); begin(sW1, 1024 * 7168, SL1)
runp(16, (8 * 7168, 128 * 7168), P["wf"], 3)
wsb(sB, [(1024, sz), (128, sx)], O_S5S)
V("v_lshl_add_u32 v%d, v%d, 3, v%d", vO, vL, vZ); V("v_lshlrev_b32 v%d, 4, v%d", vCN, TMP)
V("v_mov_b32 v%d, s%d", GD + 5, sTW); V("v_mov_b32 v%d, s%d", GD + 7, sTW)
tail(P["g4"], 5)
a("s_barrier")
V("s_cmp_eq_u32 s%d, 0", sLD); a("s_cbranch_scc1 L_st")
V("s_cmp_lg_u32 s%d, 1", sLD); a("s_cbranch_scc1 L_fin")
a("s_mov_b64 exec, 1"); V("global_store_dword v%d, v%d, s[%d:%d]", vZR, vTW, sB5, sB5 + 1); a("s_mov_b64 exec, -1")
a("s_branch L_fin")
a.label("L_st")
V("ds_read_b64 v[%d:%d], v%d offset:%d", GD, GD + 1, vO, A_ST2)
a("s_waitcnt lgkmcnt(0)")
allred([GD, GD + 1], 4)
V("v_mov_b32 v%d, v%d", GD + 2, GD); V("v_mov_b32 v%d, v%d", GD + 3, GD + 1)
V("v_permlane16_swap_b32 v%d, v%d", GD, GD + 2); V("v_permlane16_swap_b32 v%d, v%d", GD + 1, GD + 3)
V("v_add_f32 v%d, v%d, v%d", GD + 4, GD, GD + 2); V("v_add_f32 v%d, v%d, v%d", GD + 6, GD + 1, GD + 3)
a("s_mov_b32 exec_lo, 1"); a("s_mov_b32 exec_hi, 1")
V("global_store_dwordx4 v%d, v[%d:%d], s[%d:%d] sc1", vCN, GD + 4, GD + 7, sB, sB + 1)
a("s_mov_b64 exec, -1")
stamp(6)
a("s_branch L_fin")
a.label("L_mdone"); a("s_waitcnt vmcnt(0)"); publish(3); a("s_branch L_fin")
a.label("L_ldB")
off5(8192); lin(st0, [((16 if P["sq"] else 128) * 8192, sx), (2 * 8192, sLD), (512, sz)]); begin(sWQ, 1024 * 8192, SL0)
a("s_barrier")
runp(16, (8 * 8192, 128 * 8192) if P["sq"] else 8 * 8192, P["wq"], 1); stamp(1)
mbegin(1, SL1)
ltag()
tail(P["g1"], 7, True); run(P["bpre"], 16 * 12288, 16); a("s_barrier"); a("s_barrier")
run(NM[1] - P["bpre"], 16 * 12288, P["wm"]); stamp(2)
off2(2048); V("s_and_b32 s%d, s%d, 1", st1, sz); V("s_lshr_b32 s%d, s%d, 1", st2, sz)
HR = 32 if P["so"] else 256
lin(st0, [(2 * HR * 2048, sx), (HR * 2048, st1), (4 * 2048, sLD), (256, st2)]); begin(sWO, 4096 * 2048, SL0)
runp(16, (16 * 2048, 1 << 20) if P["so"] else 16 * 2048, P["wo"], 3); stamp(3)
V("s_min_u32 s%d, s%d, 13", st1, sz); lin(st0, [((16 if P["sw"] else 256) * 2048, st1), (4 * 2048, sLD), (256, sx)]); begin(sW2, 3584 * 2048, SL1)
tail(P["g3"], 4)
a("s_barrier"); a("s_barrier"); stamp(5)
V("s_cmp_ge_u32 s%d, 14", sz); a("s_cbranch_scc1 L_fin")
hp = "global_load_dword v%d, v%d, s[%d:%d] sc1" % (vCN, vZR, sB5, sB5 + 1)
if P["pt5"]: a(hp)
run(16, 458752 if P["sw"] else 16 * 2048, P["wf2"])
V("s_mov_b32 s%d, 40", sCNT)
tail(0, 6)
V("s_cmp_lg_u32 s%d, 0", sLD); a("s_cbranch_scc1 L_h5d")
a.label("L_h5")
a(hp); a("s_waitcnt vmcnt(0)")
V("v_cmp_ne_u32 vcc, s%d, v%d", sTW, vCN); a("s_cbranch_vccz L_h5o")
V("s_sub_u32 s%d, s%d, 1", sCNT, sCNT); a("s_cbranch_scc0 L_h5")
a.label("L_h5o")
if P["m5"]: a("s_sleep %d" % P["m5"])
a.label("L_h5d")
a("s_barrier"); a("s_barrier")
a("s_branch L_fin")
a.label("L_comp")
V("s_sub_u32 s%d, s%d, 4", sJ, sLD)
if P["cprio"]: a("s_setprio %d" % P["cprio"])
V("v_lshlrev_b32 v%d, 11, v%d", TMP + 1, TMP); V("v_and_b32 v%d, 31, v%d", TMP + 2, vL)
V("v_lshl_add_u32 v%d, v%d, 1, v%d", TMP + 3, TMP + 2, TMP + 1)
V("s_lshl_b32 s%d, s%d, 6", st0, sy); V("v_add_u32 v%d, s%d, v%d", TMP + 4, st0, TMP + 3)
V("v_lshl_add_u32 v%d, v%d, 3, v%d", TMP + 5, TMP + 2, TMP + 1); V("s_lshl_b32 s%d, s%d, 8", st0, sJ); V("v_add_u32 v%d, s%d, v%d", TMP + 5, st0, TMP + 5)
lin(st1, [(256, sx), (32, sJ)])
V("v_and_b32 v%d, 1, v%d", TMP + 6, vG); V("v_lshlrev_b32 v%d, 11, v%d", TMP + 6, TMP + 6); V("v_lshl_add_u32 v%d, v%d, 1, v%d", TMP + 6, vC, TMP + 6); V("v_add_u32 v%d, s%d, v%d", TMP + 6, st1, TMP + 6)
V("v_mov_b32 v%d, 0", TMP + 8); V("v_lshl_add_u32 v%d, v%d, 2, v%d", TMP + 9, TMP + 2, vZ)
V("ds_write_b32 v%d, v%d", TMP + 9, TMP + 8)
a("s_waitcnt lgkmcnt(0)")
V("global_load_dwordx2 v[%d:%d], v%d, s[%d:%d]", vXS, vXS + 1, TMP + 5, sX, sX + 1)
V("global_load_ushort v%d, v%d, s[%d:%d]", GL, TMP + 4, sC, sC + 1)
V("global_load_ushort v%d, v%d, s[%d:%d]", vXD, TMP + 6, sX, sX + 1)
V("s_load_dword s%d, s[%d:%d], 0", sEP, sWS, sWS + 1)
a("s_barrier")
V("s_and_b32 s%d, s%d, 15", sz, sy)
V("s_mov_b32 s%d, 0x%x", sTM, TAGM); V("s_mov_b32 s%d, 0", sHI); V("s_mov_b32 s%d, -1", sHI + 1)
V("v_add_u32 v%d, s%d, v%d", vFL, sJ, vZ)
V("s_lshl_b32 s%d, s%d, 7", st0, sJ); V("v_and_b32 v%d, 7, v%d", TMP + 4, vL); V("v_lshlrev_b32 v%d, 4, v%d", vJQ, TMP + 4)
V("v_lshl_add_u32 v%d, v%d, 2, s%d", vPUB, TMP + 2, st0)
V("v_bfe_u32 v%d, v%d, 2, 3", TMP + 16, vL); V("v_lshl_add_u32 v%d, v%d, 4, v%d", TMP + 17, TMP, TMP + 16)
V("v_xor_b32 v%d, s%d, v%d", TMP + 4, sJ, TMP + 16); V("v_lshlrev_b32 v%d, 5, v%d", TMP + 4, TMP + 4); V("v_and_b32 v%d, 3, v%d", TMP + 5, vL); V("v_lshl_add_u32 v%d, v%d, 3, v%d", TMP + 4, TMP + 5, TMP + 4)
V("v_lshl_add_u32 v%d, v%d, 9, v%d", vTR5, TMP + 17, TMP + 4); V("v_lshl_add_u32 v%d, v%d, 8, v%d", vTR2, TMP + 17, TMP + 4)
vGH = TMP + 14
V("v_bfe_u32 v%d, v%d, 2, 1", TMP + 4, vL); V("v_mul_u32_u24 v%d, %d, v%d", TMP + 7, ASTR, TMP + 4); V("v_lshl_add_u32 v%d, v%d, 4, v%d", TMP + 4, vG, TMP + 7); V("v_add_u32 v%d, v%d, v%d", TMP + 13, TMP + 4, vZ)
V("v_and_b32 v%d, 1, v%d", TMP + 4, vL); V("v_mul_u32_u24 v%d, 0xaaaa, v%d", vIX, TMP + 4); V("v_add_u32 v%d, 0x4444, v%d", vIX, vIX)
V("v_lshl_add_u32 v%d, v%d, 4, v%d", vGH, TMP + 4, vZ); V("v_lshl_add_u32 v%d, v%d, 5, v%d", vGH, vG, vGH); V("v_add_u32 v%d, v%d, v%d", vAF, vGH, TMP + 7)
vW32 = TMP + 18
swapbits(TMP + 4, TMP + 2, TMP + 5, 2, 3); V("v_mul_u32_u24 v%d, %d, v%d", TMP + 5, ASTR, TMP); V("v_lshl_add_u32 v%d, v%d, 1, v%d", TMP + 4, TMP + 4, TMP + 5); V("v_add_u32 v%d, v%d, v%d", vW32, TMP + 4, vZ)
V("v_and_b32 v%d, 3, v%d", TMP + 4, vL); V("v_lshl_add_u32 v%d, v%d, 2, v%d", TMP + 4, TMP + 4, vG); V("s_lshl_b32 s%d, s%d, 4", st0, sJ); V("v_add_u32 v%d, s%d, v%d", TMP + 4, st0, TMP + 4)
swapbits(TMP + 4, TMP + 4, TMP + 5, 1, 3); V("v_lshl_add_u32 v%d, v%d, 1, v%d", TMP + 4, TMP + 4, TMP + 7); V("v_add_u32 v%d, v%d, v%d", vWV, TMP + 4, vZ)
V("v_and_b32 v%d, 1, v%d", TMP + 4, vG); V("v_lshlrev_b32 v%d, 7, v%d", TMP + 10, TMP); V("v_lshl_add_u32 v%d, v%d, 3, v%d", TMP + 10, TMP + 4, TMP + 10); V("v_add3_u32 v%d, v%d, v%d, s%d", TMP + 10, TMP + 10, vZ, st0)
V("v_lshlrev_b32 v%d, 7, v%d", TMP + 11, TMP + 4); V("v_lshl_add_u32 v%d, v%d, 3, v%d", TMP + 11, vC, TMP + 11); V("v_add_u32 v%d, v%d, v%d", TMP + 11, TMP + 11, vZ)
V("v_add_u32 v%d, %d, v%d", TMP + 12, SLA, vTR5)
wsb(sB, [(32768, sx), (1024, sy)], O_S1)
if STAMPS: wsb(sSTB, [(NST * 8 * 12, 2), (NST * 8, sLD)], 128 << 20)
V("s_mov_b32 s%d, 0x3f803f80", st0)
V("s_cmp_eq_u32 s%d, 0", sy); V("s_cselect_b32 s%d, 1.0, 0", st2)
a("s_waitcnt vmcnt(0)")
V("v_dot2_f32_bf16 v%d, v%d, s%d, 0", GD, vXS, st0); V("v_dot2_f32_bf16 v%d, v%d, v%d, 0", GD + 1, vXS, vXS)
V("v_dot2_f32_bf16 v%d, v%d, s%d, v%d", GD, vXS + 1, st0, GD); V("v_dot2_f32_bf16 v%d, v%d, v%d, v%d", GD + 1, vXS + 1, vXS + 1, GD + 1)
V("v_lshlrev_b32 v%d, 16, v%d", GL, GL)
V("v_mul_f32 v%d, 0xbfb8aa3b, v%d", GL + 2, GL); V("v_exp_f32 v%d, v%d", GL + 2, GL + 2)
allred([GD, GD + 1], 2)
V("v_add_f32 v%d, 1.0, v%d", GL + 2, GL + 2); V("v_rcp_f32 v%d, v%d", GL + 2, GL + 2)
for r in (GD, GD + 1): dpp("v_add_f32", r, r, r, "row_half_mirror")
V("v_mul_f32 v%d, v%d, v%d", GL, GL, GL + 2); pack(GL)
for r in (GD, GD + 1): dpp("v_add_f32", r, r, r, "row_mirror")
V("ds_write_b16 v%d, v%d offset:%d", vW32, GL, A_C1)
V("ds_write_b64 v%d, v[%d:%d] offset:%d", TMP + 10, GD, GD + 1, A_ST1)
arrive(B_P1A)
V("v_lshlrev_b32 v%d, 16, v%d", vXD, vXD)
a("s_waitcnt lgkmcnt(0)")
V("s_add_u32 s%d, s%d, 0x9e5", sT, sEP); V("s_and_b32 s%d, s%d, s%d", sT, sT, sTM); V("v_mov_b32 v%d, s%d", vT, sT)
V("s_mul_i32 s%d, s%d, 0x00100101", sTW, sT); V("s_xor_b32 s%d, s%d, 0x5a5a0000", sTW, sTW); V("v_mov_b32 v%d, s%d", vTW, sTW)
spin(B_P1A)
V("ds_read_b64 v[%d:%d], v%d offset:%d", GD, GD + 1, TMP + 11, A_ST1); emit(afr(TMP + 13, A_C1, 1))
a("s_waitcnt lgkmcnt(0)")
allred([GD, GD + 1], 4); lnstats(GD, GD + 1)
V("v_sub_f32 v%d, v%d, v%d", vXD, vXD, GD); V("v_mul_f32 v%d, v%d, v%d", vXD, vXD, GD + 1)
landed(1)
stamp(1)
emit(trl(WA, 512, (0,), TMP + 12, 0)); emit(trl(WA + 4, 512, (0,), TMP + 12, 256))
a("s_waitcnt lgkmcnt(0)")
mfma(ACC + 4, vA, WA + 4, True); mfma(ACC, vA, WA, True)
V("v_add_f32 v%d, s%d, v%d", ACC + 4, st2, ACC + 4); V("v_fmac_f32 v%d, v%d, v%d", ACC, vXD, ACC + 4); tag([ACC])
pub32(ACC, vPUB, sB)
stamp(2)
def late(grp):
    mtile(grp)
    V("v_and_b32 v%d, 4, v%d", TMP + 5, vL); V("v_lshlrev_b32 v%d, 9, v%d", TMP + 5, TMP + 5); V("v_and_b32 v%d, 3, v%d", TMP + 6, vL)
    V("v_lshl_add_u32 v%d, v%d, 3, v%d", TMP + 5, TMP + 6, TMP + 5); V("v_lshl_add_u32 v%d, v%d, 1, v%d", TMP + 19, vG, TMP + 5)
    lin(st0, [(2, sMR0), (32, sJ)]); V("v_add_u32 v%d, s%d, v%d", TMP + 6, st0, TMP + 19); V("v_min_u32 v%d, 4094, v%d", TMP + 7, TMP + 6)
    V("global_load_ushort v%d, v%d, s[%d:%d]", vGA, TMP + 7, sC, sC + 1)
    if NM[grp] > 8:
        V("v_add_u32 v%d, 256, v%d", TMP + 6, TMP + 6); V("v_min_u32 v%d, 4094, v%d", TMP + 6, TMP + 6)
        V("global_load_ushort v%d, v%d, s[%d:%d]", GL + 7, TMP + 6, sC, sC + 1)
    if grp == 0:
        V("s_cmp_ge_u32 s%d, 14", sz); V("s_cselect_b32 s%d, s%d, s%d", sHP, sx, sJ); V("s_cselect_b32 s%d, s%d, s%d", sCB, sJ, sx)
        lin(st0, [(256, sHP), (32, sCB)]); V("v_add_u32 v%d, s%d, v%d", TMP + 19, st0, TMP + 19)
        V("global_load_ushort v%d, v%d, s[%d:%d]", vX, TMP + 19, sX, sX + 1)
def late_use(grp, ny=0):
    a("s_waitcnt vmcnt(%d)" % ny)
    V("v_lshlrev_b32 v%d, 16, v%d", vGA, vGA); silu(vGA, vCB); pack(vGA)
    V("ds_write_b16 v%d, v%d offset:%d", vWV, vGA, A_C2)
    if NM[grp] > 8:
        V("v_lshlrev_b32 v%d, 16, v%d", GL + 7, GL + 7); silu(GL + 7, vCB); pack(GL + 7)
        V("ds_write_b16 v%d, v%d offset:%d", vWV, GL + 7, A_C2 + 256)
    if grp == 0: V("v_lshlrev_b32 v%d, 16, v%d", vX, vX)
def p1b(grp, slot, thr, front):
    if front: arrive(B_C2); spin(B_C2, sleep=1)
    nd = NM[grp] // 4
    emit(afr(vAF, A_C2, nd)); zacc(4)
    V("v_add_u32 v%d, %d, v%d", TMP + 1, slot, vTR2)
    wsb(sB6, [(32768, sMCB), (8192, sMOD), (1024, sMRB)], O_SM)
    landed(thr)
    emit(trl(WA, 256, range(2 * nd), TMP + 1))
    gemv1(WA, nd, lambda d: 4 * (nd - 1 - d))
    pub32(ACC, vPUB, sB6)
vG8 = TMP + 8
a("s_cmp_ge_u32 s2, 128"); a("s_cbranch_scc1 L_B")
late(0)
vL16, vQW, vQA, vMW, vPW, vPA, vVB, vLW, vLR, vMR, vS3, vH2, vSH = TMP + 8, TMP + 9, TMP + 10, TMP + 11, TMP + 12, TMP + 13, TMP + 15, TMP + 16, TMP + 17, TMP + 18, vXS, vXS + 1, vXD
vVA = TMP + 1
wsb(sB, [(32768, sx), (4096, sJ)], O_S2)
V("v_lshlrev_b32 v%d, 4, v%d", vL16, vL)
V("v_and_b32 v%d, 31, v%d", vQW, vL); V("v_lshlrev_b32 v%d, 3, v%d", vQW, vQW); V("v_lshrrev_b32 v%d, 5, v%d", TMP + 4, vL); V("v_lshl_add_u32 v%d, v%d, 2, v%d", vQW, TMP + 4, vQW)
V("s_mul_i32 s%d, s%d, 288", st0, sJ); V("v_add3_u32 v%d, v%d, v%d, s%d", vQW, vQW, vZ, st0)
V("v_lshlrev_b32 v%d, 5, v%d", vPW, TMP + 4); V("v_bfe_u32 v%d, v%d, 3, 2", TMP + 5, vL); V("v_lshl_add_u32 v%d, v%d, 2, v%d", vPW, TMP + 5, vPW)
V("v_and_b32 v%d, 7, v%d", TMP + 4, vL)
V("v_mul_u32_u24 v%d, %d, v%d", TMP + 5, PSTR, TMP + 4); V("s_lshl_b32 s%d, s%d, 6", st0, sJ); V("s_add_u32 s%d, s%d, %d", st0, st0, LS + A_P); V("v_add3_u32 v%d, v%d, v%d, s%d", vPW, vPW, TMP + 5, st0)
V("v_bfe_u32 v%d, v%d, 1, 3", TMP + 5, vL); V("v_mul_u32_u24 v%d, %d, v%d", vPA, PSTR, TMP + 5); V("v_add_u32 v%d, v%d, v%d", vPA, vPA, vGH)
V("v_mul_u32_u24 v%d, 288, v%d", vQA, TMP + 4); V("v_lshl_add_u32 v%d, v%d, 4, v%d", vQA, vG, vQA); V("v_add_u32 v%d, v%d, v%d", vQA, vQA, vZ)
V("v_lshl_add_u32 v%d, v%d, 5, v%d", vMR, TMP + 4, vZ); V("s_lshl_b32 s%d, s%d, 2", st0, sJ); V("v_add_u32 v%d, s%d, v%d", vMW, st0, vMR)
V("v_mul_u32_u24 v%d, 272, v%d", vLW, TMP + 4); V("v_lshrrev_b32 v%d, 3, v%d", TMP + 6, vL); V("v_lshl_add_u32 v%d, v%d, 2, v%d", vLW, TMP + 6, vLW)
V("s_lshl_b32 s%d, s%d, 5", st0, sJ); V("v_add3_u32 v%d, v%d, v%d, s%d", vLW, vLW, vZ, st0)
V("v_mul_u32_u24 v%d, 272, v%d", vLR, TMP + 6); V("v_lshl_add_u32 v%d, v%d, 5, v%d", vLR, TMP + 4, vLR); V("v_add_u32 v%d, v%d, v%d", vLR, vLR, vZ)
V("v_lshl_add_u32 v%d, v%d, 2, v%d", vH2, vL, vZ)
V("v_xor_b32 v%d, v%d, v%d", GL, TMP + 4, vG); V("v_lshlrev_b32 v%d, 4, v%d", GL, GL); V("v_lshl_add_u32 v%d, v%d, 8, v%d", GL, TMP + 4, GL)
V("v_and_b32 v%d, 8, v%d", TMP + 4, vL); V("v_lshl_add_u32 v%d, v%d, 9, v%d", GL, TMP + 4, GL)
V("s_lshl_b32 s%d, s%d, 13", st0, sJ); V("v_add_u32 v%d, s%d, v%d", GL, st0, GL)
for s in range(1, 4): V("v_xor_b32 v%d, %d, v%d", GL + s, s << 6, GL)
V("s_mov_b32 s%d, 0xff00ff00", sMSK); V("s_mov_b32 s%d, 0xff00ff00", sMSK + 1)
V("v_lshlrev_b32 v%d, 15, v%d", vS3, vG); V("v_lshl_add_u32 v%d, v%d, 3, v%d", vS3, vC, vS3)
V("v_and_b32 v%d, 1, v%d", vSH, vL); V("v_mul_u32_u24 v%d, 12, v%d", vSH, vSH); V("v_sub_u32 v%d, 20, v%d", vSH, vSH)
V("s_lshl_b32 s%d, s%d, 1", st0, sJ); V("s_and_b32 s%d, s%d, 7", st0, st0); V("s_xor_b32 s%d, s%d, s%d", st0, st0, sJ); V("s_lshl_b32 s%d, s%d, 5", st0, st0); V("s_xor_b32 s%d, s%d, 32", st0, st0)
V("v_xor_b32 v%d, s%d, v%d", vVB, st0, vTR2); V("v_add_u32 v%d, %d, v%d", vVB, SL1, vVB)
V("s_and_b32 s%d, s%d, 3", st1, sx); V("s_lshr_b32 s%d, s%d, 2", st2, sx)
wsb(sB2, [(8 * 16384, st1), (4096, sJ), (256, sz), (128, st2)], O_S3); base(sB3, sB2, None, 16384)
SC = struct.unpack("<I", struct.pack("<f", 128 ** -0.5 * math.log2(math.e)))[0]
V("s_mov_b32 s%d, 0x%08x", st1, SC)
late_use(0)
V("v_xor_b32 v%d, 32, v%d", vVA, vVB)
landed(2)
for s in range(4):
    for t in range(2): V("ds_read_b128 v[%d:%d], v%d offset:%d", WA + 16 * t + 4 * s, WA + 16 * t + 4 * s + 3, GL + (s ^ (2 * t)), SL0 + t * 2048)
a("s_barrier")
stamp(3)
g2 = [gl(GD + 4 * i, vL16, sB, i * 1024) for i in range(4)]
emit(g2)
gfinish(g2, R(GD, 16), cnt=1)
stamp(4)
add4(GD, GD + 4); add4(GD + 8, GD + 12); add4(GD, GD + 8)
V("v_permlane32_swap_b32 v%d, v%d", GD, GD + 2); V("v_permlane32_swap_b32 v%d, v%d", GD + 1, GD + 3)
V("v_add_f32 v%d, v%d, v%d", GD, GD, GD + 2); V("v_add_f32 v%d, v%d, v%d", GD + 1, GD + 1, GD + 3)
V("v_cvt_pk_bf16_f32 v%d, v%d, v%d", GD, GD, GD + 1)
V("ds_write_b32 v%d, v%d offset:%d", vQW, GD, A_Q)
hbar(afr(vQA, A_Q, 4, GD, 64))
def pvonly(xs):
    l = a.lab("Nv"); V("s_cmp_ge_u32 s%d, 4", sJ); a("s_cbranch_scc1 %s" % l); emit(xs); a.label(l)
vall = trl(WB, 256, range(8), vVA) + trl(vA, 256, range(8), vVB)
n1 = (12, 20, 32)[P["vpos"]]
for s in range(4):
    a("s_waitcnt lgkmcnt(%d)" % (3 - s))
    for t in range(2): mfma(ACC + 4 * t, WA + 16 * t + 4 * s, GD + 4 * s, s == 0)
pvonly(vall[:n1]); a("s_nop 5")
for i in range(4): V("v_cndmask_b32 v%d, v%d, v%d, s[%d:%d]", GD + i, ACC + i, ACC + 4 + i, sMSK, sMSK + 1)
V("v_max_f32 v%d, v%d, v%d", GL, GD, GD + 1); V("v_max3_f32 v%d, v%d, v%d, v%d", GL, GL, GD + 2, GD + 3)
zacc(4)
dpp("v_max_f32", GL, GL, GL, "row_ror:8")
V("v_mov_b32 v%d, v%d", GL + 1, GL); V("v_mov_b64 v[%d:%d], 0", ACC + 4, ACC + 5); V("v_mov_b64 v[%d:%d], 0", ACC + 6, ACC + 7)
V("v_permlane16_swap_b32 v%d, v%d", GL, GL + 1); V("v_max_f32 v%d, v%d, v%d", GL, GL, GL + 1)
V("v_mov_b32 v%d, v%d", GL + 1, GL); V("v_permlane32_swap_b32 v%d, v%d", GL, GL + 1); V("v_max_f32 v%d, v%d, v%d", GL, GL, GL + 1)
a("s_mov_b64 exec, 0xff"); V("ds_write_b32 v%d, v%d offset:%d", vMW, GL, A_MX); a("s_mov_b64 exec, -1")
hbar(["ds_read_b128 v[%d:%d], v%d offset:%d" % (GL + 4 * i, GL + 4 * i + 3, vMR, A_MX + 16 * i) for i in range(2)])
a("s_waitcnt lgkmcnt(0)")
V("v_max3_f32 v%d, v%d, v%d, v%d", GL, GL, GL + 1, GL + 2); V("v_max3_f32 v%d, v%d, v%d, v%d", GL + 4, GL + 4, GL + 5, GL + 6)
V("v_max3_f32 v%d, v%d, v%d, v%d", GL, GL, GL + 3, GL + 7); V("v_max_f32 v%d, v%d, v%d", GL, GL, GL + 4)
V("v_mul_f32 v%d, s%d, v%d", GL, st1, GL)
for i in range(4): V("v_fma_f32 v%d, v%d, s%d, -v%d", GD + i, GD + i, st1, GL)
for i in range(4): V("v_exp_f32 v%d, v%d", GD + i, GD + i)
for i in range(2): V("v_cvt_pk_bf16_f32 v%d, v%d, v%d", GL + 2 + i, GD + 2 * i, GD + 2 * i + 1)
V("ds_write2_b32 v%d, v%d, v%d offset0:0 offset1:4", vPW, GL + 2, GL + 3)
V("v_add_f32 v%d, v%d, v%d", GD, GD, GD + 1); V("v_add_f32 v%d, v%d, v%d", GD + 2, GD + 2, GD + 3); V("v_add_f32 v%d, v%d, v%d", GD, GD, GD + 2)
V("ds_write_b32 v%d, v%d offset:%d", vLW, GD, A_LS)
if n1 < 32: pvonly(vall[n1:])
hbar()
V("s_cmp_ge_u32 s%d, 4", sJ); a("s_cbranch_scc1 L_nopv")
pf_ = afr(vPA, A_P, 4, WA)
emit(["ds_read_b128 v[%d:%d], v%d offset:%d" % (GD + 8 + 4 * i, GD + 11 + 4 * i, vLR, A_LS + 16 * i) for i in range(2)] + ["ds_read_b32 v%d, v%d offset:%d" % (GL + 1, vH2, A_MX)] + pf_)
for d in range(4):
    a("s_waitcnt lgkmcnt(%d)" % (3 - d))
    for t in range(2): smf(ACC + 4 * t, WA + 4 * d, (WB, vA)[t] + 8 * d)
    if d == 0:
        add4(GD + 8, GD + 12); V("v_add_f32 v%d, v%d, v%d", GD + 8, GD + 8, GD + 9); V("v_add_f32 v%d, v%d, v%d", GD + 10, GD + 10, GD + 11); V("v_add_f32 v%d, v%d, v%d", GL, GD + 8, GD + 10)
    else:
        ctl = ("quad_perm:[1,0,3,2]", "quad_perm:[2,3,0,1]", "row_half_mirror")[d - 1]
        dpp("v_max_f32", GL + 1, GL + 1, GL + 1, ctl); dpp("v_add_f32", GL, GL, GL, ctl)
V("v_log_f32 v%d, v%d", GL + 2, GL); V("v_rcp_f32 v%d, v%d", GL, GL)
V("v_fmac_f32 v%d, s%d, v%d", GL + 2, st1, GL + 1); V("v_mov_b32 v%d, v%d", GL + 1, GL)
V("v_lshrrev_b32 v%d, v%d, v%d", GL + 2, vSH, GL + 2)
for k in range(2):
    for t in range(2): V("v_add_f32 v%d, v%d, v%d", GD + 2 * k + t, ACC + 4 * t + 2 * k, ACC + 4 * t + 2 * k + 1)
V("v_mov_b32_dpp v%d, v%d row_ror:8 row_mask:0xf bank_mask:0x3", GL + 1, GL); V("v_mov_b32 v%d, v%d", GL + 3, GL + 2)
V("v_mov_b32_dpp v%d, v%d row_ror:8 row_mask:0xf bank_mask:0xc", GL, GL)
V("v_mov_b32_dpp v%d, v%d row_ror:8 row_mask:0xf bank_mask:0x3", GL + 3, GL + 2); V("v_mov_b32_dpp v%d, v%d row_ror:8 row_mask:0xf bank_mask:0xc", GL + 2, GL + 2)
for k in range(2):
    for t in range(2): V("v_mul_f32 v%d, v%d, v%d", GD + 2 * k + t, GD + 2 * k + t, GL + k)
    V("v_bfi_b32 v%d, s%d, v%d, v%d", GD + 2 * k, sTM, vT, GD + 2 * k); V("v_bfi_b32 v%d, s%d, v%d, v%d", GD + 2 * k + 1, sTM, GL + 2 + k, GD + 2 * k + 1)
    V("global_store_dwordx2 v%d, v[%d:%d], s[%d:%d] sc1", vS3, GD + 2 * k, GD + 2 * k + 1, (sB2, sB3)[k], (sB2, sB3)[k] + 1)
a.label("L_nopv")
stamp(5)
a("s_barrier")
p1b(0, SL0, 3, False); stamp(13)
vG4, vP5, vA5, vS2W, vF1, vG6 = TMP + 9, TMP + 10, TMP + 11, TMP + 12, TMP + 13, TMP + 16
GM = WB
V("v_lshrrev_b32 v%d, 3, v%d", vG6, vL); V("v_lshl_add_u32 v%d, v%d, 10, v%d", vG8, vG6, vJQ); V("v_lshl_add_u32 v%d, v%d, 11, v%d", vG4, vG6, vJQ)
wsb(sB, [(32768, sHP), (128, sCB)], O_SM); base(sB2, sB, None, 8192); base(sB3, sB, None, 16384)
wsb(sB5, [(16384, sHP), (128, sCB)], O_S4)
g4 = [gl(GD + 4 * i, vG4, sB5, i * 1024) for i in range(2)]
V("s_cmp_ge_u32 s%d, 14", sz); a("s_cbranch_scc1 L_final")
V("v_add_u32 v%d, %d, v%d", vF1, SL1, vTR5)
V("v_lshrrev_b32 v%d, 5, v%d", vP5, vL); V("v_lshl_add_u32 v%d, v%d, 13, v%d", vP5, vP5, vPUB); V("v_lshlrev_b32 v%d, 1, v%d", vP5, vP5)
V("v_bfe_u32 v%d, v%d, 3, 1", vA5, vL); V("v_lshlrev_b32 v%d, 1, v%d", vA5, vA5)
V("v_and_b32 v%d, 2, v%d", TMP + 4, vL); V("v_cmp_ne_u32 vcc, 0, v%d", TMP + 4); V("v_cndmask_b32 v%d, v%d, 1, vcc", vA5, vA5)
V("v_mul_u32_u24 v%d, %d, v%d", vA5, 2 * ASTR, vA5); V("v_add_u32 v%d, v%d, v%d", vA5, vA5, vAF)
V("v_and_b32 v%d, 4, v%d", vS2W, vL); V("v_lshlrev_b32 v%d, 6, v%d", vS2W, vS2W); V("v_lshl_add_u32 v%d, v%d, 3, v%d", vS2W, vG, vS2W); V("s_lshl_b32 s%d, s%d, 5", st0, sJ); V("v_add3_u32 v%d, v%d, v%d, s%d", vS2W, vS2W, vZ, st0)
zacc()
gm = [gl(GM + 4 * i, vG8, (sB, sB2, sB3)[i]) for i in range(3)]
a("s_barrier")
stamp(7)
emit(gm)
if P["gj"] == 1: emit(g4)
if P["g4"]: a("s_barrier")
if P["gj"] == 2: emit(g4)
tr2(WA, vF1, 0, vF1, 256)
gfinish(gm, R(GM, 12), cnt=0x100, nyoung=2 if P["gj"] else 0)
if not P["gj"]: emit(g4)
stamp(6)
swapred([GM, GM + 4, GM + 8])
V("v_mov_b32 v%d, v%d", vGA, GM); V("v_add_f32 v%d, 1.0, v%d", vCB, GM + 8); pack(GM + 4); pack(vCB, GM + 2)
V("ds_write_b16 v%d, v%d offset:%d", vWV, GM + 2, A_X + 2 * ASTR); V("ds_write_b16 v%d, v%d offset:%d", vWV, GM + 4, A_X + 4 * ASTR)
wsb(sB3, [(32768, sz), (2048, sx)], O_S5)
gfinish(g4, R(GD, 8), cnt=0x10000)
stamp(8)
add4(GD, GD + 4); swapred([GD])
V("v_fmac_f32 v%d, v%d, v%d", vX, vGA, GD)
V("v_mul_f32 v%d, v%d, v%d", GD, vX, vCB); V("v_mul_f32 v%d, v%d, v%d", GD + 3, vX, vX); pack(GD)
dpp("v_add_f32", GD + 2, vX, vX, "quad_perm:[1,0,3,2]"); dpp("v_add_f32", GD + 3, GD + 3, GD + 3, "quad_perm:[1,0,3,2]")
V("ds_write_b16 v%d, v%d offset:%d", vWV, GD, A_X)
dpp("v_add_f32", GD + 2, GD + 2, GD + 2, "quad_perm:[2,3,0,1]"); dpp("v_add_f32", GD + 3, GD + 3, GD + 3, "quad_perm:[2,3,0,1]")
V("ds_write_b64 v%d, v[%d:%d] offset:%d", vS2W, GD + 2, GD + 3, A_ST2)
hbar(afr(vA5, A_X, 2))
gemv2(WA)
def sel2(mask):
    for h in range(2): V("v_add_f32 v%d, v%d, v%d", GD + h, ACC + 4 * h, ACC + 4 * h + 1)
    V("v_cndmask_b32 v%d, v%d, v%d, s[%d:%d]", GD, GD, GD + 1, mask, mask + 1); tag([GD])
for h in range(2): V("v_add_f32 v%d, v%d, v%d", GD + h, ACC + 4 * h, ACC + 4 * h + 1)
for h in range(2): V("v_add_f32 v%d, v%d, v%d", GD + 2 + h, ACC + 4 * h + 2, ACC + 4 * h + 3)
V("v_permlane32_swap_b32 v%d, v%d", GD, GD + 1)
V("v_cndmask_b32 v%d, v%d, v%d, s[%d:%d]", GD + 2, GD + 2, GD + 3, sHI, sHI + 1); tag([GD])
V("v_cvt_pk_bf16_f32 v%d, v%d, v%d", GD + 1, GD + 2, GD + 1)
V("global_store_dwordx2 v%d, v[%d:%d], s[%d:%d] sc1", vP5, GD, GD + 1, sB3, sB3 + 1)
stamp(9)
a("s_branch L_fin")
a.label("L_final")
V("s_lshr_b32 s%d, s%d, 2", st0, sJ); V("s_add_u32 s%d, s%d, 14", st0, st0); V("s_cmp_lg_u32 s%d, s%d", sz, st0); a("s_cbranch_scc1 L_fin")
base(sB4, sB, None, 24576)
V("v_cmp_gt_u32 s[%d:%d], 7, v%d", sMSK, sMSK + 1, vG6); V("v_min_u32 v%d, 6, v%d", vG6, vG6); V("v_lshl_add_u32 v%d, v%d, 11, v%d", vG6, vG6, vJQ)
wsb(sB6, [(14 * 1024, sx), (128, sJ)], O_S6L); V("s_mov_b32 s%d, 60", sALT)
wsb(sB2, [(2048, sx), (128, sJ)], O_H5); V("s_mov_b32 s%d, 60", st1); V("v_mov_b32 v%d, 0", TMP + 1)
a.label("L_fh")
V("global_load_dword v%d, v%d, s[%d:%d] sc1", TMP + 2, TMP + 1, sB2, sB2 + 1); a("s_waitcnt vmcnt(0)")
V("v_cmp_ne_u32 vcc, v%d, v%d", TMP + 2, vTW); a("s_cbranch_vccz L_fho")
a("s_sleep 2"); V("s_sub_u32 s%d, s%d, 1", st1, st1); a("s_cbranch_scc0 L_fh")
a.label("L_fho")
gf = [gl(GM, vG8, sB), gl(GM + 4, vG8, sB4)] + g4
emit(gf); gfinish(gf, R(GM, 8) + R(GD, 8))
add4(GD, GD + 4); swapred([GD, GM, GM + 4])
V("v_fmac_f32 v%d, v%d, v%d", vX, GM, GD); vGB = GM + 4
stamp(11)
g6 = [gl(GD + 4 * i, vG6, sB6, i * 1024) for i in range(2 if LOC else 4)]
emit(g6); gfinish(g6, R(GD, 8 if LOC else 16), cnt=0x1000000, alt=(sB6, O_S6L - O_S6) if LOC else None)
add4(GD, GD + 4)
if not LOC: add4(GD + 8, GD + 12); add4(GD, GD + 8)
for i in range(4): V("v_cndmask_b32 v%d, 0, v%d, s[%d:%d]", GD + i, GD + i, sMSK, sMSK + 1)
swapred([GD])
V("v_fmac_f32 v%d, v%d, v%d", vX, vGB, GD); pack(vX)
a("s_mov_b32 exec_lo, 0x00ff00ff"); a("s_mov_b32 exec_hi, 0x00ff00ff")
V("global_store_short v%d, v%d, s[%d:%d]", TMP + 19, vX, sOUT, sOUT + 1)
a("s_mov_b64 exec, -1")
stamp(10)
if P["light"]:
    V("s_memrealtime s[%d:%d]", sSTMP + 2, sSTMP + 3)
    wsb(sSTB, [(16, sx), (128, sJ)], 128 << 20)
    a("s_waitcnt lgkmcnt(0)"); V("v_mov_b32 v%d, 0", TMP)
    for i in range(4): V("v_mov_b32 v%d, s%d", TMP + 4 + i, sSTMP + i)
    a("s_mov_b64 exec, 1"); V("global_store_dwordx4 v%d, v[%d:%d], s[%d:%d]", TMP, TMP + 4, TMP + 7, sSTB, sSTB + 1); a("s_mov_b64 exec, -1")
V("s_add_u32 s%d, s%d, s%d", st0, sx, sJ); V("s_cmp_lg_u32 s%d, 0", st0); a("s_cbranch_scc1 L_fin")
V("v_mov_b32 v%d, 0", TMP); a("s_mov_b64 exec, 1")
V("global_store_dword v%d, v%d, s[%d:%d] sc1", TMP, vT, sWS, sWS + 1)
a("s_mov_b64 exec, -1")
def amplify():
    V("s_memrealtime s[%d:%d]", sB, sB + 1); a("s_waitcnt lgkmcnt(0)")
    V("s_sub_u32 s%d, s%d, s%d", st0, sSTMP + 2 * AMP, sSTMP); V("s_mul_i32 s%d, s%d, 10", st0, st0); V("s_min_u32 s%d, s%d, 100000", st0, st0)
    a.label("L_amp")
    V("s_memrealtime s[%d:%d]", sB2, sB2 + 1); a("s_waitcnt lgkmcnt(0)")
    V("s_sub_u32 s%d, s%d, s%d", st1, sB2, sB); V("s_cmp_lt_u32 s%d, s%d", st1, st0); a("s_cbranch_scc1 L_amp")
if AMP >= 0 and not P["ampb"]: amplify()
a("s_branch L_fin")
a.label("L_B")
late(1)
vG1, vQ0, vQ1, vA2, vP2, vL16, vW4 = TMP + 9, TMP + 10, TMP + 11, TMP + 12, TMP + 13, TMP + 16, TMP + 17
wsb(sB, [(32768, sJ), (128, sx)] if P["sq"] else [(32768, sx), (128, sJ)], O_S1)
V("v_lshrrev_b32 v%d, 3, v%d", vG1, vL); V("v_lshl_add_u32 v%d, v%d, 12, v%d", vG1, vG1, vJQ)
V("s_lshl_b32 s%d, s%d, 1", st0, sJ); V("s_and_b32 s%d, s%d, 7", st0, st0); V("s_xor_b32 s%d, s%d, s%d", st0, st0, sJ); V("s_lshl_b32 s%d, s%d, 5", st0, st0)
V("s_lshr_b32 s%d, s%d, 2", st1, sJ); V("s_lshl_b32 s%d, s%d, 8", st2, st1)
V("v_xor_b32 v%d, s%d, v%d", vQ0, st0, vTR5); V("v_add_u32 v%d, s%d, v%d", vQ0, st2, vQ0); V("v_xor_b32 v%d, 32, v%d", vQ1, vQ0)
V("v_bfe_u32 v%d, v%d, 3, 1", TMP + 7, vL); V("v_mul_u32_u24 v%d, %d, v%d", TMP + 7, ASTR, TMP + 7); V("v_add_u32 v%d, v%d, v%d", vA2, vGH, TMP + 7)
V("v_lshrrev_b32 v%d, 5, v%d", vP2, vL); V("v_lshl_add_u32 v%d, v%d, 17, v%d", vP2, vP2, vPUB)
wsb(sB2, [(4096 - 512, st1), (8192, sz), (512, sx)], O_S2)
V("s_mov_b32 s%d, 0xffff0000", sMSK); V("s_mov_b32 s%d, 0xffff0000", sMSK + 1)
V("s_and_b32 s%d, s%d, 1", st0, sz); V("s_lshl_b32 s%d, s%d, 1", sHP, sx); V("s_add_u32 s%d, s%d, s%d", sHP, sHP, st0); V("s_lshr_b32 s%d, s%d, 1", sCB, sz)
wsb(sB3, [(4096, sHP), (65536, sJ)] if P["so"] else [(32768, sHP), (4096, sJ)], O_S3); wsb(sB4, [(16384, sCB), (1024, sHP)], O_S4)
V("v_lshlrev_b32 v%d, 4, v%d", vL16, vL)
V("v_and_b32 v%d, 1, v%d", TMP + 4, vG); V("v_lshlrev_b32 v%d, 4, v%d", TMP + 4, TMP + 4); V("v_and_b32 v%d, 7, v%d", TMP + 5, vL); V("v_lshl_add_u32 v%d, v%d, 1, v%d", TMP + 4, TMP + 5, TMP + 4)
V("v_lshrrev_b32 v%d, 5, v%d", TMP + 5, vL); V("v_add_u32 v%d, v%d, v%d", TMP + 4, TMP + 4, TMP + 5)
swapbits(TMP + 4, TMP + 4, TMP + 5, 1, 3)
V("v_lshl_add_u32 v%d, v%d, 1, v%d", TMP + 4, TMP + 4, TMP + 7); V("s_lshl_b32 s%d, s%d, 6", st0, sJ); V("v_add3_u32 v%d, v%d, v%d, s%d", vW4, TMP + 4, vZ, st0)
zacc()
g1 = [gl(GD + 4 * i, vG1, sB, i * 1024) for i in range(4)]
a("s_barrier")
stamp(3)
emit(g1)
late_use(1, 4)
a("s_barrier")
tr2(WA, vQ0, 0, vQ1, 0)
gfinish(g1, R(GD, 16), cnt=1)
stamp(4)
add4(GD, GD + 4); add4(GD + 8, GD + 12); add4(GD, GD + 8); swapred([GD]); pack(GD)
V("ds_write_b16 v%d, v%d offset:%d", vWV, GD, A_X)
hbar(afr(vA2, A_X, 2))
gemv2(WA)
sel2(sMSK)
V("global_store_dword v%d, v%d, s[%d:%d] sc1", vP2, GD, sB2, sB2 + 1)
stamp(5)
a("s_barrier")
p1b(1, SL1, 3, False); stamp(6)
V("s_mov_b32 s%d, 0x000fff00", st2)
zacc(4)
g3 = [gl(GD + 4 * k, vL16, sB3, k * 1024) for k in range(4)]
a("s_barrier")
stamp(7)
emit(g3)
if P["g3"]: a("s_barrier")
emit(trl(WA, 256, range(8), vTR2))
gfinish(g3, [GD + 2 * k for k in range(8)], cnt=0x100, grp=True)
stamp(8)
for i in range(4): V("v_lshlrev_b32 v%d, 20, v%d", GL + i, GD + 4 * i + 1); V("v_lshlrev_b32 v%d, 8, v%d", GL + 4 + i, GD + 4 * i + 3)
for i in range(4): V("v_bfi_b32 v%d, s%d, v%d, v%d", GL + i, st2, GL + 4 + i, GL + i)
V("v_max_f32 v%d, v%d, v%d", GL + 4, GL, GL + 1); V("v_max3_f32 v%d, v%d, v%d, v%d", GL + 4, GL + 4, GL + 2, GL + 3)
rowred(GL + 4, GL + 5, "v_max_f32")
for i in range(4): V("v_sub_f32 v%d, v%d, v%d", GL + i, GL + i, GL + 4)
for i in range(4): V("v_exp_f32 v%d, v%d", GL + i, GL + i)
for e in range(4): V("v_mul_f32 v%d, v%d, v%d", GD + e, GD + e, GL)
V("v_add_f32 v%d, v%d, v%d", GL + 4, GL, GL + 1); V("v_add_f32 v%d, v%d, v%d", GL + 5, GL + 2, GL + 3); V("v_add_f32 v%d, v%d, v%d", GL + 4, GL + 4, GL + 5)
for e in range(4): V("v_fmac_f32 v%d, v%d, v%d", GD + e, GD + 4 + e, GL + 1)
V("v_mov_b32 v%d, v%d", GL + 5, GL + 4)
for e in range(4): V("v_fmac_f32 v%d, v%d, v%d", GD + e, GD + 8 + e, GL + 2)
V("v_permlane16_swap_b32 v%d, v%d", GL + 4, GL + 5); V("v_add_f32 v%d, v%d, v%d", GL + 4, GL + 4, GL + 5); V("v_mov_b32 v%d, v%d", GL + 5, GL + 4)
for e in range(4): V("v_fmac_f32 v%d, v%d, v%d", GD + e, GD + 12 + e, GL + 3)
V("v_permlane32_swap_b32 v%d, v%d", GL + 4, GL + 5); V("v_add_f32 v%d, v%d, v%d", GL + 4, GL + 4, GL + 5)
V("v_permlane32_swap_b32 v%d, v%d", GD, GD + 2); V("v_permlane32_swap_b32 v%d, v%d", GD + 1, GD + 3)
V("v_add_f32 v%d, v%d, v%d", GD, GD, GD + 2); V("v_add_f32 v%d, v%d, v%d", GD + 1, GD + 1, GD + 3)
V("v_rcp_f32 v%d, v%d", GL + 4, GL + 4)
V("v_permlane16_swap_b32 v%d, v%d", GD, GD + 1); V("v_add_f32 v%d, v%d, v%d", GD, GD, GD + 1)
V("v_mul_f32 v%d, v%d, v%d", GD, GD, GL + 4); pack(GD)
V("ds_write_b16 v%d, v%d offset:%d", vW4, GD, A_Y)
hbar(afr(vAF, A_Y, 4))
gemv1(WA, 4)
pub32(ACC, vPUB, sB4)
stamp(9)
a("s_barrier")
V("s_cmp_ge_u32 s%d, 14", sz); a("s_cbranch_scc1 L_fin")
vG5, vGS, vP6, vF2, vW6 = TMP + 9, TMP + 10, TMP + 11, TMP + 12, TMP + 13
if P["sw"]:
    lin(st1, [(14, sJ), (1, sz)]); V("s_lshr_b32 s%d, s%d, 3", st2, st1); V("s_and_b32 s%d, s%d, 7", st1, st1)
    wsb(sB, [(16384, st2), (256, st1)], O_S5); HS = 14 * 16384
else:
    wsb(sB, [(32768, sz), (256, sJ)], O_S5); HS = 16384
base(sB2, sB, None, 8192); base(sB3, sB, None, HS); base(sB6, sB, None, HS + 8192)
wsb(sB4, [(1024, sz)], O_S5S)
V("v_lshlrev_b32 v%d, 11, v%d", vG5, vG); V("v_lshl_add_u32 v%d, v%d, 4, v%d", vG5, vC, vG5)
V("v_lshlrev_b32 v%d, 8, v%d", vGS, vG); V("v_and_b32 v%d, 4, v%d", TMP + 4, vL); V("v_lshl_add_u32 v%d, v%d, 5, v%d", vGS, TMP + 4, vGS); V("v_and_b32 v%d, 8, v%d", TMP + 4, vL); V("v_lshl_add_u32 v%d, v%d, 1, v%d", vGS, TMP + 4, vGS)
lin(st0, [(14 * 1024, sx), (1024, sz)], O_S6); V("v_add_u32 v%d, s%d, v%d", vP6, st0, vPUB); base(sB5, sWS, None, O_S6L - O_S6)
V("v_add_u32 v%d, %d, v%d", vF2, SL1, vTR2)
V("v_and_b32 v%d, 7, v%d", TMP + 4, vL); V("v_and_b32 v%d, 1, v%d", TMP + 5, vG); V("v_lshl_add_u32 v%d, v%d, 1, v%d", TMP + 4, TMP + 4, TMP + 5)
swapbits(TMP + 4, TMP + 4, TMP + 5, 1, 3)
V("v_lshrrev_b32 v%d, 5, v%d", TMP + 5, vL); V("v_lshl_add_u32 v%d, v%d, 7, v%d", TMP + 4, TMP + 5, TMP + 4)
V("v_bfe_u32 v%d, v%d, 3, 1", TMP + 5, vL); V("v_mul_u32_u24 v%d, %d, v%d", TMP + 5, ASTR, TMP + 5); V("v_lshl_add_u32 v%d, v%d, 1, v%d", TMP + 4, TMP + 4, TMP + 5)
V("s_lshl_b32 s%d, s%d, 5", st0, sJ); V("v_add3_u32 v%d, v%d, v%d, s%d", vW6, TMP + 4, vZ, st0)
V("s_mov_b32 s%d, 0xffff0000", st2)
zacc(4)
g5 = [gl(GL, vGS, sB4)] + [gl(GD + 4 * k, vG5, (sB, sB2, sB3, sB6)[k]) for k in range(4)]
a("s_barrier")
emit(trl(WA, 256, range(8), vF2))
a("s_barrier"); stamp(10)
emit(g5)
gfinish(g5, [GD + 2 * k for k in range(8)], [GL + 1, GL + 3], cnt=0x10000, grp=True)
stamp(11)
U, Vv, T_ = WB, WB + 4, WB + 8
fill = []
for h in range(2):
    for e in range(2):
        p0, p1, o = GD + 8 * h + 2 * e, GD + 8 * h + 4 + 2 * e, 2 * h + e
        fill += ["v_add_f32 v%d, v%d, v%d" % (U + o, p0, p1),
                 "v_lshlrev_b32 v%d, 16, v%d" % (Vv + o, p0 + 1), "v_lshlrev_b32 v%d, 16, v%d" % (WB + 12, p1 + 1), "v_add_f32 v%d, v%d, v%d" % (Vv + o, Vv + o, WB + 12),
                 "v_and_b32 v%d, s%d, v%d" % (T_ + o, st2, p0 + 1), "v_and_b32 v%d, s%d, v%d" % (WB + 13, st2, p1 + 1), "v_add_f32 v%d, v%d, v%d" % (T_ + o, T_ + o, WB + 13)]
sv = a.l; a.l = []
V("v_permlane32_swap_b32 v%d, v%d", GL, GL + 2); V("v_add_f32 v%d, v%d, v%d", GL, GL, GL + 2)
dpp("v_add_f32", GL, GL, GL, "row_half_mirror")
V("v_mov_b32 v%d, v%d", GL + 1, GL); V("v_permlane16_swap_b32 v%d, v%d", GL, GL + 1); V("v_add_f32 v%d, v%d, v%d", GL, GL, GL + 1)
V("v_mov_b32 v%d, v%d", GL + 2, GL); V("v_permlane32_swap_b32 v%d, v%d", GL, GL + 2)
lnstats(GL, GL + 2)
chain = a.l; a.l = sv
for x in chain:
    a(x); emit(fill[:2]); fill = fill[2:]
emit(fill)
for o in range(4): V("v_fma_f32 v%d, -v%d, v%d, v%d", U + o, GL, Vv + o, U + o)
for o in range(4): V("v_fma_f32 v%d, v%d, v%d, v%d", U + o, U + o, GL + 2, T_ + o)
swapred([U], ror=False)
V("v_max_f32 v%d, 0, v%d", U, U); pack(U)
V("ds_write_b16 v%d, v%d offset:%d", vW6, U, A_Z)
hbar(afr(vAF, A_Z, 4))
gemv1(WA, 4)
a("s_mov_b32 exec_hi, 0")
V("global_store_dword v%d, v%d, s[%d:%d]", vP6, ACC, sB5, sB5 + 1)
V("global_store_dword v%d, v%d, s[%d:%d] sc1", vP6, ACC, sWS, sWS + 1)
a("s_mov_b64 exec, -1")
stamp(12)
if AMP >= 0 and P["ampb"]:
    V("s_cmp_lg_u32 s2, %d", P["ampb"]); a("s_cbranch_scc1 L_fin"); V("s_cmp_lg_u32 s%d, 0", sJ); a("s_cbranch_scc1 L_fin"); amplify()
a.label("L_fin")
if STAMPS:
    for i in range(4): a("s_sleep 127")
    a("s_waitcnt lgkmcnt(0)")
    V("s_getreg_b32 s%d, hwreg(HW_REG_HW_ID)", sSTMP + 28); V("s_getreg_b32 s%d, hwreg(HW_REG_XCC_ID)", sSTMP + 29)
    V("v_mov_b32 v%d, 0", TMP); a("s_mov_b64 exec, 1")
    for i in range(NST):
        V("v_mov_b32 v%d, s%d", TMP + 2, sSTMP + 2 * i); V("v_mov_b32 v%d, s%d", TMP + 3, sSTMP + 2 * i + 1)
        V("global_store_dwordx2 v%d, v[%d:%d], s[%d:%d] offset:%d", TMP, TMP + 2, TMP + 3, sSTB, sSTB + 1, i * 8)
a.label("L_end")
a("s_endpgm")
a.l = a.l + cold + ["L_codeend:"]
a.l = hazard.fix(a.l)
open(OUT, "w").write(wrap(a.text(), 256, 768, LDS, NV))
print(OUT, "LDS", LDS, "ASTR", ASTR, "lines", len(a.l))
```
